```python
import torch

def _softmax(x, axis=-1):
    return torch.softmax(x, dim=axis)
def _gelu(x):
    return torch.nn.functional.gelu(x, approximate="tanh")
def _silu(x):
    return torch.nn.functional.silu(x)
def _sigmoid(x):
    return torch.sigmoid(x)
def _layernorm(x, axis=-1, eps=1e-5):
    m = x.mean(dim=axis, keepdim=True)
    v = x.var(dim=axis, keepdim=True, unbiased=False)
    return (x - m) / torch.sqrt(v + eps)
def _scatter_add(tgt, idx, src, axis=0):
    return tgt.clone().index_add_(axis, idx, src)
def _segment_sum(src, seg, n):
    out = torch.zeros((n,) + src.shape[1:], dtype=src.dtype)
    return out.index_add_(0, seg, src)
def _pad(x, pw):
    flat = tuple(v for pair in reversed(pw) for v in pair)
    return torch.nn.functional.pad(x, flat)

kernel_name = 'parallel_sum__ssm_conv_s4__moe_arch_mod__prompt'

def setup_inputs():

    _w = (lambda a: (lambda t: t.to(torch.bfloat16) if t.is_floating_point() else t)(torch.as_tensor(a)))
    def _A_setup():
        B, L, D, N = 1, 2048, 512, 128
        A_re = -(lambda _x: torch.exp(torch.as_tensor(_x)))((lambda *s: torch.randn(*s, dtype=torch.bfloat16) * 3.2)(D, N))
        A_im = torch.pi * (lambda *s: torch.randn(*s, dtype=torch.bfloat16) * 0.1)(D, N)
        B_re = (lambda *s: torch.randn(*s, dtype=torch.bfloat16) * 0.4)(D, N)
        B_im = (lambda *s: torch.randn(*s, dtype=torch.bfloat16) * 0.4)(D, N)
        C_re = (lambda *s: torch.randn(*s, dtype=torch.bfloat16) * 0.4)(D, N)
        C_im = (lambda *s: torch.randn(*s, dtype=torch.bfloat16) * 0.4)(D, N)
        log_dt = (lambda *s: torch.randn(*s, dtype=torch.bfloat16) * 0.1)(D) * 0.5 - 4.0
        Dskip = (lambda *s: torch.randn(*s, dtype=torch.bfloat16) * 0.1)(D)
        return {
            "u": _w((lambda *s: torch.randn(*s, dtype=torch.bfloat16) * 0.05)(B, L, D)),
            "A_re": _w(A_re),
            "A_im": _w(A_im),
            "B_re": _w(B_re),
            "B_im": _w(B_im),
            "C_re": _w(C_re),
            "C_im": _w(C_im),
            "log_dt": _w(log_dt),
            "Dskip": _w(Dskip),
        }
    _A_in = _A_setup()

    def _B_setup():
        B, S, D, F, C = 1, 2048, 512, 1792, 2
        return {
            "x": _w((lambda *s: torch.randn(*s, dtype=torch.bfloat16) * 0.05)(B, S, D)),
            "w_r": _w((lambda *s: torch.randn(*s, dtype=torch.bfloat16) * 0.05)(D)),
            "w_gate": _w((lambda *s: torch.randn(*s, dtype=torch.bfloat16) * 0.05)(D, F)),
            "w_up": _w((lambda *s: torch.randn(*s, dtype=torch.bfloat16) * 0.05)(D, F)),
            "w_down": _w((lambda *s: torch.randn(*s, dtype=torch.bfloat16) * 0.05)(F, D)),
        }
    _B_in = _B_setup()

    return {
        "A_u": _A_in["u"],
        "A_A_re": _A_in["A_re"],
        "A_A_im": _A_in["A_im"],
        "A_B_re": _A_in["B_re"],
        "A_B_im": _A_in["B_im"],
        "A_C_re": _A_in["C_re"],
        "A_C_im": _A_in["C_im"],
        "A_log_dt": _A_in["log_dt"],
        "A_Dskip": _A_in["Dskip"],
        "B_x": _B_in["x"],
        "B_w_r": _B_in["w_r"],
        "B_w_gate": _B_in["w_gate"],
        "B_w_up": _B_in["w_up"],
        "B_w_down": _B_in["w_down"],
    }

def reference(A_u, A_A_re, A_A_im, A_B_re, A_B_im, A_C_re, A_C_im, A_log_dt, A_Dskip, B_x, B_w_r, B_w_gate, B_w_up, B_w_down):
    def _A_ref(u, A_re, A_im, B_re, B_im, C_re, C_im, log_dt, Dskip):
        Bsz, L, D = u.shape
        dt = torch.exp(log_dt)[:, None]
        A = A_re + 1j * A_im
        Bc = B_re + 1j * B_im
        Cc = C_re + 1j * C_im
        logdA = dt * A
        dB = dt * Bc
        l = (lambda x, dt: x.to(dt))(torch.arange(L), A_re.dtype)
        P = torch.exp(logdA[:, :, None] * l[None, None, :])
        K = torch.einsum("dn,dnl,dn->dl", Cc, P, dB).real
        L2 = 2 * L
        Kp = _pad(K, ((0, 0), (0, L)))
        up = (lambda x, *d: x.permute(*d))(u, 0, 2, 1)
        up = _pad(up, ((0, 0), (0, 0), (0, L)))
        Kf = (lambda x, axes=(-2,-1): torch.fft.rfft2(x.float(), dim=axes))(Kp[:, None, :], axes=(-2, -1))
        Uf = (lambda x, axes=(-2,-1): torch.fft.rfft2(x.float(), dim=axes))(up[:, :, None, :], axes=(-2, -1))
        Yf = Uf * Kf[None, :, :, :]
        y = (lambda x, s, axes=(-2,-1): torch.fft.irfft2(x, s=s, dim=axes).to(torch.bfloat16))(Yf, (1, L2), axes=(-2, -1))[:, :, 0, :L]
        y = (lambda x, *d: x.permute(*d))(y, 0, 2, 1) + u * Dskip[None, None, :]
        return y

    def _B_ref(x, w_r, w_gate, w_up, w_down):
        B, S, D = x.shape
        C = 2
        r = x @ w_r
        idx = torch.argsort(-r, axis=-1)[:, :C]
        idx_e = (lambda x, n, axis: torch.repeat_interleave(x, n, dim=axis))(idx.reshape(B, C, 1), D, axis=2)
        x_sel = (lambda x, i, axis: torch.take_along_dim(x, i, dim=axis))(x, idx_e, axis=1)
        g = _silu(x_sel @ w_gate)
        u = x_sel @ w_up
        y = (g * u) @ w_down
        r_sel = _sigmoid((lambda x, i, axis: torch.take_along_dim(x, i, dim=axis))(r, idx, axis=1))
        y = y * r_sel.reshape(B, C, 1)
        b_off = (torch.arange(B) * S).reshape(B, 1)
        flat_idx = (idx + b_off).reshape(B * C)
        zero = (x * 0.0).reshape(B * S, D)
        upd = _scatter_add(zero, flat_idx, y.reshape(B * C, D), axis=0)
        return x + upd.reshape(B, S, D)

    x = A_u
    xn = _layernorm(x, axis=-1)
    return x + _A_ref(xn, A_A_re, A_A_im, A_B_re, A_B_im, A_C_re, A_C_im, A_log_dt, A_Dskip) + _B_ref(xn, B_w_r, B_w_gate, B_w_up, B_w_down)
```

```python
import re

TRANS = ("v_exp_f32", "v_log_f32", "v_rcp_f32", "v_rsq_f32", "v_sqrt_f32", "v_sin_f32", "v_cos_f32",
         "v_exp_f16", "v_log_f16", "v_rcp_f16", "v_rsq_f16", "v_sqrt_f16", "v_sin_f16", "v_cos_f16",
         "v_rcp_iflag_f32")

_reg_re = re.compile(r"^(-|\|)?(abs\()?([vsa])(\d+|\[(\d+):(\d+)\])\)?\|?$")


def parse_reg(tok):
    tok = tok.strip()
    if tok in ("vcc",):
        return {("vcc", 0), ("vcc", 1)}
    if tok == "vcc_lo":
        return {("vcc", 0)}
    if tok == "vcc_hi":
        return {("vcc", 1)}
    if tok == "exec":
        return {("exec", 0)}
    if tok == "m0":
        return {("m0", 0)}
    m = _reg_re.match(tok)
    if not m:
        return set()
    k = m.group(3)
    if m.group(5) is not None:
        return {(k, i) for i in range(int(m.group(5)), int(m.group(6)) + 1)}
    return {(k, int(m.group(4)))}


def split_ops(s):
    out, depth, cur = [], 0, ""
    for ch in s:
        if ch in "[(":
            depth += 1
        if ch in "])":
            depth -= 1
        if ch == "," and depth == 0:
            out.append(cur.strip())
            cur = ""
        else:
            cur += ch
    if cur.strip():
        out.append(cur.strip())
    return out


class Ins:
    __slots__ = ("text", "op", "kind", "defs", "uses", "srcc", "passes", "dpp", "store_data", "ws", "trans", "dot", "ab", "lanesel")

    def __init__(self, text):
        self.text = text
        body = text.split(";")[0].strip()
        parts = body.split(None, 1)
        op = parts[0]
        rest = parts[1] if len(parts) > 1 else ""
        self.op = op
        ops = split_ops(rest)
        toks = []
        mods = ""
        for i, o in enumerate(ops):
            sp = o.split(None, 1)
            toks.append(sp[0] if sp else "")
            if len(sp) > 1:
                mods += " " + sp[1]
        regs = [parse_reg(t) for t in toks]
        self.defs, self.uses = set(), set()
        self.srcc = set()
        self.ab = set()
        self.passes = 0
        self.dpp = ("_dpp" in op) or ("quad_perm" in mods) or ("row_" in mods) or ("wave_" in mods)
        self.store_data = set()
        self.ws = 1
        self.trans = any(op.startswith(t) for t in TRANS)
        self.dot = op.startswith("v_dot")
        self.lanesel = set()
        if op == "s_nop":
            self.kind = "nop"
            self.ws = int(toks[0], 0) + 1
        elif op.startswith("v_mfma"):
            self.kind = "mfma"
            self.defs = regs[0]
            self.ab = regs[1] | regs[2]
            self.srcc = regs[3]
            self.uses = self.ab | self.srcc
            self.passes = 8 if "32x32" in op else 4
        elif op.startswith("v_"):
            self.kind = "valu"
            if op.startswith("v_cmp"):
                self.defs = regs[0]
                for r in regs[1:]:
                    self.uses |= r
                if op.startswith("v_cmpx"):
                    self.defs = self.defs | {("exec", 0)}
            elif op.startswith("v_permlane") and "swap" in op:
                self.defs = regs[0] | regs[1]
                self.uses = regs[0] | regs[1]
            elif "_co_" in op:
                self.defs = regs[0] | regs[1]
                for r in regs[2:]:
                    self.uses |= r
            else:
                self.defs = regs[0]
                for r in regs[1:]:
                    self.uses |= r
                if op.startswith(("v_fmac", "v_dot2c", "v_pk_fmac", "v_writelane")) or self.dpp:
                    self.uses |= regs[0]
                if op.startswith("v_cndmask") and len(toks) == 3:
                    self.uses |= {("vcc", 0), ("vcc", 1)}
                if op.startswith(("v_readlane", "v_writelane")):
                    self.lanesel = regs[2]
        elif op.startswith(("buffer_", "global_", "flat_")):
            self.kind = "vmem"
            is_store = "store" in op or "atomic" in op
            lds = (" lds" in (" " + mods + " ")) or "load_lds" in op
            if is_store or lds or op in ("buffer_wbl2", "buffer_inv"):
                for r in regs:
                    self.uses |= r
                if is_store and ("x4" in op or "x3" in op):
                    self.store_data = regs[0] if op.startswith("buffer_") else regs[1]
            else:
                self.defs = regs[0]
                for r in regs[1:]:
                    self.uses |= r
        elif op.startswith("ds_"):
            self.kind = "ds"
            if op.startswith(("ds_read", "ds_bpermute", "ds_permute", "ds_swizzle")) or "_rtn" in op:
                self.defs = regs[0]
                for r in regs[1:]:
                    self.uses |= r
            else:
                for r in regs:
                    self.uses |= r
        elif op.startswith("s_"):
            self.kind = "salu"
            if op.startswith(("s_cmp", "s_cbranch", "s_branch", "s_waitcnt", "s_barrier", "s_endpgm", "s_sleep", "s_setprio", "s_bitcmp")):
                for r in regs:
                    self.uses |= r
            else:
                self.defs = regs[0] if regs else set()
                for r in regs[1:]:
                    self.uses |= r
                if "saveexec" in op:
                    self.defs = self.defs | {("exec", 0)}
        else:
            self.kind = "other"


def vonly(s):
    return {r for r in s if r[0] in ("v", "a")}


def sonly(s):
    return {r for r in s if r[0] in ("s", "vcc")}


def required(p, c):
    need = 0
    pv = p.kind == "valu"
    if pv:
        dv = vonly(p.defs)
        ds = sonly(p.defs)
        if c.kind == "valu":
            if c.dpp and (dv & c.uses):
                need = max(need, 2)
            if ds & c.uses:
                need = max(need, 2)
            if ds & c.lanesel:
                need = max(need, 4)
            if c.op.startswith(("v_readlane", "v_readfirstlane")) and (dv & c.uses):
                need = max(need, 1)
            if c.op.startswith("v_permlane") and (dv & c.uses):
                need = max(need, 2)
            if ("exec", 0) in p.defs:
                need = max(need, 5 if c.dpp else 4)
        if p.trans and (dv & c.uses) and not (c.kind == "valu" and c.trans):
            need = max(need, 1)
        if p.dot and (dv & (c.uses | c.defs)) and not (c.op == p.op):
            need = max(need, 3)
        if p.dot and c.op == p.op and (dv & c.uses):
            need = max(need, 3)
        if c.kind == "vmem" and (ds & c.uses):
            need = max(need, 5)
        if c.kind == "mfma" and (dv & c.uses):
            need = max(need, 2)
        if c.kind == "mfma" and ("exec", 0) in p.defs:
            need = max(need, 4)
        if ("op_sel:" in p.text and p.op.startswith("v_cvt")) or "dst_sel" in p.text:
            if dv & (c.uses | c.defs):
                need = max(need, 1)
    if p.kind == "mfma":
        big = 8 if p.passes == 4 else 12
        d = p.defs
        if c.kind == "mfma":
            if d & c.ab:
                need = max(need, big)
            if d & c.srcc:
                if not (c.srcc == d and c.passes == p.passes):
                    need = max(need, 6 if p.passes == 4 else 10)
            elif d & c.defs:
                need = max(need, big)
        elif c.kind in ("valu", "vmem", "ds"):
            if d & (c.uses | c.defs):
                need = max(need, big)
        if c.kind == "valu" and (p.srcc & c.defs):
            need = max(need, 3 if p.passes == 4 else 7)
    if p.kind == "vmem" and p.store_data:
        if p.store_data & c.defs:
            need = max(need, 2 if c.kind == "valu" else 1)
    if p.kind == "salu" and ("m0", 0) in p.defs:
        if c.kind in ("vmem", "ds") and ("lds" in c.text or "addtid" in c.op):
            need = max(need, 1)
    return need


class Asm:
    def __init__(self):
        self.lines = []
        self.hist = []
        self.nops_inserted = 0

    def raw(self, text):
        self.lines.append(text)

    def label(self, name):
        self.lines.append(name + ":")

    def comment(self, t):
        self.lines.append("    ; " + t)

    def reset(self):
        self.hist = []

    def __call__(self, text):
        for t in text.strip().split("\n"):
            t = t.strip()
            if not t or t.startswith(";"):
                continue
            if t.endswith(":"):
                self.label(t[:-1])
                continue
            self.emit(t)

    def emit(self, text):
        c = Ins(text)
        dist = 0
        need_pad = 0
        for p in reversed(self.hist):
            r = required(p, c)
            if r > dist:
                need_pad = max(need_pad, r - dist)
            dist += p.ws
            if dist > 24:
                break
        while need_pad > 0:
            n = min(need_pad, 16)
            nop = Ins("s_nop %d" % (n - 1))
            self.lines.append("    s_nop %d" % (n - 1))
            self.hist.append(nop)
            self.nops_inserted += 1
            need_pad -= n
        self.lines.append("    " + text)
        self.hist.append(c)
        if len(self.hist) > 40:
            self.hist = self.hist[-40:]

    def text(self):
        return "\n".join(self.lines) + "\n"
```

```python
from gen1 import *

CH_STRIDE = 21248
UCOPY = 4160
KOFF = 16640
XCH = 2 * CH_STRIDE
K2_LDS = XCH + 16384

NEGL2E = "0xbfb8aa3b"


def srd(a, d, base, nbytes):
    a(f"""
    s_mov_b32 s{d}, s{base}
    s_and_b32 s{d+1}, s{base+1}, 0xffff
    s_mov_b32 s{d+2}, {nbytes}
    s_mov_b32 s{d+3}, 0x20000
    """)


def top2(a, k0, t1, t2, tmp, s1, s2):
    a(f"v_max_u32 v{t1}, v{k0}, v{k0+1}")
    a(f"v_min_u32 v{t2}, v{k0}, v{k0+1}")
    for k in range(k0 + 2, k0 + 8):
        a(f"v_min_u32 v{tmp}, v{t1}, v{k}")
        a(f"v_max_u32 v{t1}, v{t1}, v{k}")
        a(f"v_max_u32 v{t2}, v{t2}, v{tmp}")
    a(f"v_mov_b32 v{tmp}, v{t1}")
    dpp_reduce(a, "v_max_u32", [tmp])
    a(f"v_readlane_b32 s{s1}, v{tmp}, 63")
    a(f"v_cmp_eq_u32 vcc, s{s1}, v{t1}")
    a(f"v_cndmask_b32 v{tmp}, v{t1}, v{t2}, vcc")
    dpp_reduce(a, "v_max_u32", [tmp])
    a(f"v_readlane_b32 s{s2}, v{tmp}, 63")


def gen_k2(a):
    a.raw(".p2align 8")
    a.raw(".type k2_kernel,@function")
    a.label("k2_kernel")
    a.reset()
    a(f"""
    s_cmp_ge_u32 s2, 312
    s_cbranch_scc1 K2_END
    s_load_dwordx2 s[34:35], s[0:1], 128
    s_load_dwordx4 s[16:19], s[0:1], 88
    v_lshrrev_b32 v1, 6, v0
    v_and_b32 v2, 63, v0
    v_readfirstlane_b32 s3, v1
    s_cmp_ge_u32 s2, 256
    s_cbranch_scc1 K2_MOE
    """)
    a(f"""
    v_lshlrev_b32 v1, 4, v0
    s_lshl_b32 s4, s2, 13
    s_add_u32 s5, s4, {WS_UT}
    s_add_u32 s6, s4, {WS_KT}
    v_add_u32 v4, s5, v1
    v_add_u32 v5, 0x1000, v4
    v_add_u32 v6, s6, v1
    v_add_u32 v7, 0x1000, v6
    s_lshr_b32 s7, s3, 1
    s_and_b32 s8, s3, 1
    s_lshl_b32 s9, s2, 1
    s_add_u32 s9, s9, s7
    s_lshl_b32 s10, s9, 2
    s_add_u32 s10, s10, {WS_KS}
    s_waitcnt lgkmcnt(0)
    global_load_dwordx4 v[16:19], v4, s[34:35]
    global_load_dwordx4 v[20:23], v4, s[34:35] offset:-4
    global_load_dwordx4 v[24:27], v4, s[34:35] offset:-8
    global_load_dwordx4 v[28:31], v6, s[34:35]
    global_load_dwordx4 v[32:35], v5, s[34:35]
    global_load_dwordx4 v[36:39], v5, s[34:35] offset:-4
    global_load_dwordx4 v[40:43], v5, s[34:35] offset:-8
    global_load_dwordx4 v[44:47], v7, s[34:35]
    s_load_dword s11, s[34:35], s10
    """)
    a(f"""
    v_mov_b32 v48, 0
    v_mov_b32 v49, 0
    v_mov_b32 v50, 0
    v_mov_b32 v51, 0
    v_bfe_u32 v8, v0, 3, 1
    v_mul_u32_u24 v8, {CH_STRIDE}, v8
    v_bfe_u32 v9, v0, 1, 2
    v_mul_u32_u24 v9, {UCOPY}, v9
    v_and_b32 v10, 1, v0
    v_lshlrev_b32 v10, 4, v10
    v_add3_u32 v8, v8, v9, v10
    v_bfe_u32 v9, v0, 5, 1
    v_mul_u32_u24 v9, {CH_STRIDE}, v9
    v_and_b32 v10, 31, v0
    v_lshlrev_b32 v10, 4, v10
    v_add_u32 v9, v9, v10
    v_add_u32 v9, {KOFF+4096}, v9
    s_cmp_eq_u32 s3, 1
    s_cbranch_scc0 K2_NOKPAD
    ds_write_b128 v9, v[48:51]
    """)
    a.label("K2_NOKPAD")
    a.reset()
    a(f"""
    v_cmp_gt_u32 vcc, 16, v0
    s_and_saveexec_b64 s[12:13], vcc
    ds_write_b128 v8, v[48:51]
    s_mov_b64 exec, s[12:13]
    """)
    a(f"""
    v_and_b32 v8, 15, v2
    v_lshrrev_b32 v9, 4, v2
    v_sub_u32 v10, 15, v8
    v_and_b32 v11, 3, v10
    v_lshrrev_b32 v10, 2, v10
    v_mul_u32_u24 v12, {UCOPY}, v11
    v_lshlrev_b32 v11, 1, v9
    v_sub_u32 v11, v11, v10
    v_add_u32 v11, 4, v11
    v_lshl_add_u32 v12, v11, 3, v12
    s_mul_i32 s12, s7, {CH_STRIDE}
    s_lshl_b32 s13, s8, 8
    s_add_u32 s12, s12, s13
    v_add_u32 v12, s12, v12
    v_lshlrev_b32 v13, 4, v9
    v_lshlrev_b32 v11, 5, v8
    v_sub_u32 v13, v13, v11
    s_add_u32 s12, s12, {KOFF+480}
    v_add_u32 v13, s12, v13
    v_cmp_eq_u32 vcc, 0, v0
    v_add_u32 v14, 32, v1
    """)
    for c in range(2):
        q0, q2, q4, kk = 16 + 16 * c, 20 + 16 * c, 24 + 16 * c, 28 + 16 * c
        a(f"s_waitcnt vmcnt({5 - 4*c})")
        a(f"""
        v_cndmask_b32 v{q2}, v{q2}, 0, vcc
        v_cndmask_b32 v{q4}, v{q4}, 0, vcc
        v_cndmask_b32 v{q4+1}, v{q4+1}, 0, vcc
        """)
        for k in range(4):
            a(f"v_alignbyte_b32 v{52+k}, v{q0+k}, v{q2+k}, 2")
        for k in range(4):
            a(f"v_alignbyte_b32 v{56+k}, v{q2+k}, v{q4+k}, 2")
        base = c * CH_STRIDE
        a(f"""
        ds_write_b128 v14, v[{q0}:{q0+3}] offset:{base}
        ds_write_b128 v14, v[52:55] offset:{base+UCOPY}
        ds_write_b128 v14, v[{q2}:{q2+3}] offset:{base+2*UCOPY}
        ds_write_b128 v14, v[56:59] offset:{base+3*UCOPY}
        s_waitcnt vmcnt({4 - 4*c})
        ds_write_b128 v1, v[{kk}:{kk+3}] offset:{base+KOFF}
        """)
        if c == 0:
            a("s_nop 1")
    ACC = 144
    for i in range(32):
        a(f"v_mov_b32 v{ACC+i}, 0")
    a("s_waitcnt lgkmcnt(0)\ns_barrier")
    Ub = [16, 80]
    Kb = [48, 112]

    def reads(st, ri):
        r = []
        for n in range(8):
            r.append(f"ds_read_b64 v[{Ub[st]+4*n}:{Ub[st]+4*n+1}], v12 offset:{512*n+64*ri}")
            r.append(f"ds_read_b64 v[{Ub[st]+4*n+2}:{Ub[st]+4*n+3}], v12 offset:{512*n+64*ri+8}")
            r.append(f"ds_read_b128 v[{Kb[st]+4*n}:{Kb[st]+4*n+3}], v13 offset:{512*(7-n)+64*ri}")
        return r

    pairs = sorted([(q, m) for q in range(8) for m in range(8) if q + m <= 7], key=lambda t: (max(t), t))
    for r in reads(0, 0):
        a(r)
    a("s_waitcnt lgkmcnt(0)")
    for ri in range(4):
        st = ri & 1
        nxt = reads(st ^ 1, ri + 1) if ri < 3 else []
        for i, (q, m) in enumerate(pairs):
            ct = q + m
            a(f"v_mfma_f32_16x16x32_f16 v[{ACC+4*ct}:{ACC+4*ct+3}], v[{Ub[st]+4*q}:{Ub[st]+4*q+3}], v[{Kb[st]+4*m}:{Kb[st]+4*m+3}], v[{ACC+4*ct}:{ACC+4*ct+3}]")
            if i < len(nxt):
                a(nxt[i])
        if ri < 3:
            a("s_waitcnt lgkmcnt(0)")
    a(f"""
    s_lshl_b32 s12, s3, 12
    s_add_u32 s12, s12, {XCH}
    s_xor_b32 s13, s3, 1
    s_lshl_b32 s13, s13, 12
    s_add_u32 s13, s13, {XCH}
    v_lshlrev_b32 v4, 4, v2
    v_add_u32 v5, s12, v4
    v_add_u32 v6, s13, v4
    v_lshlrev_b32 v7, 5, v8
    v_lshl_add_u32 v7, v9, 3, v7
    s_lshl_b32 s14, s9, 12
    s_add_u32 s14, s14, {WS_YT}
    s_lshl_b32 s15, s8, 11
    s_add_u32 s14, s14, s15
    v_add_u32 v7, s14, v7
    s_cmp_eq_u32 s8, 0
    s_cbranch_scc0 K2_EPI1
    """)
    for hh in range(2):
        if hh == 1:
            a.label("K2_EPI1")
            a.reset()
            a("s_nop 7")
        own = range(4 * hh, 4 * hh + 4)
        oth = range(4 * (1 - hh), 4 * (1 - hh) + 4)
        for i, ct in enumerate(oth):
            a(f"ds_write_b128 v5, v[{ACC+4*ct}:{ACC+4*ct+3}] offset:{1024*i}")
        a("s_waitcnt lgkmcnt(0)\ns_barrier")
        for i in range(4):
            a(f"ds_read_b128 v[{16+4*i}:{19+4*i}], v6 offset:{1024*i}")
        for i, ct in enumerate(own):
            a(f"s_waitcnt lgkmcnt({3-i})")
            for r in range(4):
                a(f"v_add_f32 v{16+4*i+r}, v{16+4*i+r}, v{ACC+4*ct+r}")
            for r in range(4):
                a(f"v_mul_f32 v{16+4*i+r}, s11, v{16+4*i+r}")
            a(f"v_cvt_pk_bf16_f32 v{32+2*i}, v{16+4*i}, v{17+4*i}")
            a(f"v_cvt_pk_bf16_f32 v{33+2*i}, v{18+4*i}, v{19+4*i}")
            a(f"global_store_dwordx2 v7, v[{32+2*i}:{33+2*i}], s[34:35] offset:{512*i}")
        a("s_endpgm")
    a.label("K2_MOE")
    a.reset()
    a(f"""
    s_sub_u32 s4, s2, 256
    v_and_b32 v8, 15, v2
    v_lshrrev_b32 v9, 4, v2
    v_lshlrev_b32 v3, 5, v2
    v_add_u32 v3, {WS_KEY}, v3
    s_lshl_b32 s5, s3, 7
    v_lshl_add_u32 v4, v9, 3, s5
    v_mul_u32_u24 v4, 3584, v4
    v_lshl_add_u32 v4, v8, 2, v4
    s_lshl_b32 s6, s4, 6
    v_add_u32 v4, s6, v4
    """)
    for i in range(16):
        s, e2 = i >> 2, i & 3
        a(f"s_mov_b32 s{40+i}, {(32*s+2*e2)*3584}")
    a("s_waitcnt lgkmcnt(0)")
    srd(a, 20, 16, 512 * 3584)
    srd(a, 24, 18, 512 * 3584)
    a(f"""
    global_load_dwordx4 v[10:13], v3, s[34:35]
    global_load_dwordx4 v[14:17], v3, s[34:35] offset:16
    """)
    L = 32
    loads = []
    for s in range(4):
        for mat in range(2):
            for e in range(8):
                loads.append(f"buffer_load_dword v{L+mat*32+s*8+e}, v4, s[{20+4*mat}:{23+4*mat}], s{40+s*4+(e>>1)} offen offset:{3584*(e&1)}")
    for l in loads[:56]:
        a(l)
    a("s_waitcnt vmcnt(56)")
    top2(a, 10, 18, 19, 20, 7, 8)
    a(f"""
    s_and_b32 s9, s7, 0xffff
    s_sub_u32 s9, 2047, s9
    s_and_b32 s9, s9, 2047
    s_and_b32 s10, s8, 0xffff
    s_sub_u32 s10, 2047, s10
    s_and_b32 s10, s10, 2047
    v_and_b32 v21, 1, v2
    v_cmp_eq_u32 vcc, 1, v21
    v_mov_b32 v21, s9
    v_mov_b32 v22, s10
    v_cndmask_b32 v21, v21, v22, vcc
    v_lshlrev_b32 v21, 10, v21
    v_lshl_add_u32 v21, v9, 4, v21
    s_lshl_b32 s11, s3, 8
    s_add_u32 s11, s11, {WS_XN}
    v_add_u32 v21, s11, v21
    """)
    for s in range(4):
        a(f"global_load_dwordx4 v[{160+4*s}:{163+4*s}], v21, s[34:35] offset:{64*s}")
    for l in loads[56:]:
        a(l)
    a(f"""
    s_or_b32 s12, s4, s3
    s_cmp_eq_u32 s12, 0
    s_cbranch_scc0 K2_NOSEL
    s_lshr_b32 s12, s7, 16
    s_lshr_b32 s13, s8, 16
    v_mov_b32 v24, s12
    v_mov_b32 v25, s13
    """)
    for r in (24, 25):
        a(f"""
        v_bfe_i32 v26, v{r}, 15, 1
        v_not_b32 v26, v26
        v_or_b32 v26, 0x8000, v26
        v_xor_b32 v{r}, v{r}, v26
        v_lshlrev_b32 v{r}, 16, v{r}
        v_mul_f32 v{r}, {NEGL2E}, v{r}
        v_exp_f32 v{r}, v{r}
        v_add_f32 v{r}, 1.0, v{r}
        v_rcp_f32 v{r}, v{r}
        v_cvt_pk_bf16_f32 v{r}, v{r}, v{r}
        v_lshlrev_b32 v{r}, 16, v{r}
        """)
    a(f"""
    v_mov_b32 v22, s9
    v_mov_b32 v23, s10
    v_mov_b32 v26, {WS_SEL}
    v_cmp_eq_u32 vcc, 0, v2
    s_and_saveexec_b64 s[12:13], vcc
    global_store_dwordx4 v26, v[22:25], s[34:35]
    s_mov_b64 exec, s[12:13]
    """)
    a.label("K2_NOSEL")
    a.reset()
    a(f"""
    s_mov_b32 s12, 0x05040100
    s_mov_b32 s13, 0x07060302
    """)
    for i in range(16):
        a(f"v_mov_b32 v{176+i}, 0")
    a("s_waitcnt vmcnt(0)")
    P = 96
    for mat in range(2):
        for s in range(4):
            b = L + mat * 32 + s * 8
            p = P + mat * 32 + s * 8
            for k in range(4):
                a(f"v_perm_b32 v{p+k}, v{b+2*k+1}, v{b+2*k}, s12")
                a(f"v_perm_b32 v{p+4+k}, v{b+2*k+1}, v{b+2*k}, s13")
    for s in range(4):
        for mat in range(2):
            for half in range(2):
                acc = 176 + (mat * 2 + half) * 4
                p = P + mat * 32 + s * 8 + 4 * half
                a(f"v_mfma_f32_16x16x32_bf16 v[{acc}:{acc+3}], v[{160+4*s}:{163+4*s}], v[{p}:{p+3}], v[{acc}:{acc+3}]")
    a(f"""
    s_lshl_b32 s12, s3, 9
    v_lshl_add_u32 v24, v8, 3, s12
    """)
    for j in range(4):
        a(f"ds_write_b64 v24, v[{176+4*j}:{177+4*j}] offset:{128*j}")
    a(f"""
    s_waitcnt lgkmcnt(0)
    s_barrier
    s_cmp_eq_u32 s3, 0
    s_cbranch_scc0 K2_END
    v_lshrrev_b32 v24, 5, v2
    v_and_b32 v25, 31, v2
    v_and_b32 v26, 1, v25
    v_lshrrev_b32 v27, 1, v25
    v_lshlrev_b32 v28, 7, v26
    v_lshl_add_u32 v28, v27, 3, v28
    v_lshl_add_u32 v28, v24, 2, v28
    """)
    for w in range(4):
        a(f"ds_read_b32 v{32+w}, v28 offset:{512*w}")
        a(f"ds_read_b32 v{36+w}, v28 offset:{512*w+256}")
    a(f"""
    s_waitcnt lgkmcnt(0)
    v_add_f32 v32, v32, v33
    v_add_f32 v34, v34, v35
    v_add_f32 v36, v36, v37
    v_add_f32 v38, v38, v39
    v_add_f32 v32, v32, v34
    v_add_f32 v36, v36, v38
    v_cvt_pk_bf16_f32 v32, v32, v36
    v_and_b32 v36, 0xffff0000, v32
    v_lshlrev_b32 v32, 16, v32
    v_mul_f32 v33, {NEGL2E}, v32
    v_exp_f32 v33, v33
    v_add_f32 v33, 1.0, v33
    v_rcp_f32 v33, v33
    v_mul_f32 v32, v32, v33
    v_cvt_pk_bf16_f32 v32, v32, v32
    v_lshlrev_b32 v32, 16, v32
    v_mul_f32 v32, v32, v36
    v_cvt_pk_bf16_f32 v32, v32, v32
    v_mul_u32_u24 v24, 3584, v24
    v_lshl_add_u32 v24, v25, 1, v24
    s_add_u32 s6, s6, {WS_H}
    v_add_u32 v24, s6, v24
    global_store_short v24, v32, s[34:35]
    """)
    a.label("K2_END")
    a("s_endpgm")


K3_RS = 136
K3_LDS = 64 * K3_RS + 64


def final_pair(a, out, y0, y1, xw, nw, d0, d1, t):
    a(f"""
    v_lshlrev_b32 v{t}, 16, v{nw}
    v_and_b32 v{t+1}, 0xffff0000, v{nw}
    v_mul_f32 v{t+2}, v{t}, v{d0}
    v_mul_f32 v{t+3}, v{t+1}, v{d1}
    v_cvt_pk_bf16_f32 v{t+2}, v{t+2}, v{t+3}
    v_and_b32 v{t+3}, 0xffff0000, v{t+2}
    v_lshlrev_b32 v{t+2}, 16, v{t+2}
    v_add_f32 v{t+2}, v{t+2}, v{y0}
    v_add_f32 v{t+3}, v{t+3}, v{y1}
    v_cvt_pk_bf16_f32 v{t+2}, v{t+2}, v{t+3}
    v_and_b32 v{t+3}, 0xffff0000, v{t+2}
    v_lshlrev_b32 v{t+2}, 16, v{t+2}
    v_lshlrev_b32 v{t+4}, 16, v{xw}
    v_and_b32 v{t+5}, 0xffff0000, v{xw}
    v_add_f32 v{t+2}, v{t+2}, v{t+4}
    v_add_f32 v{t+3}, v{t+3}, v{t+5}
    v_cvt_pk_bf16_f32 v{t+2}, v{t+2}, v{t+3}
    v_and_b32 v{t+3}, 0xffff0000, v{t+2}
    v_lshlrev_b32 v{t+2}, 16, v{t+2}
    v_add_f32 v{t+2}, v{t+2}, v{t}
    v_add_f32 v{t+3}, v{t+3}, v{t+1}
    v_cvt_pk_bf16_f32 v{out}, v{t+2}, v{t+3}
    """)


def gen_k3(a):
    a.raw(".p2align 8")
    a.raw(".type k3_kernel,@function")
    a.label("k3_kernel")
    a.reset()
    a(f"""
    s_cmp_ge_u32 s2, 272
    s_cbranch_scc1 K3_END
    s_load_dwordx2 s[34:35], s[0:1], 128
    s_load_dwordx2 s[16:17], s[0:1], 0
    s_load_dwordx2 s[18:19], s[0:1], 64
    s_load_dwordx4 s[20:23], s[0:1], 104
    v_lshrrev_b32 v1, 6, v0
    v_and_b32 v2, 63, v0
    v_readfirstlane_b32 s3, v1
    s_waitcnt lgkmcnt(0)
    s_add_u32 s36, s34, {WS_SEL}
    s_addc_u32 s37, s35, 0
    s_load_dwordx4 s[24:27], s[36:37], 0
    s_cmp_ge_u32 s2, 256
    s_cbranch_scc1 K3_DOWN
    s_lshr_b32 s4, s2, 3
    s_and_b32 s5, s2, 7
    v_lshrrev_b32 v3, 2, v0
    v_and_b32 v4, 3, v0
    s_lshl_b32 s6, s5, 18
    s_lshl_b32 s7, s4, 7
    s_add_u32 s6, s6, s7
    s_add_u32 s6, s6, {WS_YT}
    v_lshlrev_b32 v5, 12, v3
    v_lshl_add_u32 v5, v4, 5, v5
    v_add_u32 v5, s6, v5
    global_load_dwordx4 v[16:19], v5, s[34:35]
    global_load_dwordx4 v[20:23], v5, s[34:35] offset:16
    v_lshrrev_b32 v6, 3, v0
    v_and_b32 v7, 7, v0
    s_lshl_b32 s8, s4, 16
    s_lshl_b32 s9, s5, 7
    s_add_u32 s8, s8, s9
    v_lshlrev_b32 v8, 10, v6
    v_lshl_add_u32 v8, v7, 4, v8
    v_add_u32 v8, s8, v8
    v_add_u32 v9, 0x8000, v8
    v_add_u32 v10, {WS_XN}, v8
    v_add_u32 v11, {WS_XN}, v9
    v_lshl_add_u32 v12, v7, 4, s9
    global_load_dwordx4 v[24:27], v8, s[16:17]
    global_load_dwordx4 v[28:31], v9, s[16:17]
    global_load_dwordx4 v[32:35], v10, s[34:35]
    global_load_dwordx4 v[36:39], v11, s[34:35]
    global_load_dwordx4 v[40:43], v12, s[18:19]
    v_mul_u32_u24 v13, {K3_RS}, v3
    v_lshl_add_u32 v13, v4, 5, v13
    v_mul_u32_u24 v14, {8*K3_RS}, v7
    v_lshl_add_u32 v14, v6, 1, v14
    s_waitcnt vmcnt(5)
    ds_write_b64 v13, v[16:17]
    ds_write_b64 v13, v[18:19] offset:8
    ds_write_b64 v13, v[20:21] offset:16
    ds_write_b64 v13, v[22:23] offset:24
    s_waitcnt lgkmcnt(0)
    s_barrier
    """)
    for hf in range(2):
        for e in range(8):
            a(f"ds_read_u16_d16_hi v{48+8*hf+e}, v14 offset:{e*K3_RS+64*hf}")
    a("s_waitcnt vmcnt(0)")
    for k in range(4):
        a(f"v_lshlrev_b32 v{64+2*k}, 16, v{40+k}")
        a(f"v_and_b32 v{65+2*k}, 0xffff0000, v{40+k}")
    a("s_waitcnt lgkmcnt(0)")
    a(f"""
    s_lshl_b32 s10, s4, 6
    v_add_u32 v15, s10, v6
    """)
    for hf in range(2):
        for k in range(4):
            final_pair(a, 80 + 4 * hf + k, 48 + 8 * hf + 2 * k, 49 + 8 * hf + 2 * k, 24 + 4 * hf + k, 32 + 4 * hf + k, 64 + 2 * k, 65 + 2 * k, 72)
        a(f"""
        v_cmp_ne_u32 vcc, s24, v15
        v_cmp_ne_u32 s[12:13], s25, v15
        s_and_b64 vcc, vcc, s[12:13]
        s_and_saveexec_b64 s[12:13], vcc
        global_store_dwordx4 v{8+hf}, v[{80+4*hf}:{83+4*hf}], s[22:23]
        s_mov_b64 exec, s[12:13]
        v_add_u32 v15, 32, v15
        """)
    a("s_endpgm")
    a.label("K3_DOWN")
    a.reset()
    a(f"""
    s_sub_u32 s4, s2, 256
    v_and_b32 v8, 15, v2
    v_lshrrev_b32 v9, 4, v2
    s_mul_i32 s5, s3, 448
    v_lshl_add_u32 v4, v9, 3, s5
    v_lshlrev_b32 v5, 1, v4
    v_lshlrev_b32 v4, 10, v4
    v_lshl_add_u32 v4, v8, 2, v4
    s_lshl_b32 s6, s4, 6
    v_add_u32 v4, s6, v4
    v_and_b32 v6, 1, v2
    v_mul_u32_u24 v6, 3584, v6
    v_add_u32 v5, v5, v6
    v_add_u32 v5, {WS_H}, v5
    s_mov_b32 s12, 0x05040100
    s_mov_b32 s13, 0x07060302
    """)
    srd(a, 28, 20, 1792 * 1024)
    for i in range(8):
        a(f"v_mov_b32 v{16+i}, 0")
    L, P, A = 32, 96, 160
    for part in range(2):
        for s in range(7):
            a(f"global_load_dwordx4 v[{A+4*s}:{A+3+4*s}], v5, s[34:35] offset:{64*(7*part+s)}")
        for s in range(7):
            for e in range(8):
                if e % 4 == 0:
                    a(f"s_mov_b32 s14, {(32*(7*part+s)+e)*1024}")
                a(f"buffer_load_dword v{L+8*s+e}, v4, s[28:31], s14 offen offset:{1024*(e&3)}")
        a("s_waitcnt vmcnt(0)")
        for s in range(7):
            b, p = L + 8 * s, P + 8 * s
            for k in range(4):
                a(f"v_perm_b32 v{p+k}, v{b+2*k+1}, v{b+2*k}, s12")
                a(f"v_perm_b32 v{p+4+k}, v{b+2*k+1}, v{b+2*k}, s13")
        for s in range(7):
            for half in range(2):
                p = P + 8 * s + 4 * half
                a(f"v_mfma_f32_16x16x32_bf16 v[{16+4*half}:{19+4*half}], v[{A+4*s}:{A+3+4*s}], v[{p}:{p+3}], v[{16+4*half}:{19+4*half}]")
        a("s_nop 7")
    a(f"""
    s_lshl_b32 s14, s3, 8
    v_lshl_add_u32 v24, v8, 3, s14
    ds_write_b64 v24, v[16:17]
    ds_write_b64 v24, v[20:21] offset:128
    s_waitcnt lgkmcnt(0)
    s_barrier
    s_cmp_eq_u32 s3, 0
    s_cbranch_scc0 K3_END
    v_lshrrev_b32 v24, 5, v2
    v_and_b32 v25, 31, v2
    v_and_b32 v26, 1, v25
    v_lshrrev_b32 v27, 1, v25
    v_lshlrev_b32 v28, 7, v26
    v_lshl_add_u32 v28, v27, 3, v28
    v_lshl_add_u32 v28, v24, 2, v28
    """)
    for w in range(4):
        a(f"ds_read_b32 v{32+w}, v28 offset:{256*w}")
    a(f"""
    v_cmp_eq_u32 vcc, 1, v24
    v_mov_b32 v36, s24
    v_mov_b32 v37, s25
    v_cndmask_b32 v36, v36, v37, vcc
    v_and_b32 v36, 0x7ff, v36
    v_mov_b32 v38, s26
    v_mov_b32 v37, s27
    v_cndmask_b32 v38, v38, v37, vcc
    s_lshl_b32 s14, s4, 5
    v_add_u32 v25, s14, v25
    v_lshlrev_b32 v39, 1, v25
    v_lshl_add_u32 v40, v36, 10, v39
    v_add_u32 v41, {WS_XN}, v40
    v_lshlrev_b32 v42, 12, v25
    v_lshl_add_u32 v42, v36, 1, v42
    v_add_u32 v42, {WS_YT}, v42
    global_load_ushort v44, v40, s[16:17]
    global_load_ushort v45, v41, s[34:35]
    global_load_ushort v46, v42, s[34:35]
    global_load_ushort v47, v39, s[18:19]
    s_waitcnt lgkmcnt(0)
    v_add_f32 v32, v32, v33
    v_add_f32 v34, v34, v35
    v_add_f32 v32, v32, v34
    v_cvt_pk_bf16_f32 v32, v32, v32
    v_lshlrev_b32 v32, 16, v32
    v_mul_f32 v32, v32, v38
    v_cvt_pk_bf16_f32 v32, v32, v32
    v_lshlrev_b32 v32, 16, v32
    s_waitcnt vmcnt(0)
    v_lshlrev_b32 v44, 16, v44
    v_lshlrev_b32 v45, 16, v45
    v_lshlrev_b32 v46, 16, v46
    v_lshlrev_b32 v47, 16, v47
    v_add_f32 v32, v32, v45
    v_mul_f32 v47, v47, v45
    v_cvt_pk_bf16_f32 v32, v32, v47
    v_and_b32 v47, 0xffff0000, v32
    v_lshlrev_b32 v32, 16, v32
    v_add_f32 v47, v47, v46
    v_cvt_pk_bf16_f32 v47, v47, v47
    v_lshlrev_b32 v47, 16, v47
    v_add_f32 v47, v47, v44
    v_cvt_pk_bf16_f32 v47, v47, v47
    v_lshlrev_b32 v47, 16, v47
    v_add_f32 v47, v47, v32
    v_cvt_pk_bf16_f32 v47, v47, v47
    global_store_short v40, v47, s[22:23]
    """)
    a.label("K3_END")
    a("s_endpgm")


HDR = [f"; @launch kernel=k2_kernel grid=(312,1,1) block=(256,1,1) lds={K2_LDS}",
       f"; @launch kernel=k3_kernel grid=(272,1,1) block=(256,1,1) lds={K3_LDS}"]
KERNELS = [("k2_kernel", 192), ("k3_kernel", 192)]
GENS = [gen_k2, gen_k3]
```

```python
import sys
from asmlib import Asm

NAME = "parallel_sum__ssm_conv_s4__moe_arch_mod__prompt"
MB = 1 << 20
WS_UT = 1 * MB
WS_KT = 3 * MB
WS_YT = 5 * MB
WS_XN = 7 * MB
WS_KS = 9 * MB
WS_KEY = 9 * MB + 0x1000
WS_H = 9 * MB + 0x2000
WS_SEL = 9 * MB + 0x4000

LOG2E = "0x3fb8aa3b"


def cmul(a, R, X, Y, T):
    a(f"v_pk_mul_f32 v[{T}:{T+1}], v[{X}:{X+1}], v[{Y}:{Y+1}] op_sel:[0,0] op_sel_hi:[0,1]")
    a(f"v_pk_fma_f32 v[{R}:{R+1}], v[{X}:{X+1}], v[{Y}:{Y+1}], v[{T}:{T+1}] op_sel:[1,1,0] op_sel_hi:[1,0,1] neg_lo:[1,0,0]")


def dpp_reduce(a, op, regs):
    steps = ["quad_perm:[1,0,3,2] row_mask:0xf bank_mask:0xf",
             "quad_perm:[2,3,0,1] row_mask:0xf bank_mask:0xf",
             "row_half_mirror row_mask:0xf bank_mask:0xf",
             "row_mirror row_mask:0xf bank_mask:0xf",
             "row_bcast:15 row_mask:0xa bank_mask:0xf",
             "row_bcast:31 row_mask:0xc bank_mask:0xf"]
    for s in steps:
        for r in regs:
            a(f"{op}_dpp v{r}, v{r}, v{r} {s}")


def anchor(a, P, vA, vB, lf, t0, t1):
    if lf is None:
        a(f"v_exp_f32 v{t0}, v{vA}")
        a(f"v_fract_f32 v{t1}, v{vB}")
    else:
        a(f"v_mul_f32 v{t0}, {lf}, v{vA}")
        a(f"v_mul_f32 v{t1}, {lf}, v{vB}")
        a(f"v_exp_f32 v{t0}, v{t0}")
        a(f"v_fract_f32 v{t1}, v{t1}")
    a(f"v_cos_f32 v{P}, v{t1}")
    a(f"v_sin_f32 v{P+1}, v{t1}")
    a(f"v_mul_f32 v{P}, v{t0}, v{P}")
    a(f"v_mul_f32 v{P+1}, v{t0}, v{P+1}")


K1_LDS_AB = 34816
K1_ROW = 544
K1_LN = 69632
K1_LNROW = 1088
K1_TAB = 78336
K1_KEY = 81408
K1_LDS = 81920


def gen_k1(a):
    a.raw(".p2align 8")
    a.raw(".type k1_kernel,@function")
    a.label("k1_kernel")
    a.reset()
    a(f"""
    s_cmp_ge_u32 s2, 256
    s_cbranch_scc1 K1_END
    s_load_dwordx16 s[16:31], s[0:1], 0
    s_load_dwordx2 s[32:33], s[0:1], 80
    s_load_dwordx2 s[34:35], s[0:1], 128
    v_lshrrev_b32 v1, 6, v0
    v_and_b32 v2, 63, v0
    v_readfirstlane_b32 s3, v1
    s_and_b32 s4, s2, 7
    s_lshl_b32 s4, s4, 5
    s_lshr_b32 s5, s2, 3
    s_add_u32 s4, s4, s5
    s_lshl_b32 s5, s4, 3
    s_add_u32 s5, s5, s3
    v_lshlrev_b32 v3, 4, v2
    s_lshl_b32 s6, s5, 10
    v_add_u32 v4, s6, v3
    s_lshr_b32 s7, s3, 2
    s_lshl_b32 s8, s2, 1
    s_add_u32 s8, s8, s7
    s_lshl_b32 s9, s8, 8
    v_lshlrev_b32 v5, 2, v2
    v_add_u32 v5, s9, v5
    s_lshl_b32 s11, s2, 2
    s_waitcnt lgkmcnt(0)
    global_load_dwordx4 v[8:11], v4, s[16:17]
    global_load_dwordx4 v[12:15], v3, s[32:33]
    global_load_dword v16, v5, s[18:19]
    global_load_dword v17, v5, s[20:21]
    global_load_dword v18, v5, s[22:23]
    global_load_dword v19, v5, s[24:25]
    global_load_dword v20, v5, s[26:27]
    global_load_dword v21, v5, s[28:29]
    s_load_dword s10, s[30:31], s11
    """)
    a(f"""
    v_and_b32 v22, 0xff, v0
    v_lshlrev_b32 v22, 3, v22
    v_sub_u32 v22, 0x7ff, v22
    v_lshrrev_b32 v23, 8, v0
    v_mul_u32_u24 v23, 1536, v23
    v_add_u32 v23, {K1_TAB}, v23
    s_movk_i32 s12, 128
    """)
    for e in range(0, 8, 2):
        a(f"""
        v_subrev_u32 v24, {e}, v22
        v_subrev_u32 v25, {e+1}, v22
        v_cvt_f32_u32 v26, v24
        v_cvt_f32_u32 v27, v25
        v_cvt_pk_bf16_f32 v26, v26, v27
        v_and_b32 v28, 0xffff, v26
        v_lshrrev_b32 v29, 16, v26
        v_subrev_u32 v28, {0x4300-128}, v28
        v_subrev_u32 v29, {0x4300-128}, v29
        v_med3_i32 v28, v28, v24, s12
        v_med3_i32 v29, v29, v25, s12
        v_lshl_add_u32 v{100+e}, v28, 1, v23
        v_lshl_add_u32 v{101+e}, v29, 1, v23
        """)
    a(f"""
    s_and_b32 s13, s3, 1
    s_lshr_b32 s14, s3, 1
    s_and_b32 s14, s14, 1
    v_and_b32 v24, 15, v2
    s_lshl_b32 s15, s13, 4
    v_add_u32 v24, s15, v24
    v_lshrrev_b32 v25, 4, v2
    s_mul_i32 s36, s7, 1536
    s_add_u32 s36, s36, {K1_TAB}
    v_cmp_eq_u32 s[38:39], 1, v25
    v_cmp_eq_u32 s[40:41], 2, v25
    v_cmp_eq_u32 s[42:43], 3, v25
    v_cmp_eq_u32 s[44:45], 0, v25
    v_cmp_eq_u32 s[46:47], 16, v2
    s_cmp_eq_u32 s14, 0
    s_cbranch_scc0 K1_TA_RT1
    """)
    a(f"""
    v_mov_b32 v26, 3
    v_cndmask_b32 v26, v26, 2, s[40:41]
    v_cndmask_b32 v26, v26, 1, s[42:43]
    v_lshlrev_b32 v26, v26, v24
    """)
    for r in range(4):
        b0, b1, b2, b3 = r, 4 + r, 256 + r, 384 + (r & 1) + 64 * (r >> 1)
        a(f"""
        v_mov_b32 v27, {b0}
        v_cndmask_b32 v27, v27, {b1}, s[38:39]
        v_mov_b32 v28, {b2}
        v_cndmask_b32 v27, v27, v28, s[40:41]
        v_mov_b32 v28, {b3}
        v_cndmask_b32 v27, v27, v28, s[42:43]
        v_add_u32 v27, v27, v26
        v_lshlrev_b32 v27, 1, v27
        v_add_u32 v{110+r}, s36, v27
        """)
    a("s_branch K1_TA_DONE")
    a.label("K1_TA_RT1")
    a.reset()
    for r in range(4):
        a(f"""
        v_mov_b32 v27, 700
        v_add_u32 v28, {512+32*r}, v24
        v_cndmask_b32 v27, v27, v28, s[44:45]
        """)
        if r == 0:
            a(f"""
            s_cmp_eq_u32 s13, 0
            s_cselect_b64 s[48:49], s[46:47], 0
            v_mov_b32 v28, 640
            v_cndmask_b32 v27, v27, v28, s[48:49]
            """)
        a(f"""
        v_lshlrev_b32 v27, 1, v27
        v_add_u32 v{110+r}, s36, v27
        """)
    a.label("K1_TA_DONE")
    a.reset()
    a("s_nop 4")
    a(f"""
    v_mov_b32 v30, 0x3b000000
    s_waitcnt vmcnt(6)
    v_lshlrev_b32 v32, 16, v8
    v_and_b32 v33, 0xffff0000, v8
    v_lshlrev_b32 v34, 16, v9
    v_and_b32 v35, 0xffff0000, v9
    v_lshlrev_b32 v36, 16, v10
    v_and_b32 v37, 0xffff0000, v10
    v_lshlrev_b32 v38, 16, v11
    v_and_b32 v39, 0xffff0000, v11
    v_readfirstlane_b32 s50, v32
    """)
    for k in range(8):
        a(f"v_subrev_f32 v{40+k}, s50, v{32+k}")
    a(f"""
    v_pk_add_f32 v[48:49], v[32:33], v[34:35]
    v_pk_add_f32 v[50:51], v[36:37], v[38:39]
    v_pk_mul_f32 v[52:53], v[40:41], v[40:41]
    v_pk_mul_f32 v[54:55], v[42:43], v[42:43]
    v_pk_add_f32 v[48:49], v[48:49], v[50:51]
    v_pk_fma_f32 v[52:53], v[44:45], v[44:45], v[52:53]
    v_pk_fma_f32 v[54:55], v[46:47], v[46:47], v[54:55]
    v_add_f32 v48, v48, v49
    v_pk_add_f32 v[52:53], v[52:53], v[54:55]
    v_add_f32 v52, v52, v53
    """)
    dpp_reduce(a, "v_add_f32", [48, 52])
    a(f"""
    v_readlane_b32 s51, v48, 63
    v_readlane_b32 s52, v52, 63
    v_mul_f32 v48, s51, v30
    v_mul_f32 v49, s52, v30
    v_subrev_f32 v50, s50, v48
    v_fma_f32 v49, -v50, v50, v49
    v_max_f32 v49, 0, v49
    v_cvt_pk_bf16_f32 v48, v48, v49
    v_and_b32 v49, 0xffff0000, v48
    v_lshlrev_b32 v48, 16, v48
    v_add_f32 v49, 0x3727c5ac, v49
    v_cvt_pk_bf16_f32 v49, v49, v49
    v_lshlrev_b32 v49, 16, v49
    v_sqrt_f32 v49, v49
    v_cvt_pk_bf16_f32 v49, v49, v49
    v_lshlrev_b32 v49, 16, v49
    v_rcp_f32 v50, v49
    v_mul_f32 v52, 0x45000000, v50
    """)
    for k in range(8):
        a(f"v_sub_f32 v{40+k}, v{32+k}, v48")
    for k in range(4):
        a(f"v_cvt_pk_bf16_f32 v{54+k}, v{40+2*k}, v{41+2*k}")
    for k in range(4):
        a(f"v_lshlrev_b32 v{40+2*k}, 16, v{54+k}")
        a(f"v_and_b32 v{41+2*k}, 0xffff0000, v{54+k}")
    for k in range(8):
        a(f"v_mul_f32 v{32+k}, v{40+k}, v50")
    for k in range(4):
        a(f"v_cvt_pk_bf16_f32 v{60+k}, v{32+2*k}, v{33+2*k}")
    a(f"""
    v_add_u32 v6, {WS_XN}, v4
    global_store_dwordx4 v6, v[60:63], s[34:35]
    v_mov_b32 v58, 0
    """)
    for k in range(4):
        a(f"v_dot2_f32_bf16 v58, v{60+k}, v{12+k}, v58")
    for k in range(4):
        a(f"v_lshlrev_b32 v{32+2*k}, 16, v{60+k}")
        a(f"v_and_b32 v{33+2*k}, 0xffff0000, v{60+k}")
    for k in range(8):
        a(f"v_ldexp_f32 v{32+k}, v{32+k}, 11")
    for k in range(4):
        a(f"v_cvt_pk_f16_f32 v{64+k}, v{32+2*k}, v{33+2*k}")
    a(f"""
    s_mul_i32 s53, s3, {K1_LNROW}
    s_add_u32 s53, s53, {K1_LN}
    v_add_u32 v7, s53, v3
    ds_write_b128 v7, v[64:67]
    """)
    dpp_reduce(a, "v_add_f32", [58])
    a(f"""
    v_cvt_pk_bf16_f32 v58, v58, v58
    v_and_b32 v58, 0xffff, v58
    v_bfe_i32 v59, v58, 15, 1
    v_or_b32 v59, 0x8000, v59
    v_xor_b32 v58, v58, v59
    v_and_b32 v58, 0xffff, v58
    v_lshlrev_b32 v58, 16, v58
    s_sub_u32 s54, 2047, s5
    v_or_b32 v58, s54, v58
    v_readlane_b32 s55, v58, 63
    s_lshl_b32 s56, s3, 2
    s_add_u32 s56, s56, {K1_KEY}
    v_mov_b32 v59, s56
    v_mov_b32 v58, s55
    ds_write_b32 v59, v58
    s_waitcnt lgkmcnt(0)
    s_barrier
    """)
    a(f"""
    v_bfe_u32 v24, v2, 2, 2
    v_mul_u32_u24 v24, {K1_LNROW}, v24
    v_and_b32 v25, 3, v2
    v_lshlrev_b32 v25, 3, v25
    v_lshrrev_b32 v26, 4, v2
    v_lshlrev_b32 v26, 5, v26
    v_add3_u32 v24, v24, v25, v26
    s_lshl_b32 s53, s3, 7
    s_add_u32 s53, s53, {K1_LN}
    v_add_u32 v24, s53, v24
    ds_read_b64_tr_b16 v[68:69], v24
    ds_read_b64_tr_b16 v[70:71], v24 offset:{4*K1_LNROW}
    v_lshlrev_b32 v25, 12, v0
    s_lshl_b32 s53, s4, 4
    s_add_u32 s53, s53, {WS_UT}
    v_add_u32 v25, s53, v25
    s_cmp_lg_u32 s3, 0
    s_cbranch_scc1 K1_NOKEY
    v_mov_b32 v26, {K1_KEY}
    ds_read_b128 v[72:75], v26
    ds_read_b128 v[76:79], v26 offset:16
    s_waitcnt lgkmcnt(0)
    v_max_u32 v80, v72, v73
    v_min_u32 v81, v72, v73
    """)
    for k in range(74, 80):
        a(f"""
        v_min_u32 v82, v80, v{k}
        v_max_u32 v80, v80, v{k}
        v_max_u32 v81, v81, v82
        """)
    a(f"""
    s_lshl_b32 s53, s2, 3
    s_add_u32 s53, s53, {WS_KEY}
    v_mov_b32 v26, s53
    v_cmp_eq_u32 vcc, 0, v2
    s_and_saveexec_b64 s[56:57], vcc
    global_store_dwordx2 v26, v[80:81], s[34:35]
    s_mov_b64 exec, s[56:57]
    """)
    a.label("K1_NOKEY")
    a.reset()
    a(f"""
    s_waitcnt lgkmcnt(0)
    global_store_dwordx4 v25, v[68:71], s[34:35]
    """)
    a(f"""
    s_lshl_b32 s57, s7, 4
    s_lshr_b32 s10, s10, s57
    s_lshl_b32 s10, s10, 16
    v_mov_b32 v24, {LOG2E}
    v_mul_f32 v24, s10, v24
    v_exp_f32 v24, v24
    s_lshl_b32 s58, s13, 4
    s_sub_u32 s59, 16, s58
    v_cvt_pk_bf16_f32 v24, v24, v24
    v_lshlrev_b32 v24, 16, v24
    v_lshrrev_b32 v26, s58, v16
    v_lshrrev_b32 v27, s58, v17
    v_lshlrev_b32 v26, 16, v26
    v_lshlrev_b32 v27, 16, v27
    v_mul_f32 v26, v24, v26
    v_mul_f32 v27, v24, v27
    v_mul_f32 v26, {LOG2E}, v26
    v_mul_f32 v27, 0.15915494, v27
    s_lshl_b32 s60, s13, 8
    s_mul_i32 s61, s7, {K1_LDS_AB}
    s_add_u32 s60, s60, s61
    v_lshlrev_b32 v28, 2, v2
    v_add_u32 v28, s60, v28
    s_cmp_eq_u32 s14, 0
    s_cbranch_scc0 K1_BROLE
    """)
    for (dst, sh) in ((32, "s58"), (34, "s59")):
        a(f"""
        v_lshrrev_b32 v36, {sh}, v18
        v_lshrrev_b32 v37, {sh}, v19
        v_lshrrev_b32 v38, {sh}, v20
        v_lshrrev_b32 v39, {sh}, v21
        v_lshlrev_b32 v36, 16, v36
        v_lshlrev_b32 v37, 16, v37
        v_lshlrev_b32 v38, 16, v38
        v_lshlrev_b32 v39, 16, v39
        v_mul_f32 v36, v24, v36
        v_mul_f32 v37, v24, v37
        """)
        cmul(a, dst, 38, 36, 40)
    a(f"""
    v_max3_f32 v36, |v32|, |v33|, |v34|
    v_max_f32 v36, v36, |v35|
    """)
    anchor(a, 42, 26, 27, None, 46, 47)
    anchor(a, 44, 26, 27, "0x43800000", 48, 49)
    dpp_reduce(a, "v_max_f32", [36])
    a(f"""
    v_readlane_b32 s62, v36, 63
    v_frexp_exp_i32_f32 v36, s62
    v_sub_u32 v37, 10, v36
    v_ldexp_f32 v50, v32, v37
    v_ldexp_f32 v51, v33, v37
    v_subrev_u32 v36, 13, v36
    v_ldexp_f32 v36, 1.0, v36
    s_lshl_b32 s62, s8, 2
    s_add_u32 s62, s62, {WS_KS}
    v_mov_b32 v37, s62
    v_cmp_eq_u32 vcc, 0, v2
    s_and_saveexec_b64 s[56:57], vcc
    global_store_dword v37, v36, s[34:35]
    s_mov_b64 exec, s[56:57]
    """)
    Q = lambda k: 50 + 2 * k
    R = lambda row: 66 + 2 * (row - 8)
    cnt = [0]

    def putA(row, reg):
        t = 92 + (cnt[0] % 6)
        cnt[0] += 1
        a(f"v_cvt_pk_f16_f32 v{t}, v{reg}, -v{reg+1}")
        a(f"ds_write_b32 v28, v{t} offset:{row*K1_ROW}")

    putA(0, Q(0))
    cmul(a, R(8), Q(0), 44, R(8))
    cmul(a, Q(1), Q(0), 42, Q(1))
    beta = [(12, 8), (14, 12), (16, 14), (17, 16), (18, 17), (19, 18), (20, 19)]
    putA(8, R(8))
    putA(1, Q(1))
    for k in range(2, 8):
        row, src = beta[k - 2]
        cmul(a, R(row), R(src), 44, R(row))
        cmul(a, Q(k), Q(k - 1), 42, Q(k))
        putA(row, R(row))
        putA(k, Q(k))
    row, src = beta[6]
    cmul(a, R(row), R(src), 44, R(row))
    cmul(a, R(9), Q(2), 44, R(9))
    cmul(a, R(10), Q(4), 44, R(10))
    cmul(a, R(11), Q(6), 44, R(11))
    putA(20, R(20))
    cmul(a, R(13), R(10), 44, R(13))
    putA(9, R(9))
    putA(10, R(10))
    cmul(a, R(15), R(13), 44, R(15))
    putA(11, R(11))
    putA(13, R(13))
    putA(15, R(15))
    a("s_branch K1_KDONE")
    a.label("K1_BROLE")
    a.reset()
    BO = 17408

    def putB(j, reg):
        t = 92 + (cnt[0] % 6)
        cnt[0] += 1
        a(f"v_cvt_pk_f16_f32 v{t}, v{reg}, v{reg+1}")
        a(f"ds_write_b32 v28, v{t} offset:{BO + j*K1_ROW}")

    anchor(a, 42, 26, 27, "0x41000000", 46, 47)
    a(f"""
    v_mov_b32 v92, 0x3c00
    ds_write_b32 v28, v92 offset:{BO}
    """)
    cnt[0] = 1
    cmul(a, 44, 42, 42, 44)
    putB(1, 42)
    prev = 44
    putB(2, 44)
    for k in range(1, 16):
        nxt = 48 + 2 * (k % 2)
        o = 52 + 2 * (k % 2)
        if k < 15:
            cmul(a, nxt, prev, 44, nxt)
        cmul(a, o, prev, 42, o)
        if k < 15:
            putB(2 * (k + 1), nxt)
        putB(2 * k + 1, o)
        prev = nxt
    a.label("K1_KDONE")
    a.reset()
    a(f"""
    s_waitcnt lgkmcnt(0)
    s_barrier
    """)
    a(f"""
    v_and_b32 v24, 15, v2
    v_mul_u32_u24 v24, {K1_ROW}, v24
    v_lshrrev_b32 v25, 4, v2
    v_lshl_add_u32 v24, v25, 4, v24
    s_mul_i32 s60, s14, {16*K1_ROW}
    s_add_u32 s60, s60, s61
    s_mul_i32 s62, s13, {16*K1_ROW}
    s_add_u32 s62, s62, s61
    s_add_u32 s62, s62, {BO}
    v_add_u32 v25, s60, v24
    v_add_u32 v26, s62, v24
    """)
    for s in range(8):
        a(f"ds_read_b128 v[{32+8*s}:{35+8*s}], v25 offset:{64*s}")
        a(f"ds_read_b128 v[{36+8*s}:{39+8*s}], v26 offset:{64*s}")
    a("v_mov_b32 v96, 0\nv_mov_b32 v97, 0\nv_mov_b32 v98, 0\nv_mov_b32 v99, 0")
    for s in range(8):
        a(f"s_waitcnt lgkmcnt({14-2*s})")
        a(f"v_mfma_f32_16x16x32_f16 v[96:99], v[{32+8*s}:{35+8*s}], v[{36+8*s}:{39+8*s}], v[96:99]")
    for r in range(4):
        a(f"v_ldexp_f32 v{32+r}, v{96+r}, -8")
    for r in range(4):
        a(f"v_cvt_f16_f32 v{32+r}, v{32+r}")
    for r in range(4):
        a(f"ds_write_b16 v{110+r}, v{32+r}")
    a(f"""
    s_waitcnt lgkmcnt(0)
    s_barrier
    """)
    for e in range(0, 8, 2):
        a(f"ds_read_u16_d16 v{32+e//2}, v{100+e}")
        a(f"ds_read_u16_d16_hi v{36+e//2}, v{101+e}")
    a(f"""
    v_lshlrev_b32 v24, 4, v0
    s_lshl_b32 s60, s2, 13
    s_add_u32 s60, s60, {WS_KT}
    v_add_u32 v24, s60, v24
    s_waitcnt lgkmcnt(0)
    v_or_b32 v32, v32, v36
    v_or_b32 v33, v33, v37
    v_or_b32 v34, v34, v38
    v_or_b32 v35, v35, v39
    global_store_dwordx4 v24, v[32:35], s[34:35]
    """)
    a.label("K1_END")
    a("s_endpgm")


def descriptor(name, vgpr, sgpr=102):
    return f""".p2align 6
.amdhsa_kernel {name}
  .amdhsa_next_free_vgpr {vgpr}
  .amdhsa_next_free_sgpr {sgpr}
  .amdhsa_accum_offset {(vgpr+3)//4*4}
  .amdhsa_group_segment_fixed_size 0
  .amdhsa_kernarg_size 136
  .amdhsa_user_sgpr_count 2
  .amdhsa_user_sgpr_kernarg_segment_ptr 1
  .amdhsa_system_sgpr_workgroup_id_x 1
  .amdhsa_float_denorm_mode_32 3
.end_amdhsa_kernel
"""


def main(out):
    a = Asm()
    hdr = [f"; @launch kernel=k1_kernel grid=(256,1,1) block=(512,1,1) lds={K1_LDS}"]
    kernels = [("k1_kernel", 128)]
    gens = [gen_k1]
    try:
        import gen1b
        hdr += gen1b.HDR
        kernels += gen1b.KERNELS
        gens += gen1b.GENS
    except ImportError:
        pass
    for h in hdr:
        a.raw(h)
    a.raw('.amdgcn_target "amdgcn-amd-amdhsa--gfx950"')
    a.raw(".text")
    for g in gens:
        g(a)
    a.raw('.section .rodata,"a"')
    for k, v in kernels:
        a.raw(descriptor(k, v))
    open(out, "w").write(a.text())
    print("nops inserted:", a.nops_inserted)


if __name__ == "__main__":
    main(sys.argv[1] if len(sys.argv) > 1 else "k.s")
```

```python
from gen1 import *

CH_STRIDE = 21248
UCOPY = 4160
KOFF = 16640
XCH = 2 * CH_STRIDE
K2_LDS = XCH + 16384

NEGL2E = "0xbfb8aa3b"


def srd(a, d, base, nbytes):
    a(f"""
    s_mov_b32 s{d}, s{base}
    s_and_b32 s{d+1}, s{base+1}, 0xffff
    s_mov_b32 s{d+2}, {nbytes}
    s_mov_b32 s{d+3}, 0x20000
    """)


def top2(a, k0, t1, t2, tmp, s1, s2):
    a(f"v_max_u32 v{t1}, v{k0}, v{k0+1}")
    a(f"v_min_u32 v{t2}, v{k0}, v{k0+1}")
    for k in range(k0 + 2, k0 + 8):
        a(f"v_min_u32 v{tmp}, v{t1}, v{k}")
        a(f"v_max_u32 v{t1}, v{t1}, v{k}")
        a(f"v_max_u32 v{t2}, v{t2}, v{tmp}")
    a(f"v_mov_b32 v{tmp}, v{t1}")
    dpp_reduce(a, "v_max_u32", [tmp])
    a(f"v_readlane_b32 s{s1}, v{tmp}, 63")
    a(f"v_cmp_eq_u32 vcc, s{s1}, v{t1}")
    a(f"v_cndmask_b32 v{tmp}, v{t1}, v{t2}, vcc")
    dpp_reduce(a, "v_max_u32", [tmp])
    a(f"v_readlane_b32 s{s2}, v{tmp}, 63")


def gen_k2(a):
    a.raw(".p2align 8")
    a.raw(".type k2_kernel,@function")
    a.label("k2_kernel")
    a.reset()
    a(f"""
    s_cmp_ge_u32 s2, 312
    s_cbranch_scc1 K2_END
    """)
    stamp_init(a)
    a(f"""
    s_load_dwordx2 s[34:35], s[0:1], 128
    s_load_dwordx4 s[16:19], s[0:1], 88
    v_lshrrev_b32 v1, 6, v0
    v_and_b32 v2, 63, v0
    v_readfirstlane_b32 s3, v1
    s_cmp_ge_u32 s2, 256
    s_cbranch_scc1 K2_MOE
    """)
    a(f"""
    v_lshlrev_b32 v1, 4, v0
    s_lshl_b32 s4, s2, 13
    s_add_u32 s5, s4, {WS_UT}
    s_add_u32 s6, s4, {WS_KT}
    v_add_u32 v4, s5, v1
    v_add_u32 v5, 0x1000, v4
    v_add_u32 v6, s6, v1
    v_add_u32 v7, 0x1000, v6
    s_lshr_b32 s7, s3, 1
    s_and_b32 s8, s3, 1
    s_lshl_b32 s9, s2, 1
    s_add_u32 s9, s9, s7
    s_lshl_b32 s10, s9, 2
    s_add_u32 s10, s10, {WS_KS}
    s_waitcnt lgkmcnt(0)
    global_load_dwordx4 v[16:19], v4, s[34:35]
    global_load_dwordx4 v[20:23], v4, s[34:35] offset:-4
    global_load_dwordx4 v[24:27], v4, s[34:35] offset:-8
    global_load_dwordx4 v[28:31], v6, s[34:35]
    global_load_dwordx4 v[32:35], v5, s[34:35]
    global_load_dwordx4 v[36:39], v5, s[34:35] offset:-4
    global_load_dwordx4 v[40:43], v5, s[34:35] offset:-8
    global_load_dwordx4 v[44:47], v7, s[34:35]
    s_load_dword s11, s[34:35], s10
    """)
    a(f"""
    v_mov_b32 v48, 0
    v_mov_b32 v49, 0
    v_mov_b32 v50, 0
    v_mov_b32 v51, 0
    v_bfe_u32 v8, v0, 3, 1
    v_mul_u32_u24 v8, {CH_STRIDE}, v8
    v_bfe_u32 v9, v0, 1, 2
    v_mul_u32_u24 v9, {UCOPY}, v9
    v_and_b32 v10, 1, v0
    v_lshlrev_b32 v10, 4, v10
    v_add3_u32 v8, v8, v9, v10
    v_bfe_u32 v9, v0, 5, 1
    v_mul_u32_u24 v9, {CH_STRIDE}, v9
    v_and_b32 v10, 31, v0
    v_lshlrev_b32 v10, 4, v10
    v_add_u32 v9, v9, v10
    v_add_u32 v9, {KOFF+4096}, v9
    s_cmp_eq_u32 s3, 1
    s_cbranch_scc0 K2_NOKPAD
    ds_write_b128 v9, v[48:51]
    """)
    a.label("K2_NOKPAD")
    a.reset()
    a(f"""
    v_cmp_gt_u32 vcc, 16, v0
    s_and_saveexec_b64 s[12:13], vcc
    ds_write_b128 v8, v[48:51]
    s_mov_b64 exec, s[12:13]
    """)
    a(f"""
    v_and_b32 v8, 15, v2
    v_lshrrev_b32 v9, 4, v2
    v_sub_u32 v10, 15, v8
    v_and_b32 v11, 3, v10
    v_lshrrev_b32 v10, 2, v10
    v_mul_u32_u24 v12, {UCOPY}, v11
    v_lshlrev_b32 v11, 1, v9
    v_sub_u32 v11, v11, v10
    v_add_u32 v11, 4, v11
    v_lshl_add_u32 v12, v11, 3, v12
    s_mul_i32 s12, s7, {CH_STRIDE}
    s_lshl_b32 s13, s8, 8
    s_add_u32 s12, s12, s13
    v_add_u32 v12, s12, v12
    v_lshlrev_b32 v13, 4, v9
    v_lshlrev_b32 v11, 5, v8
    v_sub_u32 v13, v13, v11
    s_add_u32 s12, s12, {KOFF+480}
    v_add_u32 v13, s12, v13
    v_cmp_eq_u32 vcc, 0, v0
    v_add_u32 v14, 32, v1
    """)
    for c in range(2):
        q0, q2, q4, kk = 16 + 16 * c, 20 + 16 * c, 24 + 16 * c, 28 + 16 * c
        stamp(a, 1 + 2 * c)
        a(f"s_waitcnt vmcnt({5 - 4*c})")
        stamp(a, 2 + 2 * c)
        a(f"""
        v_cndmask_b32 v{q2}, v{q2}, 0, vcc
        v_cndmask_b32 v{q4}, v{q4}, 0, vcc
        v_cndmask_b32 v{q4+1}, v{q4+1}, 0, vcc
        """)
        for k in range(4):
            a(f"v_alignbyte_b32 v{52+k}, v{q0+k}, v{q2+k}, 2")
        for k in range(4):
            a(f"v_alignbyte_b32 v{56+k}, v{q2+k}, v{q4+k}, 2")
        base = c * CH_STRIDE
        a(f"""
        ds_write_b128 v14, v[{q0}:{q0+3}] offset:{base}
        ds_write_b128 v14, v[52:55] offset:{base+UCOPY}
        ds_write_b128 v14, v[{q2}:{q2+3}] offset:{base+2*UCOPY}
        ds_write_b128 v14, v[56:59] offset:{base+3*UCOPY}
        s_waitcnt vmcnt({4 - 4*c})
        ds_write_b128 v1, v[{kk}:{kk+3}] offset:{base+KOFF}
        """)
        if c == 0:
            a("s_nop 1")
    ACC = 144
    for i in range(32):
        a(f"v_mov_b32 v{ACC+i}, 0")
    a("s_waitcnt lgkmcnt(0)")
    stamp(a, 5)
    a("s_barrier")
    stamp(a, 6)
    Ub = [16, 80]
    Kb = [48, 112]

    def reads(st, ri):
        r = []
        for n in range(8):
            r.append(f"ds_read_b64 v[{Ub[st]+4*n}:{Ub[st]+4*n+1}], v12 offset:{512*n+64*ri}")
            r.append(f"ds_read_b64 v[{Ub[st]+4*n+2}:{Ub[st]+4*n+3}], v12 offset:{512*n+64*ri+8}")
            r.append(f"ds_read_b128 v[{Kb[st]+4*n}:{Kb[st]+4*n+3}], v13 offset:{512*(7-n)+64*ri}")
        return r

    pairs = sorted([(q, m) for q in range(8) for m in range(8) if q + m <= 7], key=lambda t: (max(t), t))
    for r in reads(0, 0):
        a(r)
    a("s_waitcnt lgkmcnt(0)")
    for ri in range(4):
        st = ri & 1
        nxt = reads(st ^ 1, ri + 1) if ri < 3 else []
        for i, (q, m) in enumerate(pairs):
            ct = q + m
            a(f"v_mfma_f32_16x16x32_f16 v[{ACC+4*ct}:{ACC+4*ct+3}], v[{Ub[st]+4*q}:{Ub[st]+4*q+3}], v[{Kb[st]+4*m}:{Kb[st]+4*m+3}], v[{ACC+4*ct}:{ACC+4*ct+3}]")
            if i < len(nxt):
                a(nxt[i])
        if ri < 3:
            a("s_waitcnt lgkmcnt(0)")
    stamp(a, 7)
    a(f"""
    s_lshl_b32 s12, s3, 12
    s_add_u32 s12, s12, {XCH}
    s_xor_b32 s13, s3, 1
    s_lshl_b32 s13, s13, 12
    s_add_u32 s13, s13, {XCH}
    v_lshlrev_b32 v4, 4, v2
    v_add_u32 v5, s12, v4
    v_add_u32 v6, s13, v4
    v_lshlrev_b32 v7, 5, v8
    v_lshl_add_u32 v7, v9, 3, v7
    s_lshl_b32 s14, s9, 12
    s_add_u32 s14, s14, {WS_YT}
    s_lshl_b32 s15, s8, 11
    s_add_u32 s14, s14, s15
    v_add_u32 v7, s14, v7
    s_cmp_eq_u32 s8, 0
    s_cbranch_scc0 K2_EPI1
    """)
    for hh in range(2):
        if hh == 1:
            a.label("K2_EPI1")
            a.reset()
            a("s_nop 7")
        own = range(4 * hh, 4 * hh + 4)
        oth = range(4 * (1 - hh), 4 * (1 - hh) + 4)
        for i, ct in enumerate(oth):
            a(f"ds_write_b128 v5, v[{ACC+4*ct}:{ACC+4*ct+3}] offset:{1024*i}")
        a("s_waitcnt lgkmcnt(0)\ns_barrier")
        for i in range(4):
            a(f"ds_read_b128 v[{16+4*i}:{19+4*i}], v6 offset:{1024*i}")
        for i, ct in enumerate(own):
            a(f"s_waitcnt lgkmcnt({3-i})")
            for r in range(4):
                a(f"v_add_f32 v{16+4*i+r}, v{16+4*i+r}, v{ACC+4*ct+r}")
            for r in range(4):
                a(f"v_mul_f32 v{16+4*i+r}, s11, v{16+4*i+r}")
            a(f"v_cvt_pk_bf16_f32 v{32+2*i}, v{16+4*i}, v{17+4*i}")
            a(f"v_cvt_pk_bf16_f32 v{33+2*i}, v{18+4*i}, v{19+4*i}")
            a(f"global_store_dwordx2 v7, v[{32+2*i}:{33+2*i}], s[34:35] offset:{512*i}")
        stamp(a, 8)
        stamp_flush(a, 1)
        a("s_endpgm")
    a.label("K2_MOE")
    a.reset()
    a(f"""
    s_sub_u32 s4, s2, 256
    s_and_b32 s5, s4, 7
    s_mul_i32 s5, s5, 7
    s_lshr_b32 s4, s4, 3
    s_add_u32 s4, s4, s5
    v_and_b32 v8, 15, v2
    v_lshrrev_b32 v9, 4, v2
    v_lshlrev_b32 v3, 5, v2
    v_add_u32 v3, {WS_KEY}, v3
    s_lshl_b32 s5, s3, 7
    v_lshl_add_u32 v4, v9, 3, s5
    v_mul_u32_u24 v4, 3584, v4
    v_lshl_add_u32 v4, v8, 2, v4
    s_lshl_b32 s6, s4, 6
    v_add_u32 v4, s6, v4
    """)
    for i in range(16):
        s, e2 = i >> 2, i & 3
        a(f"s_mov_b32 s{40+i}, {(32*s+2*e2)*3584}")
    a("s_waitcnt lgkmcnt(0)")
    srd(a, 20, 16, 512 * 3584)
    srd(a, 24, 18, 512 * 3584)
    a(f"""
    global_load_dwordx4 v[10:13], v3, s[34:35]
    global_load_dwordx4 v[14:17], v3, s[34:35] offset:16
    """)
    L = 32
    loads = []
    for s in range(4):
        for mat in range(2):
            for e in range(8):
                loads.append(f"buffer_load_dword v{L+mat*32+s*8+e}, v4, s[{20+4*mat}:{23+4*mat}], s{40+s*4+(e>>1)} offen offset:{3584*(e&1)}")
    for l in loads[:56]:
        a(l)
    stamp(a, 1)
    a("s_waitcnt vmcnt(56)")
    stamp(a, 2)
    top2(a, 10, 18, 19, 20, 7, 8)
    a(f"""
    s_and_b32 s9, s7, 0xffff
    s_sub_u32 s9, 2047, s9
    s_and_b32 s9, s9, 2047
    s_and_b32 s10, s8, 0xffff
    s_sub_u32 s10, 2047, s10
    s_and_b32 s10, s10, 2047
    v_and_b32 v21, 1, v2
    v_cmp_eq_u32 vcc, 1, v21
    v_mov_b32 v21, s9
    v_mov_b32 v22, s10
    v_cndmask_b32 v21, v21, v22, vcc
    v_lshlrev_b32 v21, 10, v21
    v_lshl_add_u32 v21, v9, 4, v21
    s_lshl_b32 s11, s3, 8
    s_add_u32 s11, s11, {WS_XN}
    v_add_u32 v21, s11, v21
    """)
    for s in range(4):
        a(f"global_load_dwordx4 v[{160+4*s}:{163+4*s}], v21, s[34:35] offset:{64*s}")
    for l in loads[56:]:
        a(l)
    stamp(a, 3)
    a(f"""
    s_or_b32 s12, s4, s3
    s_cmp_eq_u32 s12, 0
    s_cbranch_scc0 K2_NOSEL
    s_lshr_b32 s12, s7, 16
    s_lshr_b32 s13, s8, 16
    v_mov_b32 v24, s12
    v_mov_b32 v25, s13
    """)
    for r in (24, 25):
        a(f"""
        v_bfe_i32 v26, v{r}, 15, 1
        v_not_b32 v26, v26
        v_or_b32 v26, 0x8000, v26
        v_xor_b32 v{r}, v{r}, v26
        v_lshlrev_b32 v{r}, 16, v{r}
        v_mul_f32 v{r}, {NEGL2E}, v{r}
        v_exp_f32 v{r}, v{r}
        v_add_f32 v{r}, 1.0, v{r}
        v_rcp_f32 v{r}, v{r}
        v_cvt_pk_bf16_f32 v{r}, v{r}, v{r}
        v_lshlrev_b32 v{r}, 16, v{r}
        """)
    a(f"""
    v_mov_b32 v22, s9
    v_mov_b32 v23, s10
    v_mov_b32 v26, {WS_SEL}
    v_cmp_eq_u32 vcc, 0, v2
    s_and_saveexec_b64 s[12:13], vcc
    global_store_dwordx4 v26, v[22:25], s[34:35]
    s_mov_b64 exec, s[12:13]
    """)
    a.label("K2_NOSEL")
    a.reset()
    a(f"""
    s_mov_b32 s12, 0x05040100
    s_mov_b32 s13, 0x07060302
    """)
    for i in range(16):
        a(f"v_mov_b32 v{176+i}, 0")
    a("s_waitcnt vmcnt(0)")
    stamp(a, 4)
    P = 96
    for mat in range(2):
        for s in range(4):
            b = L + mat * 32 + s * 8
            p = P + mat * 32 + s * 8
            for k in range(4):
                a(f"v_perm_b32 v{p+k}, v{b+2*k+1}, v{b+2*k}, s12")
                a(f"v_perm_b32 v{p+4+k}, v{b+2*k+1}, v{b+2*k}, s13")
    for s in range(4):
        for mat in range(2):
            for half in range(2):
                acc = 176 + (mat * 2 + half) * 4
                p = P + mat * 32 + s * 8 + 4 * half
                a(f"v_mfma_f32_16x16x32_bf16 v[{acc}:{acc+3}], v[{160+4*s}:{163+4*s}], v[{p}:{p+3}], v[{acc}:{acc+3}]")
    a(f"""
    s_lshl_b32 s12, s3, 9
    v_lshl_add_u32 v24, v8, 3, s12
    """)
    for j in range(4):
        a(f"ds_write_b64 v24, v[{176+4*j}:{177+4*j}] offset:{128*j}")
    a(f"""
    s_waitcnt lgkmcnt(0)
    s_barrier
    s_cmp_eq_u32 s3, 0
    s_cbranch_scc0 K2_END
    v_lshrrev_b32 v24, 5, v2
    v_and_b32 v25, 31, v2
    v_and_b32 v26, 1, v25
    v_lshrrev_b32 v27, 1, v25
    v_lshlrev_b32 v28, 7, v26
    v_lshl_add_u32 v28, v27, 3, v28
    v_lshl_add_u32 v28, v24, 2, v28
    """)
    for w in range(4):
        a(f"ds_read_b32 v{32+w}, v28 offset:{512*w}")
        a(f"ds_read_b32 v{36+w}, v28 offset:{512*w+256}")
    a(f"""
    s_waitcnt lgkmcnt(0)
    v_add_f32 v32, v32, v33
    v_add_f32 v34, v34, v35
    v_add_f32 v36, v36, v37
    v_add_f32 v38, v38, v39
    v_add_f32 v32, v32, v34
    v_add_f32 v36, v36, v38
    v_cvt_pk_bf16_f32 v32, v32, v36
    v_and_b32 v36, 0xffff0000, v32
    v_lshlrev_b32 v32, 16, v32
    v_mul_f32 v33, {NEGL2E}, v32
    v_exp_f32 v33, v33
    v_add_f32 v33, 1.0, v33
    v_rcp_f32 v33, v33
    v_mul_f32 v32, v32, v33
    v_cvt_pk_bf16_f32 v32, v32, v32
    v_lshlrev_b32 v32, 16, v32
    v_mul_f32 v32, v32, v36
    v_cvt_pk_bf16_f32 v32, v32, v32
    v_mul_u32_u24 v24, 3584, v24
    v_lshl_add_u32 v24, v25, 1, v24
    s_add_u32 s6, s6, {WS_H}
    v_add_u32 v24, s6, v24
    global_store_short v24, v32, s[34:35]
    """)
    stamp(a, 8)
    stamp_flush(a, 1)
    a.label("K2_END")
    a("s_endpgm")


K3_RS = 136
K3_LDS = 64 * K3_RS + 64


def final_pair(a, out, y0, y1, xw, nw, d0, d1, t):
    a(f"""
    v_lshlrev_b32 v{t}, 16, v{nw}
    v_and_b32 v{t+1}, 0xffff0000, v{nw}
    v_mul_f32 v{t+2}, v{t}, v{d0}
    v_mul_f32 v{t+3}, v{t+1}, v{d1}
    v_cvt_pk_bf16_f32 v{t+2}, v{t+2}, v{t+3}
    v_and_b32 v{t+3}, 0xffff0000, v{t+2}
    v_lshlrev_b32 v{t+2}, 16, v{t+2}
    v_add_f32 v{t+2}, v{t+2}, v{y0}
    v_add_f32 v{t+3}, v{t+3}, v{y1}
    v_cvt_pk_bf16_f32 v{t+2}, v{t+2}, v{t+3}
    v_and_b32 v{t+3}, 0xffff0000, v{t+2}
    v_lshlrev_b32 v{t+2}, 16, v{t+2}
    v_lshlrev_b32 v{t+4}, 16, v{xw}
    v_and_b32 v{t+5}, 0xffff0000, v{xw}
    v_add_f32 v{t+2}, v{t+2}, v{t+4}
    v_add_f32 v{t+3}, v{t+3}, v{t+5}
    v_cvt_pk_bf16_f32 v{t+2}, v{t+2}, v{t+3}
    v_and_b32 v{t+3}, 0xffff0000, v{t+2}
    v_lshlrev_b32 v{t+2}, 16, v{t+2}
    v_add_f32 v{t+2}, v{t+2}, v{t}
    v_add_f32 v{t+3}, v{t+3}, v{t+1}
    v_cvt_pk_bf16_f32 v{out}, v{t+2}, v{t+3}
    """)


def gen_k3(a):
    a.raw(".p2align 8")
    a.raw(".type k3_kernel,@function")
    a.label("k3_kernel")
    a.reset()
    a(f"""
    s_cmp_ge_u32 s2, 272
    s_cbranch_scc1 K3_END
    """)
    stamp_init(a)
    a(f"""
    s_load_dwordx2 s[34:35], s[0:1], 128
    s_load_dwordx2 s[16:17], s[0:1], 0
    s_load_dwordx2 s[18:19], s[0:1], 64
    s_load_dwordx4 s[20:23], s[0:1], 104
    v_lshrrev_b32 v1, 6, v0
    v_and_b32 v2, 63, v0
    v_readfirstlane_b32 s3, v1
    s_waitcnt lgkmcnt(0)
    s_add_u32 s36, s34, {WS_SEL}
    s_addc_u32 s37, s35, 0
    s_load_dwordx4 s[24:27], s[36:37], 0
    s_cmp_ge_u32 s2, 256
    s_cbranch_scc1 K3_DOWN
    s_lshr_b32 s4, s2, 3
    s_and_b32 s5, s2, 7
    v_lshrrev_b32 v3, 2, v0
    v_and_b32 v4, 3, v0
    s_lshl_b32 s6, s5, 18
    s_lshl_b32 s7, s4, 7
    s_add_u32 s6, s6, s7
    s_add_u32 s6, s6, {WS_YT}
    v_lshlrev_b32 v5, 12, v3
    v_lshl_add_u32 v5, v4, 5, v5
    v_add_u32 v5, s6, v5
    global_load_dwordx4 v[16:19], v5, s[34:35]
    global_load_dwordx4 v[20:23], v5, s[34:35] offset:16
    v_lshrrev_b32 v6, 3, v0
    v_and_b32 v7, 7, v0
    s_lshl_b32 s8, s4, 16
    s_lshl_b32 s9, s5, 7
    s_add_u32 s8, s8, s9
    v_lshlrev_b32 v8, 10, v6
    v_lshl_add_u32 v8, v7, 4, v8
    v_add_u32 v8, s8, v8
    v_add_u32 v9, 0x8000, v8
    v_add_u32 v10, {WS_XN}, v8
    v_add_u32 v11, {WS_XN}, v9
    v_lshl_add_u32 v12, v7, 4, s9
    global_load_dwordx4 v[24:27], v8, s[16:17]
    global_load_dwordx4 v[28:31], v9, s[16:17]
    global_load_dwordx4 v[32:35], v10, s[34:35]
    global_load_dwordx4 v[36:39], v11, s[34:35]
    global_load_dwordx4 v[40:43], v12, s[18:19]
    v_mul_u32_u24 v13, {K3_RS}, v3
    v_lshl_add_u32 v13, v4, 5, v13
    v_mul_u32_u24 v14, {8*K3_RS}, v7
    v_lshl_add_u32 v14, v6, 1, v14
    """)
    stamp(a, 1)
    a("s_waitcnt vmcnt(5)")
    stamp(a, 2)
    a(f"""
    ds_write_b64 v13, v[16:17]
    ds_write_b64 v13, v[18:19] offset:8
    ds_write_b64 v13, v[20:21] offset:16
    ds_write_b64 v13, v[22:23] offset:24
    s_waitcnt lgkmcnt(0)
    s_barrier
    """)
    for hf in range(2):
        for e in range(8):
            a(f"ds_read_u16_d16_hi v{48+8*hf+e}, v14 offset:{e*K3_RS+64*hf}")
    a("s_waitcnt vmcnt(0)")
    for k in range(4):
        a(f"v_lshlrev_b32 v{64+2*k}, 16, v{40+k}")
        a(f"v_and_b32 v{65+2*k}, 0xffff0000, v{40+k}")
    a("s_waitcnt lgkmcnt(0)")
    a(f"""
    s_lshl_b32 s10, s4, 6
    v_add_u32 v15, s10, v6
    """)
    for hf in range(2):
        for k in range(4):
            final_pair(a, 80 + 4 * hf + k, 48 + 8 * hf + 2 * k, 49 + 8 * hf + 2 * k, 24 + 4 * hf + k, 32 + 4 * hf + k, 64 + 2 * k, 65 + 2 * k, 72)
        a(f"""
        v_cmp_ne_u32 vcc, s24, v15
        v_cmp_ne_u32 s[12:13], s25, v15
        s_and_b64 vcc, vcc, s[12:13]
        s_and_saveexec_b64 s[12:13], vcc
        global_store_dwordx4 v{8+hf}, v[{80+4*hf}:{83+4*hf}], s[22:23]
        s_mov_b64 exec, s[12:13]
        v_add_u32 v15, 32, v15
        """)
    stamp(a, 8)
    stamp_flush(a, 2)
    a("s_endpgm")
    a.label("K3_DOWN")
    a.reset()
    a(f"""
    s_sub_u32 s4, s2, 256
    s_and_b32 s5, s4, 7
    s_lshl_b32 s5, s5, 1
    s_lshr_b32 s4, s4, 3
    s_add_u32 s4, s4, s5
    v_and_b32 v8, 15, v2
    v_lshrrev_b32 v9, 4, v2
    s_mul_i32 s5, s3, 448
    v_lshl_add_u32 v4, v9, 3, s5
    v_lshlrev_b32 v5, 1, v4
    v_lshlrev_b32 v4, 10, v4
    v_lshl_add_u32 v4, v8, 2, v4
    s_lshl_b32 s6, s4, 6
    v_add_u32 v4, s6, v4
    v_and_b32 v6, 1, v2
    v_mul_u32_u24 v6, 3584, v6
    v_add_u32 v5, v5, v6
    v_add_u32 v5, {WS_H}, v5
    s_mov_b32 s12, 0x05040100
    s_mov_b32 s13, 0x07060302
    """)
    srd(a, 28, 20, 1792 * 1024)
    for i in range(8):
        a(f"v_mov_b32 v{16+i}, 0")
    L, P, A = 32, 96, 160
    for part in range(2):
        for s in range(7):
            a(f"global_load_dwordx4 v[{A+4*s}:{A+3+4*s}], v5, s[34:35] offset:{64*(7*part+s)}")
        for s in range(7):
            for e in range(8):
                if e % 4 == 0:
                    a(f"s_mov_b32 s14, {(32*(7*part+s)+e)*1024}")
                a(f"buffer_load_dword v{L+8*s+e}, v4, s[28:31], s14 offen offset:{1024*(e&3)}")
        stamp(a, 1 + 2 * part)
        a("s_waitcnt vmcnt(0)")
        stamp(a, 2 + 2 * part)
        for s in range(7):
            b, p = L + 8 * s, P + 8 * s
            for k in range(4):
                a(f"v_perm_b32 v{p+k}, v{b+2*k+1}, v{b+2*k}, s12")
                a(f"v_perm_b32 v{p+4+k}, v{b+2*k+1}, v{b+2*k}, s13")
        for s in range(7):
            for half in range(2):
                p = P + 8 * s + 4 * half
                a(f"v_mfma_f32_16x16x32_bf16 v[{16+4*half}:{19+4*half}], v[{A+4*s}:{A+3+4*s}], v[{p}:{p+3}], v[{16+4*half}:{19+4*half}]")
        a("s_nop 7")
    a(f"""
    s_lshl_b32 s14, s3, 8
    v_lshl_add_u32 v24, v8, 3, s14
    ds_write_b64 v24, v[16:17]
    ds_write_b64 v24, v[20:21] offset:128
    s_waitcnt lgkmcnt(0)
    s_barrier
    s_cmp_eq_u32 s3, 0
    s_cbranch_scc0 K3_END
    v_lshrrev_b32 v24, 5, v2
    v_and_b32 v25, 31, v2
    v_and_b32 v26, 1, v25
    v_lshrrev_b32 v27, 1, v25
    v_lshlrev_b32 v28, 7, v26
    v_lshl_add_u32 v28, v27, 3, v28
    v_lshl_add_u32 v28, v24, 2, v28
    """)
    for w in range(4):
        a(f"ds_read_b32 v{32+w}, v28 offset:{256*w}")
    a(f"""
    v_cmp_eq_u32 vcc, 1, v24
    v_mov_b32 v36, s24
    v_mov_b32 v37, s25
    v_cndmask_b32 v36, v36, v37, vcc
    v_and_b32 v36, 0x7ff, v36
    v_mov_b32 v38, s26
    v_mov_b32 v37, s27
    v_cndmask_b32 v38, v38, v37, vcc
    s_lshl_b32 s14, s4, 5
    v_add_u32 v25, s14, v25
    v_lshlrev_b32 v39, 1, v25
    v_lshl_add_u32 v40, v36, 10, v39
    v_add_u32 v41, {WS_XN}, v40
    v_lshlrev_b32 v42, 12, v25
    v_lshl_add_u32 v42, v36, 1, v42
    v_add_u32 v42, {WS_YT}, v42
    global_load_ushort v44, v40, s[16:17]
    global_load_ushort v45, v41, s[34:35]
    global_load_ushort v46, v42, s[34:35]
    global_load_ushort v47, v39, s[18:19]
    s_waitcnt lgkmcnt(0)
    v_add_f32 v32, v32, v33
    v_add_f32 v34, v34, v35
    v_add_f32 v32, v32, v34
    v_cvt_pk_bf16_f32 v32, v32, v32
    v_lshlrev_b32 v32, 16, v32
    v_mul_f32 v32, v32, v38
    v_cvt_pk_bf16_f32 v32, v32, v32
    v_lshlrev_b32 v32, 16, v32
    s_waitcnt vmcnt(0)
    v_lshlrev_b32 v44, 16, v44
    v_lshlrev_b32 v45, 16, v45
    v_lshlrev_b32 v46, 16, v46
    v_lshlrev_b32 v47, 16, v47
    v_add_f32 v32, v32, v45
    v_mul_f32 v47, v47, v45
    v_cvt_pk_bf16_f32 v32, v32, v47
    v_and_b32 v47, 0xffff0000, v32
    v_lshlrev_b32 v32, 16, v32
    v_add_f32 v47, v47, v46
    v_cvt_pk_bf16_f32 v47, v47, v47
    v_lshlrev_b32 v47, 16, v47
    v_add_f32 v47, v47, v44
    v_cvt_pk_bf16_f32 v47, v47, v47
    v_lshlrev_b32 v47, 16, v47
    v_add_f32 v47, v47, v32
    v_cvt_pk_bf16_f32 v47, v47, v47
    global_store_short v40, v47, s[22:23]
    """)
    stamp(a, 8)
    stamp_flush(a, 2)
    a.label("K3_END")
    a("s_endpgm")


HDR = [f"; @launch kernel=k2_kernel grid=(312,1,1) block=(256,1,1) lds={K2_LDS}",
       f"; @launch kernel=k3_kernel grid=(272,1,1) block=(256,1,1) lds={K3_LDS}"]
KERNELS = [("k2_kernel", 192), ("k3_kernel", 192)]
GENS = [gen_k2, gen_k3]
```

```python
import sys
from asmlib import Asm

NAME = "parallel_sum__ssm_conv_s4__moe_arch_mod__prompt"
MB = 1 << 20
WS_UT = 1 * MB
WS_KT = 3 * MB
WS_YT = 5 * MB
WS_XN = 7 * MB
WS_KS = 9 * MB
WS_KEY = 9 * MB + 0x1000
WS_H = 9 * MB + 0x2000
WS_SEL = 9 * MB + 0x4000

LOG2E = "0x3fb8aa3b"
import os
STAMP = os.environ.get("STAMP", "0") == "1"
PREFETCH = os.environ.get("PREFETCH", "1") == "1"
WS_STAMP = 16 * MB


def stamp(a, idx):
    if STAMP:
        a(f"s_memrealtime s[{64+2*idx}:{65+2*idx}]")


def stamp_init(a):
    if STAMP:
        for i in range(64, 96, 2):
            a(f"s_mov_b64 s[{i}:{i+1}], 0")
        stamp(a, 0)


def stamp_flush(a, kern, wsreg="s[34:35]", wave="s3"):
    if not STAMP:
        return
    a("s_waitcnt vmcnt(0)")
    stamp(a, 15)
    a(f"""
    s_lshl_b32 s98, s2, 3
    s_add_u32 s98, s98, {wave}
    s_lshl_b32 s98, s98, 7
    s_add_u32 s98, s98, {WS_STAMP + kern*512*8*128}
    s_waitcnt lgkmcnt(0)
    s_mov_b64 exec, 1
    v_mov_b32 v0, s98
    """)
    for q in range(8):
        for k in range(4):
            a(f"v_mov_b32 v{4+k}, s{64+4*q+k}")
        a(f"global_store_dwordx4 v0, v[4:7], {wsreg} offset:{16*q}")
        a("s_nop 1")


def cmul(a, R, X, Y, T):
    a(f"v_pk_mul_f32 v[{T}:{T+1}], v[{X}:{X+1}], v[{Y}:{Y+1}] op_sel:[0,0] op_sel_hi:[0,1]")
    a(f"v_pk_fma_f32 v[{R}:{R+1}], v[{X}:{X+1}], v[{Y}:{Y+1}], v[{T}:{T+1}] op_sel:[1,1,0] op_sel_hi:[1,0,1] neg_lo:[1,0,0]")


def dpp_reduce(a, op, regs):
    steps = ["quad_perm:[1,0,3,2] row_mask:0xf bank_mask:0xf",
             "quad_perm:[2,3,0,1] row_mask:0xf bank_mask:0xf",
             "row_half_mirror row_mask:0xf bank_mask:0xf",
             "row_mirror row_mask:0xf bank_mask:0xf",
             "row_bcast:15 row_mask:0xa bank_mask:0xf",
             "row_bcast:31 row_mask:0xc bank_mask:0xf"]
    for s in steps:
        for r in regs:
            a(f"{op}_dpp v{r}, v{r}, v{r} {s}")


def anchor(a, P, vA, vB, lf, t0, t1):
    if lf is None:
        a(f"v_exp_f32 v{t0}, v{vA}")
        a(f"v_fract_f32 v{t1}, v{vB}")
    else:
        a(f"v_mul_f32 v{t0}, {lf}, v{vA}")
        a(f"v_mul_f32 v{t1}, {lf}, v{vB}")
        a(f"v_exp_f32 v{t0}, v{t0}")
        a(f"v_fract_f32 v{t1}, v{t1}")
    a(f"v_cos_f32 v{P}, v{t1}")
    a(f"v_sin_f32 v{P+1}, v{t1}")
    a(f"v_mul_f32 v{P}, v{t0}, v{P}")
    a(f"v_mul_f32 v{P+1}, v{t0}, v{P+1}")


K1_LDS_AB = 34816
K1_ROW = 544
K1_LN = 69632
K1_LNROW = 1088
K1_TAB = 78336
K1_KEY = 81408
K1_LDS = 81920


def gen_k1(a):
    a.raw(".p2align 8")
    a.raw(".type k1_kernel,@function")
    a.label("k1_kernel")
    a.reset()
    a(f"""
    s_cmp_ge_u32 s2, 256
    s_cbranch_scc1 K1_END
    """)
    stamp_init(a)
    a(f"""
    s_load_dwordx16 s[16:31], s[0:1], 0
    s_load_dwordx2 s[32:33], s[0:1], 80
    s_load_dwordx2 s[34:35], s[0:1], 128
    v_lshrrev_b32 v1, 6, v0
    v_and_b32 v2, 63, v0
    v_readfirstlane_b32 s3, v1
    s_and_b32 s4, s2, 7
    s_lshl_b32 s4, s4, 5
    s_lshr_b32 s5, s2, 3
    s_add_u32 s4, s4, s5
    s_lshl_b32 s5, s4, 3
    s_add_u32 s5, s5, s3
    v_lshlrev_b32 v3, 4, v2
    s_lshl_b32 s6, s5, 10
    v_add_u32 v4, s6, v3
    s_lshr_b32 s7, s3, 2
    s_lshl_b32 s8, s2, 1
    s_add_u32 s8, s8, s7
    s_lshl_b32 s9, s8, 8
    v_lshlrev_b32 v5, 2, v2
    v_add_u32 v5, s9, v5
    s_lshl_b32 s11, s2, 2
    s_waitcnt lgkmcnt(0)
    global_load_dwordx4 v[8:11], v4, s[16:17]
    global_load_dwordx4 v[12:15], v3, s[32:33]
    global_load_dword v16, v5, s[18:19]
    global_load_dword v17, v5, s[20:21]
    global_load_dword v18, v5, s[22:23]
    global_load_dword v19, v5, s[24:25]
    global_load_dword v20, v5, s[26:27]
    global_load_dword v21, v5, s[28:29]
    s_load_dword s10, s[30:31], s11
    """)
    if PREFETCH:
        a(f"""
        s_load_dwordx4 s[56:59], s[0:1], 88
        s_load_dwordx2 s[60:61], s[0:1], 104
        s_and_b32 s36, s2, 7
        s_lshr_b32 s37, s2, 3
        v_lshrrev_b32 v22, 5, v0
        v_and_b32 v23, 31, v0
        s_lshl_b32 s38, s37, 4
        v_add_u32 v22, s38, v22
        v_mul_u32_u24 v22, 3584, v22
        v_min_u32 v23, 27, v23
        v_lshl_add_u32 v22, v23, 4, v22
        s_mul_i32 s38, s36, 448
        v_add_u32 v22, s38, v22
        v_lshrrev_b32 v23, 3, v0
        v_min_u32 v23, 55, v23
        s_mul_i32 s38, s37, 56
        v_add_u32 v23, s38, v23
        v_lshlrev_b32 v23, 10, v23
        v_and_b32 v24, 7, v0
        v_lshl_add_u32 v23, v24, 4, v23
        s_lshl_b32 s38, s36, 7
        v_add_u32 v23, s38, v23
        s_waitcnt lgkmcnt(0)
        global_load_dwordx4 v[116:119], v22, s[56:57]
        global_load_dwordx4 v[120:123], v22, s[58:59]
        global_load_dwordx4 v[124:127], v23, s[60:61]
        """)
    a(f"""
    v_and_b32 v22, 0xff, v0
    v_lshlrev_b32 v22, 3, v22
    v_sub_u32 v22, 0x7ff, v22
    v_lshrrev_b32 v23, 8, v0
    v_mul_u32_u24 v23, 1536, v23
    v_add_u32 v23, {K1_TAB}, v23
    s_movk_i32 s12, 128
    """)
    for e in range(0, 8, 2):
        a(f"""
        v_subrev_u32 v24, {e}, v22
        v_subrev_u32 v25, {e+1}, v22
        v_cvt_f32_u32 v26, v24
        v_cvt_f32_u32 v27, v25
        v_cvt_pk_bf16_f32 v26, v26, v27
        v_and_b32 v28, 0xffff, v26
        v_lshrrev_b32 v29, 16, v26
        v_subrev_u32 v28, {0x4300-128}, v28
        v_subrev_u32 v29, {0x4300-128}, v29
        v_med3_i32 v28, v28, v24, s12
        v_med3_i32 v29, v29, v25, s12
        v_lshl_add_u32 v{100+e}, v28, 1, v23
        v_lshl_add_u32 v{101+e}, v29, 1, v23
        """)
    a(f"""
    s_and_b32 s13, s3, 1
    s_lshr_b32 s14, s3, 1
    s_and_b32 s14, s14, 1
    v_and_b32 v24, 15, v2
    s_lshl_b32 s15, s13, 4
    v_add_u32 v24, s15, v24
    v_lshrrev_b32 v25, 4, v2
    s_mul_i32 s36, s7, 1536
    s_add_u32 s36, s36, {K1_TAB}
    v_cmp_eq_u32 s[38:39], 1, v25
    v_cmp_eq_u32 s[40:41], 2, v25
    v_cmp_eq_u32 s[42:43], 3, v25
    v_cmp_eq_u32 s[44:45], 0, v25
    v_cmp_eq_u32 s[46:47], 16, v2
    s_cmp_eq_u32 s14, 0
    s_cbranch_scc0 K1_TA_RT1
    """)
    a(f"""
    v_mov_b32 v26, 3
    v_cndmask_b32 v26, v26, 2, s[40:41]
    v_cndmask_b32 v26, v26, 1, s[42:43]
    v_lshlrev_b32 v26, v26, v24
    """)
    for r in range(4):
        b0, b1, b2, b3 = r, 4 + r, 256 + r, 384 + (r & 1) + 64 * (r >> 1)
        a(f"""
        v_mov_b32 v27, {b0}
        v_cndmask_b32 v27, v27, {b1}, s[38:39]
        v_mov_b32 v28, {b2}
        v_cndmask_b32 v27, v27, v28, s[40:41]
        v_mov_b32 v28, {b3}
        v_cndmask_b32 v27, v27, v28, s[42:43]
        v_add_u32 v27, v27, v26
        v_lshlrev_b32 v27, 1, v27
        v_add_u32 v{110+r}, s36, v27
        """)
    a("s_branch K1_TA_DONE")
    a.label("K1_TA_RT1")
    a.reset()
    for r in range(4):
        a(f"""
        v_mov_b32 v27, 700
        v_add_u32 v28, {512+32*r}, v24
        v_cndmask_b32 v27, v27, v28, s[44:45]
        """)
        if r == 0:
            a(f"""
            s_cmp_eq_u32 s13, 0
            s_cselect_b64 s[48:49], s[46:47], 0
            v_mov_b32 v28, 640
            v_cndmask_b32 v27, v27, v28, s[48:49]
            """)
        a(f"""
        v_lshlrev_b32 v27, 1, v27
        v_add_u32 v{110+r}, s36, v27
        """)
    a.label("K1_TA_DONE")
    a.reset()
    a("s_nop 4")
    a(f"""
    v_mov_b32 v30, 0x3b000000
    """)
    stamp(a, 1)
    a(f"""
    s_waitcnt vmcnt({9 if PREFETCH else 6})
    """)
    stamp(a, 2)
    a(f"""
    v_lshlrev_b32 v32, 16, v8
    v_and_b32 v33, 0xffff0000, v8
    v_lshlrev_b32 v34, 16, v9
    v_and_b32 v35, 0xffff0000, v9
    v_lshlrev_b32 v36, 16, v10
    v_and_b32 v37, 0xffff0000, v10
    v_lshlrev_b32 v38, 16, v11
    v_and_b32 v39, 0xffff0000, v11
    v_readfirstlane_b32 s50, v32
    """)
    for k in range(8):
        a(f"v_subrev_f32 v{40+k}, s50, v{32+k}")
    a(f"""
    v_pk_add_f32 v[48:49], v[32:33], v[34:35]
    v_pk_add_f32 v[50:51], v[36:37], v[38:39]
    v_pk_mul_f32 v[52:53], v[40:41], v[40:41]
    v_pk_mul_f32 v[54:55], v[42:43], v[42:43]
    v_pk_add_f32 v[48:49], v[48:49], v[50:51]
    v_pk_fma_f32 v[52:53], v[44:45], v[44:45], v[52:53]
    v_pk_fma_f32 v[54:55], v[46:47], v[46:47], v[54:55]
    v_add_f32 v48, v48, v49
    v_pk_add_f32 v[52:53], v[52:53], v[54:55]
    v_add_f32 v52, v52, v53
    """)
    dpp_reduce(a, "v_add_f32", [48, 52])
    a(f"""
    v_readlane_b32 s51, v48, 63
    v_readlane_b32 s52, v52, 63
    v_mul_f32 v48, s51, v30
    v_mul_f32 v49, s52, v30
    v_subrev_f32 v50, s50, v48
    v_fma_f32 v49, -v50, v50, v49
    v_max_f32 v49, 0, v49
    v_cvt_pk_bf16_f32 v48, v48, v49
    v_and_b32 v49, 0xffff0000, v48
    v_lshlrev_b32 v48, 16, v48
    v_add_f32 v49, 0x3727c5ac, v49
    v_cvt_pk_bf16_f32 v49, v49, v49
    v_lshlrev_b32 v49, 16, v49
    v_sqrt_f32 v49, v49
    v_cvt_pk_bf16_f32 v49, v49, v49
    v_lshlrev_b32 v49, 16, v49
    v_rcp_f32 v50, v49
    v_mul_f32 v52, 0x45000000, v50
    """)
    for k in range(8):
        a(f"v_sub_f32 v{40+k}, v{32+k}, v48")
    for k in range(4):
        a(f"v_cvt_pk_bf16_f32 v{54+k}, v{40+2*k}, v{41+2*k}")
    for k in range(4):
        a(f"v_lshlrev_b32 v{40+2*k}, 16, v{54+k}")
        a(f"v_and_b32 v{41+2*k}, 0xffff0000, v{54+k}")
    for k in range(8):
        a(f"v_mul_f32 v{32+k}, v{40+k}, v50")
    for k in range(4):
        a(f"v_cvt_pk_bf16_f32 v{60+k}, v{32+2*k}, v{33+2*k}")
    a(f"""
    v_add_u32 v6, {WS_XN}, v4
    global_store_dwordx4 v6, v[60:63], s[34:35]
    v_mov_b32 v58, 0
    """)
    for k in range(4):
        a(f"v_dot2_f32_bf16 v58, v{60+k}, v{12+k}, v58")
    for k in range(4):
        a(f"v_lshlrev_b32 v{32+2*k}, 16, v{60+k}")
        a(f"v_and_b32 v{33+2*k}, 0xffff0000, v{60+k}")
    for k in range(8):
        a(f"v_ldexp_f32 v{32+k}, v{32+k}, 11")
    for k in range(4):
        a(f"v_cvt_pk_f16_f32 v{64+k}, v{32+2*k}, v{33+2*k}")
    a(f"""
    s_mul_i32 s53, s3, {K1_LNROW}
    s_add_u32 s53, s53, {K1_LN}
    v_add_u32 v7, s53, v3
    ds_write_b128 v7, v[64:67]
    """)
    dpp_reduce(a, "v_add_f32", [58])
    a(f"""
    v_cvt_pk_bf16_f32 v58, v58, v58
    v_and_b32 v58, 0xffff, v58
    v_bfe_i32 v59, v58, 15, 1
    v_or_b32 v59, 0x8000, v59
    v_xor_b32 v58, v58, v59
    v_and_b32 v58, 0xffff, v58
    v_lshlrev_b32 v58, 16, v58
    s_sub_u32 s54, 2047, s5
    v_or_b32 v58, s54, v58
    v_readlane_b32 s55, v58, 63
    s_lshl_b32 s56, s3, 2
    s_add_u32 s56, s56, {K1_KEY}
    v_mov_b32 v59, s56
    v_mov_b32 v58, s55
    ds_write_b32 v59, v58
    s_waitcnt lgkmcnt(0)
    """)
    stamp(a, 3)
    a("s_barrier")
    stamp(a, 4)
    a(f"""
    v_bfe_u32 v24, v2, 2, 2
    v_mul_u32_u24 v24, {K1_LNROW}, v24
    v_and_b32 v25, 3, v2
    v_lshlrev_b32 v25, 3, v25
    v_lshrrev_b32 v26, 4, v2
    v_lshlrev_b32 v26, 5, v26
    v_add3_u32 v24, v24, v25, v26
    s_lshl_b32 s53, s3, 7
    s_add_u32 s53, s53, {K1_LN}
    v_add_u32 v24, s53, v24
    ds_read_b64_tr_b16 v[68:69], v24
    ds_read_b64_tr_b16 v[70:71], v24 offset:{4*K1_LNROW}
    v_lshlrev_b32 v25, 12, v0
    s_lshl_b32 s53, s4, 4
    s_add_u32 s53, s53, {WS_UT}
    v_add_u32 v25, s53, v25
    s_cmp_lg_u32 s3, 0
    s_cbranch_scc1 K1_NOKEY
    v_mov_b32 v26, {K1_KEY}
    ds_read_b128 v[72:75], v26
    ds_read_b128 v[76:79], v26 offset:16
    s_waitcnt lgkmcnt(0)
    v_max_u32 v80, v72, v73
    v_min_u32 v81, v72, v73
    """)
    for k in range(74, 80):
        a(f"""
        v_min_u32 v82, v80, v{k}
        v_max_u32 v80, v80, v{k}
        v_max_u32 v81, v81, v82
        """)
    a(f"""
    s_lshl_b32 s53, s2, 3
    s_add_u32 s53, s53, {WS_KEY}
    v_mov_b32 v26, s53
    v_cmp_eq_u32 vcc, 0, v2
    s_and_saveexec_b64 s[56:57], vcc
    global_store_dwordx2 v26, v[80:81], s[34:35]
    s_mov_b64 exec, s[56:57]
    """)
    a.label("K1_NOKEY")
    a.reset()
    a(f"""
    s_waitcnt lgkmcnt(0)
    global_store_dwordx4 v25, v[68:71], s[34:35]
    """)
    a(f"s_waitcnt vmcnt({5 if PREFETCH else 2})")
    stamp(a, 5)
    a(f"""
    s_lshl_b32 s57, s7, 4
    s_lshr_b32 s10, s10, s57
    s_lshl_b32 s10, s10, 16
    v_mov_b32 v24, {LOG2E}
    v_mul_f32 v24, s10, v24
    v_exp_f32 v24, v24
    s_lshl_b32 s58, s13, 4
    s_sub_u32 s59, 16, s58
    v_cvt_pk_bf16_f32 v24, v24, v24
    v_lshlrev_b32 v24, 16, v24
    v_lshrrev_b32 v26, s58, v16
    v_lshrrev_b32 v27, s58, v17
    v_lshlrev_b32 v26, 16, v26
    v_lshlrev_b32 v27, 16, v27
    v_mul_f32 v26, v24, v26
    v_mul_f32 v27, v24, v27
    v_mul_f32 v26, {LOG2E}, v26
    v_mul_f32 v27, 0.15915494, v27
    s_lshl_b32 s60, s13, 8
    s_mul_i32 s61, s7, {K1_LDS_AB}
    s_add_u32 s60, s60, s61
    v_lshlrev_b32 v28, 2, v2
    v_add_u32 v28, s60, v28
    s_cmp_eq_u32 s14, 0
    s_cbranch_scc0 K1_BROLE
    """)
    for (dst, sh) in ((32, "s58"), (34, "s59")):
        a(f"""
        v_lshrrev_b32 v36, {sh}, v18
        v_lshrrev_b32 v37, {sh}, v19
        v_lshrrev_b32 v38, {sh}, v20
        v_lshrrev_b32 v39, {sh}, v21
        v_lshlrev_b32 v36, 16, v36
        v_lshlrev_b32 v37, 16, v37
        v_lshlrev_b32 v38, 16, v38
        v_lshlrev_b32 v39, 16, v39
        v_mul_f32 v36, v24, v36
        v_mul_f32 v37, v24, v37
        """)
        cmul(a, dst, 38, 36, 40)
    a(f"""
    v_max3_f32 v36, |v32|, |v33|, |v34|
    v_max_f32 v36, v36, |v35|
    """)
    anchor(a, 42, 26, 27, None, 46, 47)
    anchor(a, 44, 26, 27, "0x43800000", 48, 49)
    dpp_reduce(a, "v_max_f32", [36])
    a(f"""
    v_readlane_b32 s62, v36, 63
    v_frexp_exp_i32_f32 v36, s62
    v_sub_u32 v37, 10, v36
    v_ldexp_f32 v50, v32, v37
    v_ldexp_f32 v51, v33, v37
    v_subrev_u32 v36, 13, v36
    v_ldexp_f32 v36, 1.0, v36
    s_lshl_b32 s62, s8, 2
    s_add_u32 s62, s62, {WS_KS}
    v_mov_b32 v37, s62
    v_cmp_eq_u32 vcc, 0, v2
    s_and_saveexec_b64 s[56:57], vcc
    global_store_dword v37, v36, s[34:35]
    s_mov_b64 exec, s[56:57]
    """)
    Q = lambda k: 50 + 2 * k
    R = lambda row: 66 + 2 * (row - 8)
    cnt = [0]

    def putA(row, reg):
        t = 92 + (cnt[0] % 6)
        cnt[0] += 1
        a(f"v_cvt_pk_f16_f32 v{t}, v{reg}, -v{reg+1}")
        a(f"ds_write_b32 v28, v{t} offset:{row*K1_ROW}")

    putA(0, Q(0))
    cmul(a, R(8), Q(0), 44, R(8))
    cmul(a, Q(1), Q(0), 42, Q(1))
    beta = [(12, 8), (14, 12), (16, 14), (17, 16), (18, 17), (19, 18), (20, 19)]
    putA(8, R(8))
    putA(1, Q(1))
    for k in range(2, 8):
        row, src = beta[k - 2]
        cmul(a, R(row), R(src), 44, R(row))
        cmul(a, Q(k), Q(k - 1), 42, Q(k))
        putA(row, R(row))
        putA(k, Q(k))
    row, src = beta[6]
    cmul(a, R(row), R(src), 44, R(row))
    cmul(a, R(9), Q(2), 44, R(9))
    cmul(a, R(10), Q(4), 44, R(10))
    cmul(a, R(11), Q(6), 44, R(11))
    putA(20, R(20))
    cmul(a, R(13), R(10), 44, R(13))
    putA(9, R(9))
    putA(10, R(10))
    cmul(a, R(15), R(13), 44, R(15))
    putA(11, R(11))
    putA(13, R(13))
    putA(15, R(15))
    a("s_branch K1_KDONE")
    a.label("K1_BROLE")
    a.reset()
    BO = 17408

    def putB(j, reg):
        t = 92 + (cnt[0] % 6)
        cnt[0] += 1
        a(f"v_cvt_pk_f16_f32 v{t}, v{reg}, v{reg+1}")
        a(f"ds_write_b32 v28, v{t} offset:{BO + j*K1_ROW}")

    anchor(a, 42, 26, 27, "0x41000000", 46, 47)
    a(f"""
    v_mov_b32 v92, 0x3c00
    ds_write_b32 v28, v92 offset:{BO}
    """)
    cnt[0] = 1
    cmul(a, 44, 42, 42, 44)
    putB(1, 42)
    prev = 44
    putB(2, 44)
    for k in range(1, 16):
        nxt = 48 + 2 * (k % 2)
        o = 52 + 2 * (k % 2)
        if k < 15:
            cmul(a, nxt, prev, 44, nxt)
        cmul(a, o, prev, 42, o)
        if k < 15:
            putB(2 * (k + 1), nxt)
        putB(2 * k + 1, o)
        prev = nxt
    a.label("K1_KDONE")
    a.reset()
    a("s_waitcnt lgkmcnt(0)")
    stamp(a, 6)
    a("s_barrier")
    stamp(a, 7)
    a(f"""
    v_and_b32 v24, 15, v2
    v_mul_u32_u24 v24, {K1_ROW}, v24
    v_lshrrev_b32 v25, 4, v2
    v_lshl_add_u32 v24, v25, 4, v24
    s_mul_i32 s60, s14, {16*K1_ROW}
    s_add_u32 s60, s60, s61
    s_mul_i32 s62, s13, {16*K1_ROW}
    s_add_u32 s62, s62, s61
    s_add_u32 s62, s62, {BO}
    v_add_u32 v25, s60, v24
    v_add_u32 v26, s62, v24
    """)
    for s in range(8):
        a(f"ds_read_b128 v[{32+8*s}:{35+8*s}], v25 offset:{64*s}")
        a(f"ds_read_b128 v[{36+8*s}:{39+8*s}], v26 offset:{64*s}")
    a("v_mov_b32 v96, 0\nv_mov_b32 v97, 0\nv_mov_b32 v98, 0\nv_mov_b32 v99, 0")
    for s in range(8):
        a(f"s_waitcnt lgkmcnt({14-2*s})")
        a(f"v_mfma_f32_16x16x32_f16 v[96:99], v[{32+8*s}:{35+8*s}], v[{36+8*s}:{39+8*s}], v[96:99]")
    for r in range(4):
        a(f"v_ldexp_f32 v{32+r}, v{96+r}, -8")
    for r in range(4):
        a(f"v_cvt_f16_f32 v{32+r}, v{32+r}")
    for r in range(4):
        a(f"ds_write_b16 v{110+r}, v{32+r}")
    a("s_waitcnt lgkmcnt(0)")
    stamp(a, 8)
    a("s_barrier")
    stamp(a, 9)
    for e in range(0, 8, 2):
        a(f"ds_read_u16_d16 v{32+e//2}, v{100+e}")
        a(f"ds_read_u16_d16_hi v{36+e//2}, v{101+e}")
    a(f"""
    v_lshlrev_b32 v24, 4, v0
    s_lshl_b32 s60, s2, 13
    s_add_u32 s60, s60, {WS_KT}
    v_add_u32 v24, s60, v24
    s_waitcnt lgkmcnt(0)
    v_or_b32 v32, v32, v36
    v_or_b32 v33, v33, v37
    v_or_b32 v34, v34, v38
    v_or_b32 v35, v35, v39
    global_store_dwordx4 v24, v[32:35], s[34:35]
    """)
    stamp(a, 10)
    stamp_flush(a, 0)
    a.label("K1_END")
    a("s_endpgm")


def descriptor(name, vgpr, sgpr=102):
    return f""".p2align 6
.amdhsa_kernel {name}
  .amdhsa_next_free_vgpr {vgpr}
  .amdhsa_next_free_sgpr {sgpr}
  .amdhsa_accum_offset {(vgpr+3)//4*4}
  .amdhsa_group_segment_fixed_size 0
  .amdhsa_kernarg_size 136
  .amdhsa_user_sgpr_count 2
  .amdhsa_user_sgpr_kernarg_segment_ptr 1
  .amdhsa_system_sgpr_workgroup_id_x 1
  .amdhsa_float_denorm_mode_32 3
.end_amdhsa_kernel
"""


def main(out):
    a = Asm()
    hdr = [f"; @launch kernel=k1_kernel grid=(256,1,1) block=(512,1,1) lds={K1_LDS}"]
    kernels = [("k1_kernel", 128)]
    gens = [gen_k1]
    try:
        import gen1b
        hdr += gen1b.HDR
        kernels += gen1b.KERNELS
        gens += gen1b.GENS
    except ImportError:
        pass
    for h in hdr:
        a.raw(h)
    a.raw('.amdgcn_target "amdgcn-amd-amdhsa--gfx950"')
    a.raw(".text")
    for g in gens:
        g(a)
    a.raw('.section .rodata,"a"')
    for k, v in kernels:
        a.raw(descriptor(k, v))
    open(out, "w").write(a.text())
    print("nops inserted:", a.nops_inserted)


if __name__ == "__main__":
    main(sys.argv[1] if len(sys.argv) > 1 else "k.s")
```

```python
import sys, os
from asmlib import Asm

NAME = "parallel_sum__ssm_conv_s4__moe_arch_mod__prompt"
MB = 1 << 20
STAMP = os.environ.get("STAMP", "0") == "1"
WS_GR = 0x0
WS_HG = 0x8000
WS_TG = 0x10000
WS_W0 = 0x30000
WS_FL = 0x20000
WS_XC = 1 * MB
WS_STAMP = 16 * MB

LOG2E = "0x3fb8aa3b"
NEGL2E = "0xbfb8aa3b"
SPIN_MAX = 1 << 18
CODE_SPAN = [0x1000]

ROW = 544
A_SZ = 21 * ROW
AB_CH = A_SZ + 32 * ROW
UCOPY = 4160
U_CH = 4 * UCOPY
L_PA = 2 * U_CH
L_PB = L_PA + 16384
L_K = L_PB + 16384
K_CH = 4608
L_TAB = L_K + 2 * K_CH
L_MOE = L_TAB + 3072
L_MP = L_MOE + 8192
L_MISC = L_MP + 4096
L_KEYS = L_MISC
L_NONCE = L_MISC + 64
L_KS = L_MISC + 72
L_FLAG = L_MISC + 96
LDS_SIZE = L_MISC + 144

P_X, P_ARE, P_AIM, P_BRE, P_BIM, P_CRE, P_CIM, P_LDT = [f"s[{16+2*i}:{17+2*i}]" for i in range(8)]
P_DSK, P_WR, P_OUT, P_DBG, P_WS = "s[32:33]", "s[36:37]", "s[44:45]", "s[46:47]", "s[48:49]"


def stamp(a, idx):
    if STAMP:
        a(f"s_memrealtime s[{64+2*idx}:{65+2*idx}]")


def stamp_init(a):
    if STAMP:
        for i in range(64, 96, 2):
            a(f"s_mov_b64 s[{i}:{i+1}], 0")
        stamp(a, 0)


def finish(a):
    if STAMP:
        a("s_waitcnt vmcnt(0)")
        stamp(a, 15)
        a(f"""
        s_lshl_b32 s98, s2, 4
        s_add_u32 s98, s98, s3
        s_lshl_b32 s98, s98, 7
        s_add_u32 s98, s98, {WS_STAMP}
        s_waitcnt lgkmcnt(0)
        s_mov_b64 exec, 1
        v_mov_b32 v0, s98
        """)
        for q in range(8):
            for k in range(4):
                a(f"v_mov_b32 v{4+k}, s{64+4*q+k}")
            a(f"global_store_dwordx4 v0, v[4:7], {P_WS} offset:{16*q}")
            a("s_nop 1")
    a("s_endpgm")


def cmul(a, R, X, Y, T):
    a(f"v_pk_mul_f32 v[{T}:{T+1}], v[{X}:{X+1}], v[{Y}:{Y+1}] op_sel:[0,0] op_sel_hi:[0,1]")
    a(f"v_pk_fma_f32 v[{R}:{R+1}], v[{X}:{X+1}], v[{Y}:{Y+1}], v[{T}:{T+1}] op_sel:[1,1,0] op_sel_hi:[1,0,1] neg_lo:[1,0,0]")


ROWSTEPS = ["quad_perm:[1,0,3,2] row_mask:0xf bank_mask:0xf",
            "quad_perm:[2,3,0,1] row_mask:0xf bank_mask:0xf",
            "row_half_mirror row_mask:0xf bank_mask:0xf",
            "row_mirror row_mask:0xf bank_mask:0xf"]


def dpp_reduce(a, op, regs):
    for s in ROWSTEPS + ["row_bcast:15 row_mask:0xa bank_mask:0xf", "row_bcast:31 row_mask:0xc bank_mask:0xf"]:
        for r in regs:
            a(f"{op}_dpp v{r}, v{r}, v{r} {s}")


def half_reduce_add(a, regs, tmps):
    for s in ROWSTEPS:
        for r in regs:
            a(f"v_add_f32_dpp v{r}, v{r}, v{r} {s}")
    for r, t in zip(regs, tmps):
        a(f"v_mov_b32 v{t}, v{r}")
    for r, t in zip(regs, tmps):
        a(f"v_permlane16_swap_b32 v{r}, v{t}")
    for r, t in zip(regs, tmps):
        a(f"v_add_f32 v{r}, v{r}, v{t}")


def anchor(a, P, vA, vB, lf, t0, t1):
    if lf is None:
        a(f"v_exp_f32 v{t0}, v{vA}")
        a(f"v_fract_f32 v{t1}, v{vB}")
    else:
        a(f"v_mul_f32 v{t0}, {lf}, v{vA}")
        a(f"v_mul_f32 v{t1}, {lf}, v{vB}")
        a(f"v_exp_f32 v{t0}, v{t0}")
        a(f"v_fract_f32 v{t1}, v{t1}")
    a(f"v_cos_f32 v{P}, v{t1}")
    a(f"v_sin_f32 v{P+1}, v{t1}")
    a(f"v_mul_f32 v{P}, v{t0}, v{P}")
    a(f"v_mul_f32 v{P+1}, v{t0}, v{P+1}")


def unpack(a, lo, hi, src):
    a(f"v_lshlrev_b32 v{lo}, 16, v{src}")
    a(f"v_and_b32 v{hi}, 0xffff0000, v{src}")


def lds_wait_flag(a, tag, off, val, vaddr, vtmp):
    a(f"""
    v_mov_b32 v{vaddr}, {L_FLAG+off}
    s_mov_b32 s62, 0
    """)
    a.label(f"LW_{tag}")
    a.reset()
    a(f"""
    ds_read_b32 v{vtmp}, v{vaddr}
    s_add_u32 s62, s62, 1
    s_waitcnt lgkmcnt(0)
    v_readfirstlane_b32 s63, v{vtmp}
    s_cmp_ge_u32 s63, {val}
    s_cbranch_scc1 LWD_{tag}
    s_sleep 1
    s_cmp_lt_u32 s62, {SPIN_MAX}
    s_cbranch_scc1 LW_{tag}
    """)
    a.label(f"LWD_{tag}")
    a.reset()


def lds_signal(a, off, vaddr, vtmp):
    a(f"""
    v_mov_b32 v{vaddr}, {L_FLAG+off}
    v_mov_b32 v{vtmp}, 1
    s_mov_b64 exec, 1
    ds_add_u32 v{vaddr}, v{vtmp}
    s_mov_b64 exec, -1
    """)


def piece_hash(a, dst, d, vmul, t):
    for D, B in zip(dst, d):
        a(f"v_alignbit_b32 v{t}, v{B+1}, v{B+1}, 25")
        a(f"v_alignbit_b32 v{t+1}, v{B+2}, v{B+2}, 19")
        a(f"v_alignbit_b32 v{D}, v{B+3}, v{B+3}, 10")
        a(f"v_add3_u32 v{t}, v{t}, v{t+1}, v{B}")
        a(f"v_add_u32 v{D}, v{D}, v{t}")
        a(f"v_mul_lo_u32 v{D}, v{D}, v{vmul}")
    for s in ROWSTEPS:
        for D in dst:
            a(f"v_add_u32_dpp v{D}, v{D}, v{D} {s}")


def lbar(a, n, va=158, vb=159, sleep=False):
    a("s_waitcnt lgkmcnt(0)")
    a(f"""
    v_mov_b32 v{va}, {L_FLAG+12}
    v_mov_b32 v{vb}, 1
    s_mov_b64 exec, 1
    ds_add_u32 v{va}, v{vb}
    s_mov_b64 exec, -1
    s_mov_b32 s62, 0
    """)
    a.label(f"LB_{n}")
    a.reset()
    a(f"""
    ds_read_b32 v{vb}, v{va}
    s_add_u32 s62, s62, 1
    s_waitcnt lgkmcnt(0)
    v_readfirstlane_b32 s63, v{vb}
    s_cmp_ge_u32 s63, {8*n}
    s_cbranch_scc1 LBD_{n}
    {"s_sleep 1" if sleep else ""}
    s_cmp_lt_u32 s62, {SPIN_MAX}
    s_cbranch_scc1 LB_{n}
    """)
    a.label(f"LBD_{n}")
    a.reset()


XG = 160
XN = 164


def epilogue(a, tag, Lp):
    a(f"""
    s_lshl_b32 s13, s12, 12
    s_add_u32 s13, s13, {Lp}
    v_lshl_add_u32 v5, v1, 4, s13
    ds_read_b128 v[8:11], v5
    ds_read_b128 v[12:15], v5 offset:1024
    ds_read_b128 v[16:19], v5 offset:2048
    ds_read_b128 v[20:23], v5 offset:3072
    v_mov_b32 v6, {L_KS}
    ds_read_b64 v[24:25], v6
    """)
    for r in range(4):
        unpack(a, 32 + 2 * r, 33 + 2 * r, XN + r)
    for r in range(4):
        a(f"v_pk_mul_f32 v[{40+2*r}:{41+2*r}], v[{32+2*r}:{33+2*r}], v[26:27]")
    for r in range(4):
        a(f"v_cvt_pk_bf16_f32 v{56+r}, v{40+2*r}, v{41+2*r}")
    for r in range(4):
        unpack(a, 40 + 2 * r, 41 + 2 * r, 56 + r)
    for r in range(4):
        unpack(a, 48 + 2 * r, 49 + 2 * r, XG + r)
    a("v_mov_b32 v28, 0x3a000000\nv_mov_b32 v29, 0x3a000000")
    a("s_waitcnt lgkmcnt(0)")
    for r in range(4):
        a(f"v_add_f32 v{60+2*r}, v{8+r}, v{12+r}")
        a(f"v_add_f32 v{61+2*r}, v{16+r}, v{20+r}")
    for r in range(4):
        a(f"v_pk_mul_f32 v[{60+2*r}:{61+2*r}], v[{60+2*r}:{61+2*r}], v[24:25]")
    for r in range(4):
        a(f"v_cvt_pk_bf16_f32 v{56+r}, v{60+2*r}, v{61+2*r}")
    for r in range(4):
        unpack(a, 60 + 2 * r, 61 + 2 * r, 56 + r)
    for r in range(4):
        a(f"v_pk_add_f32 v[{60+2*r}:{61+2*r}], v[{60+2*r}:{61+2*r}], v[{40+2*r}:{41+2*r}]")
    for r in range(4):
        a(f"v_cvt_pk_bf16_f32 v{56+r}, v{60+2*r}, v{61+2*r}")
    for r in range(4):
        unpack(a, 60 + 2 * r, 61 + 2 * r, 56 + r)
    for r in range(4):
        a(f"v_pk_add_f32 v[{60+2*r}:{61+2*r}], v[{60+2*r}:{61+2*r}], v[{48+2*r}:{49+2*r}]")
    for r in range(4):
        a(f"v_cvt_pk_bf16_f32 v{56+r}, v{60+2*r}, v{61+2*r}")
    for r in range(4):
        unpack(a, 60 + 2 * r, 61 + 2 * r, 56 + r)
    for r in range(4):
        a(f"v_pk_fma_f32 v[{60+2*r}:{61+2*r}], v[{32+2*r}:{33+2*r}], v[28:29], v[{60+2*r}:{61+2*r}]")
    for r in range(4):
        a(f"v_cvt_pk_bf16_f32 v{68+r}, v{60+2*r}, v{61+2*r}")
    a(f"""
    s_lshr_b32 s50, s8, 8
    s_lshr_b32 s51, s9, 8
    s_cmp_eq_u32 s50, s14
    s_cselect_b32 s52, 1, 0
    s_cmp_eq_u32 s51, s14
    s_cselect_b32 s53, 1, 0
    s_or_b32 s54, s52, s53
    s_cmp_eq_u32 s54, 0
    s_cbranch_scc0 EPS_{tag}
    """)
    for r in range(4):
        a(f"global_store_dword v3, v{68+r}, {P_OUT} offset:{1024*r}")
    a(f"s_branch EPD_{tag}")
    a.label(f"EPS_{tag}")
    a.reset()
    a(f"""
    s_lshl_b32 s55, s4, 4
    s_add_u32 s55, s55, {WS_TG}
    v_mov_b32 v74, 0
    v_mov_b32 v75, s10
    """)
    for r in range(4):
        a(f"""
        v_add_u32 v7, {r}, v4
        v_cmp_eq_u32 s[50:51], s8, v7
        v_cmp_eq_u32 s[52:53], s9, v7
        v_mov_b32 v72, v{56+r}
        v_mov_b32 v73, v{XN+r}
        v_mov_b32 v76, s55
        v_mov_b32 v77, 0x1000
        s_or_b64 s[56:57], s[50:51], s[52:53]
        v_cndmask_b32 v77, 0, v77, s[52:53]
        v_add_u32 v76, v76, v77
        s_andn2_b64 exec, exec, s[56:57]
        global_store_dword v3, v{68+r}, {P_OUT} offset:{1024*r}
        s_mov_b64 exec, s[56:57]
        s_cbranch_execz EPN_{tag}_{r}
        global_store_dwordx4 v76, v[72:75], {P_WS} sc0 sc1
        """)
        a.label(f"EPN_{tag}_{r}")
        a.reset()
        a("s_mov_b64 exec, -1\ns_nop 1")
    a.label(f"EPD_{tag}")
    a.reset()


def gen(a):
    K = NAME + "_kernel"
    a.raw(".globl " + K)
    a.raw(".p2align 8")
    a.raw(f".type {K},@function")
    a.label(K)
    a.reset()
    a(f"""
    s_cmp_ge_u32 s2, 256
    s_cbranch_scc1 L_END
    s_getpc_b64 s[100:101]
    """)
    stamp_init(a)
    a(f"""
    s_load_dwordx16 s[16:31], s[0:1], 0
    s_load_dwordx16 s[32:47], s[0:1], 64
    s_load_dwordx2 s[48:49], s[0:1], 128
    v_lshrrev_b32 v2, 6, v0
    v_and_b32 v1, 63, v0
    v_readfirstlane_b32 s3, v2
    s_and_b32 s5, s2, 7
    s_lshr_b32 s6, s2, 3
    s_lshl_b32 s4, s5, 5
    s_add_u32 s4, s4, s6
    s_cmp_ge_u32 s3, 8
    s_cbranch_scc1 L_MOE
    """)
    a(f"""
    s_bfe_u32 s7, s3, 0x10001
    s_and_b32 s13, s3, 1
    s_lshl_b32 s8, s4, 1
    s_add_u32 s8, s8, s7
    s_lshl_b32 s9, s8, 8
    v_lshlrev_b32 v5, 2, v1
    v_add_u32 v5, s9, v5
    s_lshl_b32 s11, s4, 2
    v_add_u32 v4, 256, v0
    v_and_b32 v4, 511, v4
    v_lshlrev_b32 v4, 2, v4
    v_lshlrev_b32 v3, 10, v4
    v_add_u32 v3, s11, v3
    s_cmp_ge_u32 s3, 4
    s_cbranch_scc1 L_BW
    """)
    a(f"""
    s_setprio 3
    v_and_b32 v6, 31, v1
    v_lshlrev_b32 v6, 4, v6
    v_lshrrev_b32 v7, 5, v1
    s_lshl_b32 s12, s2, 3
    s_lshl_b32 s14, s3, 1
    s_add_u32 s12, s12, s14
    v_add_u32 v7, s12, v7
    v_lshl_add_u32 v7, v7, 10, v6
    s_waitcnt lgkmcnt(0)
    global_load_dwordx4 v[8:11], v7, {P_X}
    global_load_dwordx4 v[12:15], v7, {P_X} offset:512
    global_load_dwordx4 v[16:19], v6, {P_WR}
    global_load_dwordx4 v[20:23], v6, {P_WR} offset:512
    s_load_dword s54, {P_WS}, {WS_W0}
    global_load_dword v100, v5, {P_ARE}
    global_load_dword v101, v5, {P_AIM}
    global_load_dword v102, v5, {P_BRE}
    global_load_dword v103, v5, {P_BIM}
    global_load_dword v104, v5, {P_CRE}
    global_load_dword v105, v5, {P_CIM}
    s_load_dword s10, {P_LDT}, s11
    s_mov_b32 s50, 0
    s_mov_b32 s51, -1
    v_mov_b32 v28, 0x3b000000
    s_barrier
    """)
    stamp(a, 1)
    a("s_waitcnt vmcnt(8)")
    stamp(a, 2)
    lds_signal(a, 16, 24, 25)
    for k in range(8):
        unpack(a, 32 + 2 * k, 33 + 2 * k, 8 + k)
    a(f"""
    v_readlane_b32 s52, v32, 0
    v_readlane_b32 s53, v32, 32
    v_mov_b32 v24, s52
    v_mov_b32 v25, s53
    v_cndmask_b32 v24, v24, v25, s[50:51]
    v_mov_b32 v25, v24
    """)
    for k in range(8):
        a(f"v_pk_add_f32 v[{48+2*k}:{49+2*k}], v[{32+2*k}:{33+2*k}], v[24:25] neg_lo:[0,1] neg_hi:[0,1]")
    a(f"""
    v_pk_add_f32 v[64:65], v[32:33], v[34:35]
    v_pk_add_f32 v[66:67], v[36:37], v[38:39]
    v_pk_add_f32 v[68:69], v[40:41], v[42:43]
    v_pk_add_f32 v[70:71], v[44:45], v[46:47]
    v_pk_mul_f32 v[72:73], v[48:49], v[48:49]
    v_pk_mul_f32 v[74:75], v[50:51], v[50:51]
    v_pk_add_f32 v[64:65], v[64:65], v[66:67]
    v_pk_add_f32 v[68:69], v[68:69], v[70:71]
    v_pk_fma_f32 v[72:73], v[52:53], v[52:53], v[72:73]
    v_pk_fma_f32 v[74:75], v[54:55], v[54:55], v[74:75]
    v_pk_add_f32 v[64:65], v[64:65], v[68:69]
    v_pk_fma_f32 v[72:73], v[56:57], v[56:57], v[72:73]
    v_pk_fma_f32 v[74:75], v[58:59], v[58:59], v[74:75]
    v_add_f32 v64, v64, v65
    v_pk_fma_f32 v[72:73], v[60:61], v[60:61], v[72:73]
    v_pk_fma_f32 v[74:75], v[62:63], v[62:63], v[74:75]
    v_pk_add_f32 v[72:73], v[72:73], v[74:75]
    v_add_f32 v72, v72, v73
    """)
    half_reduce_add(a, [64, 72], [65, 73])
    a(f"""
    v_mul_f32 v64, v64, v28
    v_mul_f32 v72, v72, v28
    v_sub_f32 v65, v64, v24
    v_fma_f32 v72, -v65, v65, v72
    v_max_f32 v72, 0, v72
    v_cvt_pk_bf16_f32 v64, v64, v72
    v_and_b32 v72, 0xffff0000, v64
    v_lshlrev_b32 v66, 16, v64
    v_add_f32 v72, 0x3727c5ac, v72
    v_cvt_pk_bf16_f32 v72, v72, v72
    v_lshlrev_b32 v72, 16, v72
    v_sqrt_f32 v72, v72
    v_mov_b32 v67, v66
    v_cvt_pk_bf16_f32 v72, v72, v72
    v_lshlrev_b32 v72, 16, v72
    v_rcp_f32 v68, v72
    v_and_b32 v64, 0xffff, v64
    v_or_b32 v64, v64, v72
    v_mov_b32 v69, v68
    """)
    for k in range(8):
        a(f"v_pk_add_f32 v[{48+2*k}:{49+2*k}], v[{32+2*k}:{33+2*k}], v[66:67] neg_lo:[0,1] neg_hi:[0,1]")
    for k in range(8):
        a(f"v_cvt_pk_bf16_f32 v{8+k}, v{48+2*k}, v{49+2*k}")
    for k in range(8):
        unpack(a, 48 + 2 * k, 49 + 2 * k, 8 + k)
    for k in range(8):
        a(f"v_pk_mul_f32 v[{48+2*k}:{49+2*k}], v[{48+2*k}:{49+2*k}], v[68:69]")
    for k in range(8):
        a(f"v_cvt_pk_bf16_f32 v{8+k}, v{48+2*k}, v{49+2*k}")
    a("s_waitcnt vmcnt(6)")
    a("v_mov_b32 v70, 0\nv_mov_b32 v71, 0")
    for k in range(8):
        a(f"v_dot2c_f32_bf16 v{70+(k&1)}, v{8+k}, v{16+k}")
    a("v_add_f32 v70, v70, v71")
    half_reduce_add(a, [70], [71])
    a(f"""
    v_cvt_pk_bf16_f32 v70, v70, v70
    v_readlane_b32 s52, v64, 32
    v_readlane_b32 s53, v70, 32
    v_and_b32 v66, 0xffff, v70
    s_and_b32 s53, s53, 0xffff0000
    v_mov_b32 v65, s52
    v_or_b32 v66, s53, v66
    s_lshl_b32 s12, s12, 3
    v_mov_b32 v71, s12
    s_waitcnt lgkmcnt(0)
    s_add_u32 s54, s54, 0x9e3779b1
    v_mov_b32 v67, s54
    v_mov_b32 v68, s54
    s_mov_b64 exec, 1
    global_store_dwordx4 v71, v[64:67], {P_WS} sc0 sc1
    v_mov_b32 v71, {L_NONCE}
    ds_write_b32 v71, v68
    v_mov_b32 v71, {L_FLAG+20}
    v_mov_b32 v68, 1
    ds_add_u32 v71, v68
    s_mov_b64 exec, -1
    s_setprio 0
    """)
    stamp(a, 3)
    a("s_waitcnt vmcnt(1)")
    def kgen_common():
        a(f"""
        s_waitcnt lgkmcnt(0)
        s_lshl_b32 s57, s7, 4
        s_lshr_b32 s10, s10, s57
        s_lshl_b32 s10, s10, 16
        v_mov_b32 v24, {LOG2E}
        v_mul_f32 v24, s10, v24
        v_exp_f32 v24, v24
        s_lshl_b32 s58, s13, 4
        s_sub_u32 s59, 16, s58
        v_cvt_pk_bf16_f32 v24, v24, v24
        v_lshlrev_b32 v24, 16, v24
        v_lshrrev_b32 v26, s58, v100
        v_lshrrev_b32 v27, s58, v101
        v_lshlrev_b32 v26, 16, v26
        v_lshlrev_b32 v27, 16, v27
        v_mul_f32 v26, v24, v26
        v_mul_f32 v27, v24, v27
        v_mul_f32 v26, {LOG2E}, v26
        v_mul_f32 v27, 0.15915494, v27
        s_lshl_b32 s60, s13, 8
        s_mul_i32 s61, s7, {AB_CH}
        s_add_u32 s60, s60, s61
        v_lshlrev_b32 v28, 2, v1
        v_add_u32 v28, s60, v28
        """)
    kgen_common()
    for (dst, sh) in ((32, "s58"), (34, "s59")):
        a(f"""
        v_lshrrev_b32 v36, {sh}, v102
        v_lshrrev_b32 v37, {sh}, v103
        v_lshrrev_b32 v38, {sh}, v104
        v_lshrrev_b32 v39, {sh}, v105
        v_lshlrev_b32 v36, 16, v36
        v_lshlrev_b32 v37, 16, v37
        v_lshlrev_b32 v38, 16, v38
        v_lshlrev_b32 v39, 16, v39
        v_mul_f32 v36, v24, v36
        v_mul_f32 v37, v24, v37
        """)
        cmul(a, dst, 38, 36, 40)
    a(f"""
    v_max3_f32 v36, |v32|, |v33|, |v34|
    v_max_f32 v36, v36, |v35|
    """)
    anchor(a, 42, 26, 27, None, 46, 47)
    anchor(a, 44, 26, 27, "0x43800000", 48, 49)
    dpp_reduce(a, "v_max_f32", [36])
    a(f"""
    v_readlane_b32 s62, v36, 63
    v_frexp_exp_i32_f32 v36, s62
    v_sub_u32 v37, 10, v36
    v_ldexp_f32 v50, v32, v37
    v_ldexp_f32 v51, v33, v37
    v_subrev_u32 v36, 13, v36
    v_ldexp_f32 v36, 1.0, v36
    s_lshl_b32 s62, s7, 2
    s_add_u32 s62, s62, {L_KS}
    v_mov_b32 v37, s62
    ds_write_b32 v37, v36
    """)
    Q = lambda k: 50 + 2 * k
    R = lambda row: 66 + 2 * (row - 8)
    cnt = [0]

    def putA(row, reg):
        t = 92 + (cnt[0] % 6)
        cnt[0] += 1
        a(f"v_cvt_pk_f16_f32 v{t}, v{reg}, -v{reg+1}")
        a(f"ds_write_b32 v28, v{t} offset:{row*ROW}")

    putA(0, Q(0))
    cmul(a, R(8), Q(0), 44, R(8))
    cmul(a, Q(1), Q(0), 42, Q(1))
    beta = [(12, 8), (14, 12), (16, 14), (17, 16), (18, 17), (19, 18), (20, 19)]
    putA(8, R(8))
    putA(1, Q(1))
    for k in range(2, 8):
        row, src = beta[k - 2]
        cmul(a, R(row), R(src), 44, R(row))
        cmul(a, Q(k), Q(k - 1), 42, Q(k))
        putA(row, R(row))
        putA(k, Q(k))
    row, src = beta[6]
    cmul(a, R(row), R(src), 44, R(row))
    cmul(a, R(9), Q(2), 44, R(9))
    cmul(a, R(10), Q(4), 44, R(10))
    cmul(a, R(11), Q(6), 44, R(11))
    putA(20, R(20))
    cmul(a, R(13), R(10), 44, R(13))
    putA(9, R(9))
    putA(10, R(10))
    cmul(a, R(15), R(13), 44, R(15))
    putA(11, R(11))
    putA(13, R(13))
    putA(15, R(15))
    a("s_branch L_KDONE")
    a.label("L_BW")
    a.reset()
    a(f"""
    s_waitcnt lgkmcnt(0)
    global_load_dword v100, v5, {P_ARE}
    global_load_dword v101, v5, {P_AIM}
    s_load_dword s10, {P_LDT}, s11
    """)
    a(f"""
    v_mov_b32 v106, 0
    v_mov_b32 v107, 0
    s_cmp_ge_u32 s3, 6
    s_cbranch_scc1 L_LOADER
    v_mov_b32 v8, 0
    v_mov_b32 v9, 0
    v_mov_b32 v10, 0
    v_mov_b32 v11, 0
    v_lshrrev_b32 v12, 5, v1
    v_mul_u32_u24 v12, {K_CH}, v12
    v_and_b32 v13, 31, v1
    v_lshl_add_u32 v12, v13, 4, v12
    v_add_u32 v12, {L_K+4096}, v12
    ds_write_b128 v12, v[8:11]
    s_barrier
    """)
    stamp(a, 1)
    a("s_waitcnt vmcnt(0)")
    stamp(a, 2)
    a("s_branch L_BTASK")
    a.label("L_LOADER")
    a.reset()
    a(f"""
    v_and_b32 v8, 15, v1
    v_lshrrev_b32 v9, 4, v1
    s_and_b32 s12, s3, 1
    s_lshl_b32 s14, s12, 2
    v_add_u32 v9, s14, v9
    s_lshl_b32 s14, s6, 16
    s_lshl_b32 s15, s5, 7
    s_add_u32 s14, s14, s15
    v_lshlrev_b32 v10, 12, v8
    v_lshl_add_u32 v10, v9, 4, v10
    v_add_u32 v10, s14, v10
    global_load_dwordx4 v[112:115], v10, {P_X}
    global_load_dwordx4 v[116:119], v10, {P_X} offset:1024
    global_load_dwordx4 v[120:123], v10, {P_X} offset:2048
    global_load_dwordx4 v[124:127], v10, {P_X} offset:3072
    s_lshl_b32 s14, s5, 18
    s_lshl_b32 s15, s6, 8
    s_add_u32 s14, s14, s15
    s_add_u32 s14, s14, {WS_XC}
    v_lshlrev_b32 v11, 15, v9
    v_lshl_add_u32 v11, v8, 4, v11
    v_add_u32 v11, s14, v11
    v_add_u32 v12, 0x2000, v11
    v_add_u32 v13, 0x4000, v11
    v_add_u32 v14, 0x6000, v11
    s_lshl_b32 s14, s4, 7
    s_add_u32 s14, s14, {WS_FL}
    v_lshl_add_u32 v106, v9, 4, s14
    v_lshl_add_u32 v107, v8, 1, 1
    s_barrier
    """)
    stamp(a, 1)
    a("s_waitcnt vmcnt(0)")
    stamp(a, 2)
    for k in range(4):
        for r in range(4):
            a(f"v_mov_b32 v{136+4*k+r}, v{112+4*r+k}")
    for k in range(4):
        a(f"global_store_dwordx4 v{11+k}, v[{136+4*k}:{139+4*k}], {P_WS} sc0 sc1")
    piece_hash(a, [128, 129, 130, 131], [136, 140, 144, 148], 107, 132)
    a.label("L_BTASK")
    a.reset()
    kgen_common()

    def putB(j, reg):
        t = 92 + (cnt[0] % 6)
        cnt[0] += 1
        a(f"v_cvt_pk_f16_f32 v{t}, v{reg}, v{reg+1}")
        a(f"ds_write_b32 v28, v{t} offset:{A_SZ + j*ROW}")

    anchor(a, 42, 26, 27, "0x41000000", 46, 47)
    a(f"""
    v_mov_b32 v92, 0x3c00
    ds_write_b32 v28, v92 offset:{A_SZ}
    """)
    cnt[0] = 1
    cmul(a, 44, 42, 42, 44)
    putB(1, 42)
    prev = 44
    putB(2, 44)
    for k in range(1, 16):
        nxt = 48 + 2 * (k % 2)
        o = 52 + 2 * (k % 2)
        if k < 15:
            cmul(a, nxt, prev, 44, nxt)
        cmul(a, o, prev, 42, o)
        if k < 15:
            putB(2 * (k + 1), nxt)
        putB(2 * k + 1, o)
        prev = nxt
    a(f"""
    s_cmp_ge_u32 s3, 6
    s_cbranch_scc0 L_KDONE
    """)
    lds_wait_flag(a, "N", 20, 1, 107, 108)
    a(f"""
    v_mov_b32 v107, {L_NONCE}
    ds_read_b32 v108, v107
    s_waitcnt lgkmcnt(0)
    v_add_u32 v128, v128, v108
    v_add_u32 v129, v129, v108
    v_add_u32 v130, v130, v108
    v_add_u32 v131, v131, v108
    s_mov_b32 exec_lo, 0x00010001
    s_mov_b32 exec_hi, 0x00010001
    global_store_dwordx4 v106, v[128:131], {P_WS} sc0 sc1
    s_mov_b64 exec, -1
    """)
    stamp(a, 3)
    a.label("L_KDONE")
    a.reset()
    a(f"""
    s_lshr_b32 s7, s3, 2
    s_bfe_u32 s14, s3, 0x10001
    s_mul_i32 s61, s7, {AB_CH}
    v_and_b32 v24, 15, v1
    v_mul_u32_u24 v26, {ROW}, v24
    v_lshrrev_b32 v25, 4, v1
    v_lshl_add_u32 v26, v25, 4, v26
    s_mul_i32 s60, s14, {16*ROW}
    s_add_u32 s60, s60, s61
    s_mul_i32 s62, s13, {16*ROW}
    s_add_u32 s62, s62, s61
    s_add_u32 s62, s62, {A_SZ}
    v_add_u32 v29, s60, v26
    v_add_u32 v30, s62, v26
    s_lshl_b32 s15, s13, 4
    v_add_u32 v24, s15, v24
    s_mul_i32 s60, s7, 1536
    s_add_u32 s60, s60, {L_TAB}
    v_cmp_eq_u32 s[50:51], 1, v25
    v_cmp_eq_u32 s[52:53], 2, v25
    v_cmp_eq_u32 s[54:55], 3, v25
    v_cmp_eq_u32 s[56:57], 0, v25
    v_cmp_eq_u32 s[58:59], 16, v1
    s_cmp_eq_u32 s14, 0
    s_cbranch_scc0 L_TA1
    v_mov_b32 v26, 3
    v_cndmask_b32 v26, v26, 2, s[52:53]
    v_cndmask_b32 v26, v26, 1, s[54:55]
    v_lshlrev_b32 v26, v26, v24
    """)
    for r in range(4):
        b0, b1, b2, b3 = r, 4 + r, 256 + r, 384 + (r & 1) + 64 * (r >> 1)
        a(f"""
        v_mov_b32 v27, {b0}
        v_cndmask_b32 v27, v27, {b1}, s[50:51]
        v_mov_b32 v28, {b2}
        v_cndmask_b32 v27, v27, v28, s[52:53]
        v_mov_b32 v28, {b3}
        v_cndmask_b32 v27, v27, v28, s[54:55]
        v_add_u32 v27, v27, v26
        v_lshlrev_b32 v27, 1, v27
        v_add_u32 v{110+r}, s60, v27
        """)
    a("s_branch L_TAD")
    a.label("L_TA1")
    a.reset()
    for r in range(4):
        a(f"""
        v_mov_b32 v27, 700
        v_add_u32 v28, {512+32*r}, v24
        v_cndmask_b32 v27, v27, v28, s[56:57]
        """)
        if r == 0:
            a(f"""
            s_cmp_eq_u32 s13, 0
            s_cselect_b64 s[50:51], s[58:59], 0
            v_mov_b32 v28, 640
            v_cndmask_b32 v27, v27, v28, s[50:51]
            """)
        a(f"""
        v_lshlrev_b32 v27, 1, v27
        v_add_u32 v{110+r}, s60, v27
        """)
    a.label("L_TAD")
    a.reset()
    stamp(a, 4)
    lbar(a, 1, sleep=True)
    stamp(a, 5)
    for s in range(8):
        a(f"ds_read_b128 v[{32+8*s}:{35+8*s}], v29 offset:{64*s}")
        a(f"ds_read_b128 v[{36+8*s}:{39+8*s}], v30 offset:{64*s}")
    a("v_mov_b32 v96, 0\nv_mov_b32 v97, 0\nv_mov_b32 v98, 0\nv_mov_b32 v99, 0")
    a(f"""
    v_and_b32 v22, 0xff, v0
    v_lshlrev_b32 v22, 3, v22
    v_sub_u32 v22, 0x7ff, v22
    v_lshrrev_b32 v23, 8, v0
    v_mul_u32_u24 v23, 1536, v23
    v_add_u32 v23, {L_TAB}, v23
    s_movk_i32 s12, 128
    """)
    for e in range(0, 8, 2):
        a(f"""
        v_subrev_u32 v24, {e}, v22
        v_subrev_u32 v25, {e+1}, v22
        v_cvt_f32_u32 v26, v24
        v_cvt_f32_u32 v27, v25
        v_cvt_pk_bf16_f32 v26, v26, v27
        v_and_b32 v28, 0xffff, v26
        v_lshrrev_b32 v31, 16, v26
        v_subrev_u32 v28, {0x4300-128}, v28
        v_subrev_u32 v31, {0x4300-128}, v31
        v_med3_i32 v28, v28, v24, s12
        v_med3_i32 v31, v31, v25, s12
        v_lshl_add_u32 v{100+e}, v28, 1, v23
        v_lshl_add_u32 v{101+e}, v31, 1, v23
        """)
    for s in range(8):
        a(f"s_waitcnt lgkmcnt({14-2*s})")
        a(f"v_mfma_f32_16x16x32_f16 v[96:99], v[{32+8*s}:{35+8*s}], v[{36+8*s}:{39+8*s}], v[96:99]")
    a(f"""
    s_lshl_b32 s50, s5, 12
    s_lshl_b32 s51, s6, 2
    s_add_u32 s50, s50, s51
    s_add_u32 s50, s50, {WS_FL}
    v_lshrrev_b32 v124, 6, v4
    v_lshl_add_u32 v124, v124, 7, s50
    s_lshl_b32 s50, s4, 13
    s_add_u32 s50, s50, {WS_XC}
    v_lshl_add_u32 v126, v4, 2, s50
    global_load_dword v125, v124, {P_WS} sc0 sc1
    global_load_dwordx4 v[{XG}:{XG+3}], v126, {P_WS} sc0 sc1
    v_lshlrev_b32 v6, 3, v4
    global_load_dwordx4 v[116:119], v6, {P_WS} sc0 sc1
    global_load_dwordx4 v[120:123], v6, {P_WS} offset:16 sc0 sc1
    s_load_dword s15, {P_DSK}, s11
    """)
    for r in range(4):
        a(f"v_ldexp_f32 v{32+r}, v{96+r}, -8")
    for r in range(4):
        a(f"v_cvt_f16_f32 v{32+r}, v{32+r}")
    for r in range(4):
        a(f"ds_write_b16 v{110+r}, v{32+r}")
    a(f"""
    v_mov_b32 v7, {L_NONCE}
    ds_read_b32 v7, v7
    s_waitcnt lgkmcnt(0)
    """)
    stamp(a, 6)
    lbar(a, 2)
    for e in range(0, 8, 2):
        a(f"ds_read_u16_d16 v{32+e//2}, v{100+e}")
        a(f"ds_read_u16_d16_hi v{36+e//2}, v{101+e}")
    a(f"""
    v_readfirstlane_b32 s10, v7
    v_lshrrev_b32 v24, 8, v0
    v_mul_u32_u24 v24, {K_CH}, v24
    v_and_b32 v25, 0xff, v0
    v_lshl_add_u32 v24, v25, 4, v24
    v_add_u32 v24, {L_K}, v24
    s_waitcnt lgkmcnt(0)
    v_or_b32 v32, v32, v36
    v_or_b32 v33, v33, v37
    v_or_b32 v34, v34, v38
    v_or_b32 v35, v35, v39
    ds_write_b128 v24, v[32:35]
    s_mov_b32 s62, 0
    """)
    stamp(a, 7)
    a(f"""
    v_and_b32 v127, 15, v1
    v_lshl_add_u32 v127, v127, 1, 1
    """)
    a.label("L_GPOLL")
    a.reset()
    a("s_waitcnt vmcnt(0)")
    piece_hash(a, [128], [XG], 127, 129)
    a(f"""
    v_add_u32 v128, s10, v128
    v_cmp_ne_u32 vcc, v128, v125
    v_cmp_ne_u32 s[50:51], s10, v119
    v_cmp_ne_u32 s[52:53], s10, v123
    s_or_b64 vcc, vcc, s[50:51]
    s_or_b64 vcc, vcc, s[52:53]
    s_cbranch_vccz L_GOK
    s_add_u32 s62, s62, 1
    s_cmp_ge_u32 s62, {SPIN_MAX}
    s_cbranch_scc1 L_GOK
    global_load_dword v125, v124, {P_WS} sc0 sc1
    global_load_dwordx4 v[{XG}:{XG+3}], v126, {P_WS} sc0 sc1
    global_load_dwordx4 v[116:119], v6, {P_WS} sc0 sc1
    global_load_dwordx4 v[120:123], v6, {P_WS} offset:16 sc0 sc1
    s_branch L_GPOLL
    """)
    a.label("L_GOK")
    a.reset()
    stamp(a, 8)
    st = [116, 117, 120, 121]
    for r in range(4):
        a(f"v_and_b32 v{40+r}, 0xffff0000, v{st[r]}")
    for r in range(4):
        a(f"v_rcp_f32 v{40+r}, v{40+r}")
    for r in range(4):
        a(f"v_lshlrev_b32 v{44+r}, 16, v{st[r]}")
    for r in range(4):
        unpack(a, 48 + 2 * r, 49 + 2 * r, XG + r)
    for r in range(4):
        a(f"v_mul_f32 v{40+r}, 0x45000000, v{40+r}")
    for r in range(4):
        a(f"v_sub_f32 v{48+2*r}, v{48+2*r}, v{44+r}")
        a(f"v_sub_f32 v{49+2*r}, v{49+2*r}, v{44+r}")
    for r in range(4):
        a(f"v_cvt_pk_bf16_f32 v{56+r}, v{48+2*r}, v{49+2*r}")
    for r in range(4):
        unpack(a, 48 + 2 * r, 49 + 2 * r, 56 + r)
    for r in range(4):
        a(f"v_mul_f32 v{48+2*r}, v{48+2*r}, v{40+r}")
        a(f"v_mul_f32 v{49+2*r}, v{49+2*r}, v{40+r}")
    for r in range(4):
        a(f"v_cvt_pk_bf16_f32 v{XN+r}, v{48+2*r}, v{49+2*r}")
    for r in range(4):
        unpack(a, 48 + 2 * r, 49 + 2 * r, XN + r)
    a(f"""
    v_cvt_pk_f16_f32 v60, v48, v50
    v_cvt_pk_f16_f32 v61, v52, v54
    v_cvt_pk_f16_f32 v62, v49, v51
    v_cvt_pk_f16_f32 v63, v53, v55
    v_lshlrev_b32 v8, 1, v4
    v_add_u32 v8, 32, v8
    ds_write_b64 v8, v[60:61]
    ds_write_b64 v8, v[62:63] offset:{U_CH}
    """)
    a(f"""
    v_and_b32 v32, 0xffff, v118
    v_lshrrev_b32 v33, 16, v118
    v_and_b32 v34, 0xffff, v122
    v_lshrrev_b32 v35, 16, v122
    v_sub_u32 v9, 0x7ff, v4
    """)
    for r in range(4):
        a(f"""
        v_bfe_i32 v36, v{32+r}, 15, 1
        v_or_b32 v36, 0x8000, v36
        v_xor_b32 v{32+r}, v{32+r}, v36
        v_lshlrev_b32 v{32+r}, 16, v{32+r}
        v_subrev_u32 v36, {r}, v9
        v_or_b32 v{32+r}, v{32+r}, v36
        """)
    a(f"""
    v_max_u32 v36, v32, v33
    v_min_u32 v37, v32, v33
    v_max_u32 v38, v34, v35
    v_min_u32 v39, v34, v35
    v_min_u32 v32, v36, v38
    v_max_u32 v36, v36, v38
    v_max3_u32 v37, v37, v39, v32
    v_mov_b32 v38, v36
    """)
    dpp_reduce(a, "v_max_u32", [38])
    a(f"""
    v_readlane_b32 s50, v38, 63
    v_cmp_eq_u32 vcc, s50, v36
    v_cndmask_b32 v38, v36, v37, vcc
    """)
    dpp_reduce(a, "v_max_u32", [38])
    a(f"""
    v_readlane_b32 s51, v38, 63
    s_lshl_b32 s52, s3, 3
    s_add_u32 s52, s52, {L_KEYS}
    v_mov_b32 v36, s50
    v_mov_b32 v37, s51
    v_mov_b32 v38, s52
    ds_write_b64 v38, v[36:37]
    """)
    a(f"""
    s_cmp_eq_u32 s3, 5
    s_cbranch_scc0 L_NOPAD
    v_mov_b32 v32, 0
    v_mov_b32 v33, 0
    v_mov_b32 v34, 0
    v_mov_b32 v35, 0
    v_bfe_u32 v36, v1, 1, 3
    v_mul_u32_u24 v36, {UCOPY}, v36
    v_and_b32 v37, 1, v1
    v_lshl_add_u32 v36, v37, 4, v36
    s_mov_b64 exec, 0xffff
    ds_write_b128 v36, v[32:35]
    s_mov_b64 exec, -1
    """)
    a.label("L_NOPAD")
    a.reset()
    stamp(a, 9)
    lbar(a, 3, sleep=True)
    a(f"""
    v_subrev_u32 v9, 8, v8
    ds_read_b64 v[64:65], v9
    ds_read_b64 v[66:67], v9 offset:{U_CH}
    v_mov_b32 v10, {L_KEYS}
    ds_read_b128 v[32:35], v10
    ds_read_b128 v[36:39], v10 offset:16
    ds_read_b128 v[40:43], v10 offset:32
    ds_read_b128 v[44:47], v10 offset:48
    """)
    for c in range(2):
        W0, W1, P0, P1 = 60 + 2 * c, 61 + 2 * c, 64 + 2 * c, 65 + 2 * c
        t = 68 + 8 * c
        a(f"s_waitcnt lgkmcnt({5-c+3*c})")
        a(f"""
        v_alignbyte_b32 v{t}, v{W0}, v{P1}, 2
        v_alignbyte_b32 v{t+1}, v{W1}, v{W0}, 2
        v_mov_b32 v{t+2}, v{P1}
        v_mov_b32 v{t+3}, v{W0}
        v_alignbyte_b32 v{t+4}, v{P1}, v{P0}, 2
        v_mov_b32 v{t+5}, v{t}
        ds_write_b64 v8, v[{t}:{t+1}] offset:{c*U_CH+UCOPY}
        ds_write_b64 v8, v[{t+2}:{t+3}] offset:{c*U_CH+2*UCOPY}
        ds_write_b64 v8, v[{t+4}:{t+5}] offset:{c*U_CH+3*UCOPY}
        """)

    def final_top2(B=32):
        a(f"""
        v_max_u32 v{B+16}, v{B}, v{B+2}
        v_min_u32 v{B+17}, v{B}, v{B+2}
        v_max3_u32 v{B+17}, v{B+17}, v{B+1}, v{B+3}
        """)
        for k in range(B + 4, B + 16, 2):
            a(f"""
            v_min_u32 v{B+18}, v{B+16}, v{k}
            v_max_u32 v{B+16}, v{B+16}, v{k}
            v_max3_u32 v{B+17}, v{B+17}, v{B+18}, v{k+1}
            """)
        a(f"""
        v_readfirstlane_b32 s50, v{B+16}
        v_readfirstlane_b32 s51, v{B+17}
        s_and_b32 s8, s50, 0x7ff
        s_sub_u32 s8, 0x7ff, s8
        s_and_b32 s9, s51, 0x7ff
        s_sub_u32 s9, 0x7ff, s9
        """)
    a("s_waitcnt lgkmcnt(6)")
    final_top2()
    stamp(a, 10)
    lbar(a, 4)
    stamp(a, 11)
    a(f"""
    s_cmp_ge_u32 s3, 4
    s_cbranch_scc1 L_AUX
    """)
    a(f"""
    s_lshr_b32 s7, s3, 1
    s_and_b32 s13, s3, 1
    v_and_b32 v8, 15, v1
    v_lshrrev_b32 v9, 4, v1
    v_sub_u32 v10, 15, v8
    v_and_b32 v11, 3, v10
    v_lshrrev_b32 v10, 2, v10
    v_mul_u32_u24 v12, {UCOPY}, v11
    v_lshlrev_b32 v11, 1, v9
    v_sub_u32 v11, v11, v10
    v_add_u32 v11, 4, v11
    v_lshl_add_u32 v12, v11, 3, v12
    s_mul_i32 s12, s7, {U_CH}
    s_lshl_b32 s14, s13, 8
    s_add_u32 s12, s12, s14
    v_add_u32 v12, s12, v12
    v_lshlrev_b32 v13, 4, v9
    v_lshlrev_b32 v11, 5, v8
    v_sub_u32 v13, v13, v11
    s_mul_i32 s12, s7, {K_CH}
    s_add_u32 s12, s12, s14
    s_add_u32 s12, s12, {L_K+480}
    v_add_u32 v13, s12, v13
    """)
    Ub = [16, 80]
    Kb = [48, 112]
    ACC = 144

    def reads(st, ri, n):
        r = []
        for i in range(n):
            r.append(f"ds_read_b64 v[{Ub[st]+4*i}:{Ub[st]+4*i+1}], v12 offset:{512*i+64*ri}")
            r.append(f"ds_read_b64 v[{Ub[st]+4*i+2}:{Ub[st]+4*i+3}], v12 offset:{512*i+64*ri+8}")
            r.append(f"ds_read_b128 v[{Kb[st]+4*i}:{Kb[st]+4*i+3}], v13 offset:{512*(7-i)+64*ri}")
        return r

    for r in reads(0, 0, 4):
        a(r)
    for i in range(16):
        a(f"v_mov_b32 v{ACC+i}, 0")
    a(f"""
    v_lshlrev_b32 v14, 8, v9
    v_lshl_add_u32 v14, v8, 2, v14
    s_lshl_b32 s12, s3, 10
    v_add_u32 v14, s12, v14
    """)
    pairsA = sorted([(q, m) for q in range(4) for m in range(4) if q + m <= 3], key=lambda t: (max(t), t))
    pairsB = sorted([(q, m) for q in range(8) for m in range(8) if 4 <= q + m <= 7], key=lambda t: (max(t), t))
    it = 0
    for ph, pairs in ((0, pairsA), (1, pairsB)):
        for ri in range(4):
            st = it & 1
            if ri < 3:
                nxt = reads(st ^ 1, ri + 1, 4 if ph == 0 else 8)
            elif ph == 0:
                nxt = reads(st ^ 1, 0, 8)
            else:
                nxt = []
            a("s_waitcnt lgkmcnt(0)")
            per = -(-len(nxt) // len(pairs)) if nxt else 0
            k = 0
            for i, (q, m) in enumerate(pairs):
                ct = (q + m) & 3
                a(f"v_mfma_f32_16x16x32_f16 v[{ACC+4*ct}:{ACC+4*ct+3}], v[{Kb[st]+4*m}:{Kb[st]+4*m+3}], v[{Ub[st]+4*q}:{Ub[st]+4*q+3}], v[{ACC+4*ct}:{ACC+4*ct+3}]")
                for _ in range(per):
                    if k < len(nxt):
                        a(nxt[k])
                        k += 1
            it += 1
        Lp = L_PA if ph == 0 else L_PB
        for ct in range(4):
            for r in range(4):
                a(f"ds_write_b32 v14, v{ACC+4*ct+r} offset:{Lp+4096*ct+64*r}")
        lds_signal(a, 4 * ph, 10, 11)
        if ph == 0:
            stamp(a, 12)
            for i in range(16):
                a(f"v_mov_b32 v{ACC+i}, 0")
    stamp(a, 13)
    a(f"""
    s_lshl_b32 s50, s15, 16
    s_and_b32 s51, s15, 0xffff0000
    v_mov_b32 v26, 0x3a000000
    v_mul_f32 v27, s51, v26
    v_mul_f32 v26, s50, v26
    s_mov_b32 s12, s3
    s_add_u32 s14, s3, 4
    """)
    lds_wait_flag(a, "B", 4, 4, 10, 11)
    epilogue(a, "B", L_PB)
    stamp(a, 14)
    finish(a)
    a.label("L_AUX")
    a.reset()
    a(f"""
    s_lshl_b32 s50, s15, 16
    s_and_b32 s51, s15, 0xffff0000
    v_mov_b32 v26, 0x3a000000
    v_mul_f32 v27, s51, v26
    v_mul_f32 v26, s50, v26
    s_sub_u32 s12, s3, 4
    s_mov_b32 s14, s12
    """)
    lds_wait_flag(a, "A", 0, 4, 10, 11)
    stamp(a, 12)
    epilogue(a, "A", L_PA)
    a(f"""
    s_lshl_b32 s50, s2, 4
    s_add_u32 s50, s50, s3
    s_cmp_eq_u32 s50, 4
    s_cbranch_scc0 L_NOEP
    v_mov_b32 v8, {WS_W0}
    v_mov_b32 v9, s10
    s_mov_b64 exec, 1
    global_store_dword v8, v9, {P_WS} sc0 sc1
    s_mov_b64 exec, -1
    """)
    a.label("L_NOEP")
    a.reset()
    stamp(a, 14)
    finish(a)
    a.label("L_MOE")
    a.reset()
    a(f"""
    v_mov_b32 v8, 0
    v_mov_b32 v9, 0
    v_mov_b32 v10, 0
    v_mov_b32 v11, 0
    v_mov_b32 v13, {L_FLAG}
    s_cmp_lg_u32 s3, 11
    s_cbranch_scc1 L_NOPF
    ds_write_b128 v13, v[8:11]
    ds_write_b128 v13, v[8:11] offset:16
    v_lshlrev_b32 v12, 7, v1
    v_min_u32 v17, {CODE_SPAN[0]}, v12
    global_load_dword v14, v17, s[100:101]
    v_add_u32 v12, 0x2000, v12
    v_min_u32 v17, {CODE_SPAN[0]}, v12
    global_load_dword v15, v17, s[100:101]
    v_add_u32 v12, 0x2000, v12
    v_min_u32 v12, {CODE_SPAN[0]}, v12
    global_load_dword v16, v12, s[100:101]
    s_waitcnt lgkmcnt(0)
    """)
    a.label("L_NOPF")
    a.reset()
    a(f"""
    s_barrier
    s_sub_u32 s7, s3, 8
    v_and_b32 v8, 15, v1
    v_lshrrev_b32 v9, 4, v1
    s_mov_b32 s12, 0x05040100
    s_mov_b32 s13, 0x07060302
    v_subrev_u32 v20, 512, v0
    v_lshrrev_b32 v21, 5, v20
    v_and_b32 v22, 31, v20
    s_lshl_b32 s14, s6, 4
    v_add_u32 v21, s14, v21
    v_mul_u32_u24 v21, 3584, v21
    v_min_u32 v22, 27, v22
    v_lshl_add_u32 v21, v22, 4, v21
    s_mul_i32 s14, s5, 448
    v_add_u32 v21, s14, v21
    v_add_u32 v22, {8*3584}, v21
    v_lshrrev_b32 v23, 3, v20
    s_mul_i32 s14, s6, 56
    v_add_u32 v23, s14, v23
    v_lshlrev_b32 v23, 10, v23
    v_and_b32 v24, 7, v20
    v_lshl_add_u32 v23, v24, 4, v23
    s_lshl_b32 s14, s5, 7
    v_add_u32 v23, s14, v23
    v_add_u32 v24, {24*1024}, v23
    """)
    lds_wait_flag(a, "X", 16, 4, 12, 13)
    a(f"""
    global_load_dwordx4 v[144:147], v21, s[38:39]
    global_load_dwordx4 v[148:151], v21, s[40:41]
    global_load_dwordx4 v[152:155], v22, s[38:39]
    global_load_dwordx4 v[156:159], v22, s[40:41]
    global_load_dwordx4 v[160:163], v23, s[42:43]
    global_load_dwordx4 v[164:167], v24, s[42:43]
    s_cmp_ge_u32 s6, 18
    s_cbranch_scc1 L_END
    """)
    lds_wait_flag(a, "X2", 12, 8, 12, 13)
    a(f"""
    s_cmp_ge_u32 s6, 14
    s_cbranch_scc1 L_DOWN
    """)

    def pack(L, F):
        for j in range(8):
            for k in range(4):
                a(f"v_perm_b32 v{F+4*j+k}, v{L+4*(2*k+1)+(j>>1)}, v{L+4*(2*k)+(j>>1)}, s{12+(j&1)}")

    a(f"""
    s_mul_i32 s11, s5, 14
    s_add_u32 s11, s11, s6
    v_lshrrev_b32 v10, 2, v8
    v_lshlrev_b32 v4, 5, v10
    v_lshl_add_u32 v4, v9, 3, v4
    s_lshl_b32 s14, s7, 7
    v_add_u32 v4, s14, v4
    v_mul_u32_u24 v4, 3584, v4
    v_and_b32 v5, 1, v1
    v_lshl_add_u32 v4, v5, 4, v4
    s_lshl_b32 s14, s11, 5
    v_add_u32 v4, s14, v4
    v_and_b32 v5, 2, v1
    v_cmp_ne_u32 s[50:51], 0, v5
    s_waitcnt lgkmcnt(0)
    v_mov_b32 v6, s38
    v_mov_b32 v7, s39
    v_mov_b32 v11, s40
    v_mov_b32 v12, s41
    v_cndmask_b32 v6, v6, v11, s[50:51]
    v_cndmask_b32 v7, v7, v12, s[50:51]
    v_add_co_u32 v6, vcc, v6, v4
    v_addc_co_u32 v7, vcc, 0, v7, vcc
    """)
    L, F, AC = 112, 64, 32
    for e2 in range(4):
        a(f"global_load_dwordx4 v[{L+8*e2}:{L+8*e2+3}], v[6:7], off")
        a(f"global_load_dwordx4 v[{L+8*e2+4}:{L+8*e2+7}], v[6:7], off offset:3584")
        if e2 < 3:
            a("v_add_co_u32 v6, vcc, 7168, v6")
            a("v_addc_co_u32 v7, vcc, 0, v7, vcc")
    stamp(a, 1)
    a("s_waitcnt vmcnt(0)")
    stamp(a, 2)
    pack(L, F)
    stamp(a, 3)
    lds_wait_flag(a, "K3", 12, 24, 12, 13)
    stamp(a, 4)
    a(f"""
    v_mov_b32 v7, {L_NONCE}
    ds_read_b32 v7, v7
    v_mov_b32 v11, {L_KEYS}
    ds_read_b128 v[144:147], v11
    ds_read_b128 v[148:151], v11 offset:16
    ds_read_b128 v[152:155], v11 offset:32
    ds_read_b128 v[156:159], v11 offset:48
    s_waitcnt lgkmcnt(0)
    v_readfirstlane_b32 s10, v7
    """)
    final_top2(144)
    a(f"""
    s_mov_b32 s52, 0
    s_mov_b32 s53, -1
    v_mov_b32 v12, s8
    v_mov_b32 v13, s9
    v_cndmask_b32 v12, v12, v13, s[52:53]
    v_and_b32 v13, 31, v1
    v_lshlrev_b32 v13, 3, v13
    s_lshl_b32 s14, s7, 8
    v_add_u32 v13, s14, v13
    v_lshl_add_u32 v14, v12, 10, v13
    global_load_dwordx2 v[16:17], v14, {P_X}
    v_lshrrev_b32 v15, 1, v12
    v_lshlrev_b32 v15, 4, v15
    v_and_b32 v18, 1, v12
    v_lshl_add_u32 v15, v18, 2, v15
    global_load_dword v18, v15, {P_WS} sc0 sc1
    v_lshrrev_b32 v19, 5, v1
    v_lshl_add_u32 v13, v19, 10, v13
    v_add_u32 v13, {L_MOE}, v13
    v_and_b32 v19, 1, v1
    v_lshlrev_b32 v19, 10, v19
    v_lshl_add_u32 v19, v9, 4, v19
    v_lshl_add_u32 v19, v10, 6, v19
    s_add_u32 s14, s14, {L_MOE}
    v_add_u32 v19, s14, v19
    """)
    for i in range(32):
        a(f"v_mov_b32 v{AC+i}, 0")
    a(f"""
    v_cmp_eq_u32 s[54:55], v9, v10
    s_lshl_b32 s14, s7, 10
    s_add_u32 s14, s14, {L_MP}
    v_lshl_add_u32 v24, v10, 8, s14
    v_bfe_u32 v25, v1, 1, 1
    v_lshl_add_u32 v24, v25, 7, v24
    v_and_b32 v25, 1, v1
    v_lshl_add_u32 v24, v25, 5, v24
    s_waitcnt vmcnt(0)
    """)
    stamp(a, 5)
    a(f"""
    v_and_b32 v20, 0xffff0000, v18
    v_rcp_f32 v20, v20
    v_lshlrev_b32 v21, 16, v18
    """)
    unpack(a, 26, 27, 16)
    unpack(a, 28, 29, 17)
    for k in range(4):
        a(f"v_sub_f32 v{26+k}, v{26+k}, v21")
    a("v_cvt_pk_bf16_f32 v16, v26, v27\nv_cvt_pk_bf16_f32 v17, v28, v29")
    unpack(a, 26, 27, 16)
    unpack(a, 28, 29, 17)
    for k in range(4):
        a(f"v_mul_f32 v{26+k}, v{26+k}, v20")
    a("v_cvt_pk_bf16_f32 v16, v26, v27\nv_cvt_pk_bf16_f32 v17, v28, v29")
    a(f"""
    ds_write_b64 v13, v[16:17]
    ds_read_b128 v[20:23], v19
    s_waitcnt lgkmcnt(0)
    """)
    for j in range(8):
        a(f"v_mfma_f32_16x16x32_bf16 v[{AC+4*j}:{AC+4*j+3}], v[20:23], v[{F+4*j}:{F+4*j+3}], v[{AC+4*j}:{AC+4*j+3}]")
    a("s_mov_b64 exec, s[54:55]")
    for j in range(8):
        a(f"ds_write2_b32 v24, v{AC+4*j}, v{AC+4*j+1} offset0:{j} offset1:{16+j}")
    a("s_mov_b64 exec, -1")
    lds_signal(a, 8, 12, 13)
    a(f"""
    s_cmp_eq_u32 s7, 0
    s_cbranch_scc0 L_MFIN
    v_lshlrev_b32 v28, 2, v1
    v_add_u32 v28, {L_MP}, v28
    """)
    lds_wait_flag(a, "G", 8, 4, 12, 13)
    for i in range(16):
        a(f"ds_read_b32 v{32+i}, v28 offset:{256*i}")
    a("s_waitcnt lgkmcnt(0)")
    for st in (1, 2, 4, 8):
        for i in range(0, 16, 2 * st):
            a(f"v_add_f32 v{32+i}, v{32+i}, v{32+i+st}")
    a(f"""
    v_mov_b32 v36, v32
    v_permlane32_swap_b32 v32, v36
    v_cvt_pk_bf16_f32 v32, v32, v36
    v_and_b32 v36, 0xffff0000, v32
    v_lshlrev_b32 v32, 16, v32
    v_mul_f32 v33, {NEGL2E}, v32
    v_exp_f32 v33, v33
    v_add_f32 v33, 1.0, v33
    v_rcp_f32 v33, v33
    v_mul_f32 v32, v32, v33
    v_cvt_pk_bf16_f32 v32, v32, v32
    v_lshlrev_b32 v32, 16, v32
    v_mul_f32 v32, v32, v36
    v_cvt_pk_bf16_f32 v32, v32, v32
    v_and_b32 v32, 0xffff, v32
    v_mov_b32_dpp v33, v32 quad_perm:[1,1,1,1] row_mask:0xf bank_mask:0xf
    v_mov_b32_dpp v34, v32 quad_perm:[2,2,2,2] row_mask:0xf bank_mask:0xf
    v_mov_b32_dpp v35, v32 quad_perm:[3,3,3,3] row_mask:0xf bank_mask:0xf
    v_lshl_or_b32 v40, v33, 16, v32
    v_lshl_or_b32 v41, v35, 16, v34
    v_mov_b32 v42, s10
    v_mov_b32 v43, s10
    v_lshrrev_b32 v24, 2, v1
    v_lshlrev_b32 v24, 4, v24
    s_lshl_b32 s14, s11, 7
    s_add_u32 s14, s14, {WS_HG}
    v_add_u32 v24, s14, v24
    s_mov_b64 exec, 0x11111111
    global_store_dwordx4 v24, v[40:43], {P_WS} sc0 sc1
    s_mov_b64 exec, -1
    """)
    stamp(a, 6)
    a.label("L_MFIN")
    a.reset()
    finish(a)
    a.label("L_DOWN")
    a.reset()
    a(f"""
    s_lshl_b32 s11, s5, 2
    s_add_u32 s11, s11, s6
    s_sub_u32 s11, s11, 14
    v_lshrrev_b32 v10, 1, v8
    v_lshlrev_b32 v4, 5, v10
    v_lshl_add_u32 v4, v9, 3, v4
    s_lshl_b32 s14, s7, 8
    v_add_u32 v4, s14, v4
    v_lshlrev_b32 v4, 10, v4
    v_and_b32 v5, 1, v1
    v_lshl_add_u32 v4, v5, 4, v4
    s_lshl_b32 s14, s11, 5
    v_add_u32 v4, s14, v4
    v_add_u32 v5, 0x1000, v4
    s_cmp_eq_u32 s7, 3
    s_cselect_b32 s15, 0, {1024*1024}
    v_add_u32 v6, s15, v4
    v_add_u32 v7, s15, v5
    s_waitcnt lgkmcnt(0)
    """)
    L0, L1, F0, AC = 32, 64, 96, 128
    for e in range(8):
        a(f"global_load_dwordx4 v[{L0+4*e}:{L0+4*e+3}], v{4+(e>>2)}, s[42:43] offset:{1024*(e&3)}")
    for e in range(8):
        a(f"global_load_dwordx4 v[{L1+4*e}:{L1+4*e+3}], v{6+(e>>2)}, s[42:43] offset:{1024*(e&3)}")
    stamp(a, 1)
    a("s_waitcnt vmcnt(8)")
    pack(L0, F0)
    a("s_waitcnt vmcnt(0)")
    stamp(a, 2)
    pack(L1, L0)
    F1 = L0
    lds_wait_flag(a, "K3D", 12, 24, 12, 13)
    a(f"""
    v_mov_b32 v7, {L_NONCE}
    ds_read_b32 v7, v7
    v_mov_b32 v11, {L_KEYS}
    ds_read_b128 v[64:67], v11
    ds_read_b128 v[68:71], v11 offset:16
    ds_read_b128 v[72:75], v11 offset:32
    ds_read_b128 v[76:79], v11 offset:48
    s_waitcnt lgkmcnt(0)
    v_readfirstlane_b32 s10, v7
    """)
    final_top2(64)
    a(f"""
    s_lshl_b32 s14, s7, 11
    s_add_u32 s14, s14, {WS_HG}
    v_lshl_add_u32 v12, v1, 4, s14
    s_cmp_eq_u32 s7, 3
    s_cselect_b32 s15, 0, 0x2000
    v_add_u32 v13, s15, v12
    s_mov_b32 s62, 0
    """)
    for i in range(32):
        a(f"v_mov_b32 v{AC+i}, 0")
    a(f"""
    s_lshl_b32 s14, s7, 11
    s_add_u32 s14, s14, {L_MOE}
    v_lshrrev_b32 v24, 3, v1
    v_lshlrev_b32 v24, 5, v24
    v_and_b32 v25, 3, v1
    v_lshl_add_u32 v24, v25, 3, v24
    v_bfe_u32 v25, v1, 2, 1
    v_lshl_add_u32 v24, v25, 9, v24
    v_add_u32 v24, s14, v24
    v_and_b32 v25, 1, v1
    v_lshlrev_b32 v25, 9, v25
    v_lshl_add_u32 v25, v10, 6, v25
    v_lshl_add_u32 v25, v9, 4, v25
    v_add_u32 v25, s14, v25
    """)
    stamp(a, 3)
    a.label("L_HPOLL")
    a.reset()
    a(f"""
    global_load_dwordx4 v[64:67], v12, {P_WS} sc0 sc1
    global_load_dwordx4 v[68:71], v12, {P_WS} offset:1024 sc0 sc1
    global_load_dwordx4 v[72:75], v13, {P_WS} sc0 sc1
    global_load_dwordx4 v[76:79], v13, {P_WS} offset:1024 sc0 sc1
    s_waitcnt vmcnt(0)
    v_cmp_ne_u32 vcc, s10, v67
    v_cmp_ne_u32 s[52:53], s10, v71
    v_cmp_ne_u32 s[54:55], s10, v75
    v_cmp_ne_u32 s[56:57], s10, v79
    s_or_b64 vcc, vcc, s[52:53]
    s_or_b64 s[54:55], s[54:55], s[56:57]
    s_or_b64 vcc, vcc, s[54:55]
    s_cbranch_vccz L_HOK
    s_sleep 2
    s_add_u32 s62, s62, 1
    s_cmp_lt_u32 s62, {SPIN_MAX}
    s_cbranch_scc1 L_HPOLL
    """)
    a.label("L_HOK")
    a.reset()
    stamp(a, 4)
    a(f"""
    ds_write_b64 v24, v[64:65]
    ds_write_b64 v24, v[68:69] offset:256
    ds_write_b64 v24, v[72:73] offset:1024
    ds_write_b64 v24, v[76:77] offset:1280
    ds_read_b128 v[16:19], v25
    ds_read_b128 v[20:23], v25 offset:1024
    s_waitcnt lgkmcnt(1)
    """)
    for j in range(8):
        a(f"v_mfma_f32_16x16x32_bf16 v[{AC+4*j}:{AC+4*j+3}], v[16:19], v[{F0+4*j}:{F0+4*j+3}], v[{AC+4*j}:{AC+4*j+3}]")
    a(f"""
    s_waitcnt lgkmcnt(0)
    s_cmp_eq_u32 s7, 3
    s_cbranch_scc1 L_DSKIP
    """)
    for j in range(8):
        a(f"v_mfma_f32_16x16x32_bf16 v[{AC+4*j}:{AC+4*j+3}], v[20:23], v[{F1+4*j}:{F1+4*j+3}], v[{AC+4*j}:{AC+4*j+3}]")
    a.label("L_DSKIP")
    a.reset()
    a(f"""
    v_lshrrev_b32 v26, 1, v10
    v_cmp_eq_u32 s[54:55], v9, v26
    v_and_b32 v26, 1, v10
    v_cmp_eq_u32 s[52:53], 1, v26
    s_lshl_b32 s14, s7, 10
    s_add_u32 s14, s14, {L_MP}
    v_lshl_add_u32 v24, v10, 7, s14
    v_and_b32 v26, 1, v1
    v_lshl_add_u32 v24, v26, 5, v24
    s_nop 7
    """)
    for j in range(8):
        a(f"v_cndmask_b32 v{AC+4*j}, v{AC+4*j}, v{AC+4*j+2}, s[52:53]")
        a(f"v_cndmask_b32 v{AC+4*j+1}, v{AC+4*j+1}, v{AC+4*j+3}, s[52:53]")
    a("s_mov_b64 exec, s[54:55]")
    for j in range(8):
        a(f"ds_write2_b32 v24, v{AC+4*j}, v{AC+4*j+1} offset0:{j} offset1:{16+j}")
    a("s_mov_b64 exec, -1")
    lds_signal(a, 8, 12, 13)
    a(f"""
    s_cmp_eq_u32 s7, 0
    s_cbranch_scc0 L_DFIN
    """)
    a(f"""
    v_bfe_u32 v24, v1, 4, 1
    v_bfe_u32 v27, v1, 1, 3
    s_lshl_b32 s14, s11, 3
    v_add_u32 v26, s14, v27
    v_lshlrev_b32 v29, 4, v26
    v_lshl_add_u32 v29, v24, 12, v29
    v_add_u32 v29, {WS_TG}, v29
    v_cmp_eq_u32 vcc, 1, v24
    v_mov_b32 v30, s50
    v_mov_b32 v31, s51
    v_cndmask_b32 v30, v30, v31, vcc
    v_mov_b32 v44, s8
    v_mov_b32 v31, s9
    v_cndmask_b32 v44, v44, v31, vcc
    v_lshrrev_b32 v30, 16, v30
    v_bfe_i32 v31, v30, 15, 1
    v_not_b32 v31, v31
    v_or_b32 v31, 0x8000, v31
    v_xor_b32 v30, v30, v31
    v_lshlrev_b32 v30, 16, v30
    v_mul_f32 v30, {NEGL2E}, v30
    v_exp_f32 v30, v30
    v_add_f32 v30, 1.0, v30
    v_rcp_f32 v30, v30
    v_cvt_pk_bf16_f32 v30, v30, v30
    v_lshlrev_b32 v30, 16, v30
    v_lshlrev_b32 v44, 10, v44
    v_lshl_add_u32 v44, v26, 2, v44
    v_and_b32 v28, 31, v1
    v_lshlrev_b32 v28, 2, v28
    v_lshrrev_b32 v31, 5, v1
    v_lshl_add_u32 v28, v31, 11, v28
    v_add_u32 v28, {L_MP}, v28
    """)
    lds_wait_flag(a, "D", 8, 4, 12, 13)
    for i in range(16):
        a(f"ds_read_b32 v{48+i}, v28 offset:{128*i}")
    a("s_waitcnt lgkmcnt(0)")
    for st in (1, 2, 4, 8):
        for i in range(0, 16, 2 * st):
            a(f"v_add_f32 v{48+i}, v{48+i}, v{48+i+st}")
    a(f"""
    v_mov_b32 v49, v48
    v_permlane32_swap_b32 v48, v49
    v_add_f32 v52, v48, v49
    v_mov_b32_dpp v53, v52 quad_perm:[1,1,3,3] row_mask:0xf bank_mask:0xf
    v_cvt_pk_bf16_f32 v52, v52, v53
    v_and_b32 v53, 0xffff0000, v52
    v_lshlrev_b32 v52, 16, v52
    v_mul_f32 v52, v52, v30
    v_mul_f32 v53, v53, v30
    v_cvt_pk_bf16_f32 v52, v52, v53
    v_and_b32 v53, 0xffff0000, v52
    v_lshlrev_b32 v52, 16, v52
    s_mov_b32 s62, 0
    """)
    stamp(a, 5)
    a.label("L_TPOLL")
    a.reset()
    a(f"""
    global_load_dwordx4 v[56:59], v29, {P_WS} sc0 sc1
    s_waitcnt vmcnt(0)
    v_cmp_ne_u32 vcc, s10, v59
    s_cbranch_vccz L_TOK
    s_sleep 1
    s_add_u32 s62, s62, 1
    s_cmp_lt_u32 s62, {SPIN_MAX}
    s_cbranch_scc1 L_TPOLL
    """)
    a.label("L_TOK")
    a.reset()
    stamp(a, 6)
    a(f"""
    v_mov_b32 v62, 0x3a000000
    v_lshlrev_b32 v60, 16, v57
    v_and_b32 v61, 0xffff0000, v57
    v_fma_f32 v52, v60, v62, v52
    v_fma_f32 v53, v61, v62, v53
    v_cvt_pk_bf16_f32 v52, v52, v53
    v_and_b32 v53, 0xffff0000, v52
    v_lshlrev_b32 v52, 16, v52
    v_lshlrev_b32 v60, 16, v56
    v_and_b32 v61, 0xffff0000, v56
    v_add_f32 v52, v52, v60
    v_add_f32 v53, v53, v61
    v_cvt_pk_bf16_f32 v52, v52, v53
    s_mov_b64 exec, 0x55555555
    global_store_dword v44, v52, {P_OUT}
    s_mov_b64 exec, -1
    """)
    a.label("L_DFIN")
    a.reset()
    finish(a)
    a.label("L_END")
    a("s_endpgm")


def main(out):
    a = Asm()
    a.raw(f"; @launch grid=(256,1,1) block=(768,1,1) lds={LDS_SIZE}")
    a.raw('.amdgcn_target "amdgcn-amd-amdhsa--gfx950"')
    a.raw(".text")
    gen(a)
    a.raw('.section .rodata,"a"')
    a.raw(f""".p2align 6
.amdhsa_kernel {NAME}_kernel
  .amdhsa_next_free_vgpr 168
  .amdhsa_next_free_sgpr 102
  .amdhsa_accum_offset 168
  .amdhsa_group_segment_fixed_size 0
  .amdhsa_kernarg_size 136
  .amdhsa_user_sgpr_count 2
  .amdhsa_user_sgpr_kernarg_segment_ptr 1
  .amdhsa_system_sgpr_workgroup_id_x 1
  .amdhsa_float_denorm_mode_32 3
.end_amdhsa_kernel
""")
    open(out, "w").write(a.text())
    print("nops inserted:", a.nops_inserted)


if __name__ == "__main__":
    import subprocess
    out = sys.argv[1] if len(sys.argv) > 1 else "k2.s"
    main(out)
    subprocess.check_call(["clang", "-x", "assembler", "-target", "amdgcn-amd-amdhsa", "-mcpu=gfx950", "-c", out, "-o", "pass1.o"])
    syms = subprocess.check_output(["llvm-objdump", "-t", "pass1.o"]).decode().split("\n")
    addr = {l.split()[-1]: int(l.split()[0], 16) for l in syms if ".text" in l and len(l.split()) >= 5}
    CODE_SPAN[0] = addr["L_END"] - addr[NAME + "_kernel"] - 16
    print("code bytes", CODE_SPAN[0] + 16)
    main(out)
```

```python
import sys, os
from asmlib import Asm

NAME = "parallel_sum__ssm_conv_s4__moe_arch_mod__prompt"
MB = 1 << 20
STAMP = os.environ.get("STAMP", "0") == "1"
WS_GR = 0x0
WS_HG = 0x8000
WS_TG = 0x10000
WS_C2 = 0x28000
WS_W0 = 0x30000
WS_FL = 0x20000
WS_XC = 1 * MB
WS_STAMP = 16 * MB

LOG2E = "0x3fb8aa3b"
NEGL2E = "0xbfb8aa3b"
SPIN_MAX = 1 << 18
CODE_SPAN = [0x1000]

ROW = 544
A_SZ = 21 * ROW
AB_CH = A_SZ + 32 * ROW
UCOPY = 4160
U_CH = 4 * UCOPY
L_PA = 2 * U_CH
L_PB = L_PA + 16384
L_K = L_PB + 16384
K_CH = 4608
L_TAB = L_K + 2 * K_CH
L_MOE = L_TAB + 3072
L_MP = L_MOE + 8192
L_MISC = L_MP + 4096
L_KEYS = L_MISC
L_NONCE = L_MISC + 64
L_KS = L_MISC + 80
L_FLAG = L_MISC + 96
LDS_SIZE = L_MISC + 160

P_X, P_ARE, P_AIM, P_BRE, P_BIM, P_CRE, P_CIM, P_LDT = [f"s[{16+2*i}:{17+2*i}]" for i in range(8)]
P_DSK, P_WR, P_OUT, P_DBG, P_WS = "s[32:33]", "s[36:37]", "s[44:45]", "s[46:47]", "s[48:49]"


def stamp(a, idx):
    if STAMP:
        a(f"{'s_memtime' if os.environ.get('STAMPCLK') == '1' else 's_memrealtime'} s[{64+2*idx}:{65+2*idx}]")


def stamp_init(a):
    if STAMP:
        for i in range(64, 96, 2):
            a(f"s_mov_b64 s[{i}:{i+1}], 0")
        stamp(a, 0)


def finish(a):
    if STAMP:
        a("s_waitcnt vmcnt(0)")
        stamp(a, 15)
        a(f"""
        s_lshl_b32 s98, s2, 4
        s_add_u32 s98, s98, s3
        s_lshl_b32 s98, s98, 7
        s_add_u32 s98, s98, {WS_STAMP}
        s_waitcnt lgkmcnt(0)
        s_mov_b64 exec, 1
        v_mov_b32 v0, s98
        """)
        for q in range(8):
            for k in range(4):
                a(f"v_mov_b32 v{4+k}, s{64+4*q+k}")
            a(f"global_store_dwordx4 v0, v[4:7], {P_WS} offset:{16*q}")
            a("s_nop 1")
    a("s_endpgm")


def cmul(a, R, X, Y, T):
    a(f"v_pk_mul_f32 v[{T}:{T+1}], v[{X}:{X+1}], v[{Y}:{Y+1}] op_sel:[0,0] op_sel_hi:[0,1]")
    a(f"v_pk_fma_f32 v[{R}:{R+1}], v[{X}:{X+1}], v[{Y}:{Y+1}], v[{T}:{T+1}] op_sel:[1,1,0] op_sel_hi:[1,0,1] neg_lo:[1,0,0]")


ROWSTEPS = ["quad_perm:[1,0,3,2] row_mask:0xf bank_mask:0xf",
            "quad_perm:[2,3,0,1] row_mask:0xf bank_mask:0xf",
            "row_half_mirror row_mask:0xf bank_mask:0xf",
            "row_mirror row_mask:0xf bank_mask:0xf"]


def dpp_reduce(a, op, regs):
    for s in ROWSTEPS + ["row_bcast:15 row_mask:0xa bank_mask:0xf", "row_bcast:31 row_mask:0xc bank_mask:0xf"]:
        for r in regs:
            a(f"{op}_dpp v{r}, v{r}, v{r} {s}")


def half_reduce_add(a, regs, tmps):
    for s in ROWSTEPS:
        for r in regs:
            a(f"v_add_f32_dpp v{r}, v{r}, v{r} {s}")
    for r, t in zip(regs, tmps):
        a(f"v_mov_b32 v{t}, v{r}")
    for r, t in zip(regs, tmps):
        a(f"v_permlane16_swap_b32 v{r}, v{t}")
    for r, t in zip(regs, tmps):
        a(f"v_add_f32 v{r}, v{r}, v{t}")


def anchor(a, P, vA, vB, lf, t0, t1):
    if lf is None:
        a(f"v_exp_f32 v{t0}, v{vA}")
        a(f"v_fract_f32 v{t1}, v{vB}")
    else:
        a(f"v_mul_f32 v{t0}, {lf}, v{vA}")
        a(f"v_mul_f32 v{t1}, {lf}, v{vB}")
        a(f"v_exp_f32 v{t0}, v{t0}")
        a(f"v_fract_f32 v{t1}, v{t1}")
    a(f"v_cos_f32 v{P}, v{t1}")
    a(f"v_sin_f32 v{P+1}, v{t1}")
    a(f"v_mul_f32 v{P}, v{t0}, v{P}")
    a(f"v_mul_f32 v{P+1}, v{t0}, v{P+1}")


def unpack(a, lo, hi, src):
    a(f"v_lshlrev_b32 v{lo}, 16, v{src}")
    a(f"v_and_b32 v{hi}, 0xffff0000, v{src}")


def lds_wait_flag(a, tag, off, val, vaddr, vtmp, sleep=True):
    a(f"""
    v_mov_b32 v{vaddr}, {L_FLAG+off}
    s_mov_b32 s62, 0
    """)
    a.label(f"LW_{tag}")
    a.reset()
    a(f"""
    ds_read_b32 v{vtmp}, v{vaddr}
    s_add_u32 s62, s62, 1
    s_waitcnt lgkmcnt(0)
    v_readfirstlane_b32 s63, v{vtmp}
    s_cmp_ge_u32 s63, {val}
    s_cbranch_scc1 LWD_{tag}
    {"s_sleep 1" if sleep else ""}
    s_cmp_lt_u32 s62, {SPIN_MAX}
    s_cbranch_scc1 LW_{tag}
    """)
    a.label(f"LWD_{tag}")
    a.reset()


def lds_signal(a, off, vaddr, vtmp):
    a(f"""
    v_mov_b32 v{vaddr}, {L_FLAG+off}
    v_mov_b32 v{vtmp}, 1
    s_mov_b64 exec, 1
    ds_add_u32 v{vaddr}, v{vtmp}
    s_mov_b64 exec, -1
    """)


def piece_hash(a, dst, d, vmul, t):
    for D, B in zip(dst, d):
        a(f"v_alignbit_b32 v{t}, v{B+1}, v{B+1}, 25")
        a(f"v_alignbit_b32 v{t+1}, v{B+2}, v{B+2}, 19")
        a(f"v_alignbit_b32 v{D}, v{B+3}, v{B+3}, 10")
        a(f"v_add3_u32 v{t}, v{t}, v{t+1}, v{B}")
        a(f"v_add_u32 v{D}, v{D}, v{t}")
        a(f"v_mul_lo_u32 v{D}, v{D}, v{vmul}")
    for s in ROWSTEPS:
        for D in dst:
            a(f"v_add_u32_dpp v{D}, v{D}, v{D} {s}")


def lbar(a, n, va=158, vb=159, sleep=False):
    a("s_waitcnt lgkmcnt(0)")
    a(f"""
    v_mov_b32 v{va}, {L_FLAG+12}
    v_mov_b32 v{vb}, 1
    s_mov_b64 exec, 1
    ds_add_u32 v{va}, v{vb}
    s_mov_b64 exec, -1
    s_mov_b32 s62, 0
    """)
    a.label(f"LB_{n}")
    a.reset()
    a(f"""
    ds_read_b32 v{vb}, v{va}
    s_add_u32 s62, s62, 1
    s_waitcnt lgkmcnt(0)
    v_readfirstlane_b32 s63, v{vb}
    s_cmp_ge_u32 s63, {8*n}
    s_cbranch_scc1 LBD_{n}
    {"s_sleep 1" if sleep else ""}
    s_cmp_lt_u32 s62, {SPIN_MAX}
    s_cbranch_scc1 LB_{n}
    """)
    a.label(f"LBD_{n}")
    a.reset()


XG = 160
XN = 164


def conv_loop(a, ACC, FB, NS):
    pairs = []
    for lv in range(7, -1, -1):
        for o in range(0, lv + 1):
            if lv + o <= 7:
                pairs.append((lv, o))
                if o != lv:
                    pairs.append((o, lv))
    assert len(pairs) == 36
    order = []
    for (q, m) in pairs:
        for f in (("U", q), ("K", m)):
            if f not in order:
                order.append(f)
    ml = [(ri, q, m) for ri in range(4) for (q, m) in pairs]
    last_use = {}
    for i, (ri, q, m) in enumerate(ml):
        last_use[(ri, "U", q)] = i
        last_use[(ri, "K", m)] = i
    loads = [(ri,) + f for ri in range(4) for f in order]
    free = list(range(NS))
    slot = {}
    ready = {}
    issued_ops = 0
    done_ops = 0
    li = 0

    def issue(key):
        nonlocal issued_ops
        sl = free.pop(0)
        slot[key] = sl
        reg = FB + 4 * sl
        ri, kind, n = key
        if kind == "U":
            a(f"ds_read_b64 v[{reg}:{reg+1}], v12 offset:{512*n+64*ri}")
            a(f"ds_read_b64 v[{reg+2}:{reg+3}], v12 offset:{512*n+64*ri+8}")
            issued_ops += 2
        else:
            a(f"ds_read_b128 v[{reg}:{reg+3}], v13 offset:{512*(7-n)+64*ri}")
            issued_ops += 1
        ready[key] = issued_ops

    while li < len(loads) and free and issued_ops < 13:
        issue(loads[li]); li += 1
    for i, (ri, q, m) in enumerate(ml):
        ku, kk = (ri, "U", q), (ri, "K", m)
        while ku not in ready or kk not in ready:
            issue(loads[li]); li += 1
        need = max(ready[ku], ready[kk])
        if need > done_ops:
            a(f"s_waitcnt lgkmcnt({min(issued_ops - need, 15)})")
            done_ops = need
        ct = q + m
        ru, rk = FB + 4 * slot[ku], FB + 4 * slot[kk]
        a(f"v_mfma_f32_16x16x32_f16 v[{ACC+4*ct}:{ACC+4*ct+3}], v[{ru}:{ru+3}], v[{rk}:{rk+3}], v[{ACC+4*ct}:{ACC+4*ct+3}]")
        for k in (ku, kk):
            if last_use[k] == i:
                free.append(slot[k])
        n = 0
        while li < len(loads) and free and n < 1 and issued_ops - done_ops < 13:
            issue(loads[li]); li += 1; n += 1


def epilogue(a):
    a(f"""
    s_lshl_b32 s50, s15, 16
    s_and_b32 s51, s15, 0xffff0000
    v_mov_b32 v28, 0x3a000000
    v_mov_b32 v29, 0x3a000000
    v_mul_f32 v27, s51, v28
    v_mul_f32 v26, s50, v28
    v_bfe_u32 v5, v1, 3, 2
    v_xor_b32 v5, v5, v1
    s_lshl_b32 s13, s14, 12
    s_add_u32 s13, s13, {L_PA}
    v_lshl_add_u32 v5, v5, 4, s13
    """)
    for r in range(4):
        unpack(a, 32 + 2 * r, 33 + 2 * r, XN + r)
    for r in range(4):
        a(f"v_pk_mul_f32 v[{40+2*r}:{41+2*r}], v[{32+2*r}:{33+2*r}], v[26:27]")
    for r in range(4):
        a(f"v_cvt_pk_bf16_f32 v{56+r}, v{40+2*r}, v{41+2*r}")
    for r in range(4):
        unpack(a, 40 + 2 * r, 41 + 2 * r, 56 + r)
    for r in range(4):
        unpack(a, 48 + 2 * r, 49 + 2 * r, XG + r)
    a(f"""
    s_lshl_b32 s50, s4, 13
    s_add_u32 s50, s50, {WS_XC}
    v_lshl_add_u32 v78, v4, 2, s50
    s_lshl_b32 s50, s4, 7
    s_add_u32 s50, s50, {WS_C2}
    v_lshrrev_b32 v79, 6, v4
    v_lshl_add_u32 v79, v79, 2, s50
    v_lshrrev_b32 v87, 4, v0
    v_and_b32 v88, 15, v0
    s_lshl_b32 s50, s5, 18
    s_lshl_b32 s51, s6, 8
    s_add_u32 s50, s50, s51
    s_add_u32 s50, s50, {WS_XC}
    v_lshlrev_b32 v80, 13, v87
    v_lshl_add_u32 v80, v88, 4, v80
    v_add_u32 v80, s50, v80
    s_lshl_b32 s50, s5, 12
    s_lshl_b32 s51, s6, 2
    s_add_u32 s50, s50, s51
    s_add_u32 s50, s50, {WS_C2}
    v_lshl_add_u32 v81, v87, 7, s50
    v_lshl_add_u32 v82, v88, 1, 1
    v_mul_u32_u24 v83, {4*33*4}, v88
    v_lshl_add_u32 v83, v87, 2, v83
    v_lshrrev_b32 v86, 3, v0
    v_and_b32 v88, 7, v0
    v_mul_u32_u24 v84, {33*4}, v86
    v_lshl_add_u32 v84, v88, 4, v84
    s_lshl_b32 s50, s6, 6
    v_add_u32 v86, s50, v86
    v_lshlrev_b32 v85, 10, v86
    v_lshl_add_u32 v85, v88, 4, v85
    s_lshl_b32 s50, s5, 7
    v_add_u32 v85, s50, v85
    """)
    lds_wait_flag(a, "I", 24, 1, 10, 11)
    a(f"""
    v_mov_b32 v10, {L_KS}
    ds_read_b128 v[20:23], v10
    ds_read_b32 v24, v10 offset:{L_FLAG+32-L_KS}
    s_waitcnt lgkmcnt(0)
    v_readfirstlane_b32 s8, v22
    v_readfirstlane_b32 s9, v23
    v_readfirstlane_b32 s12, v24
    v_mov_b32 v24, v20
    v_mov_b32 v25, v21
    """)
    lds_wait_flag(a, "P", 0, 4, 10, 11)
    stamp(a, 12)
    a(f"""
    ds_read_b128 v[8:11], v5
    ds_read_b128 v[12:15], v5 offset:1024
    ds_read_b128 v[16:19], v5 offset:2048
    ds_read_b128 v[20:23], v5 offset:3072
    s_waitcnt lgkmcnt(2)
    """)
    for r in range(4):
        a(f"v_add_f32 v{60+2*r}, v{8+r}, v{12+r}")
    a("s_waitcnt lgkmcnt(0)")
    for r in range(4):
        a(f"v_add_f32 v{61+2*r}, v{16+r}, v{20+r}")
    for r in range(4):
        a(f"v_pk_mul_f32 v[{60+2*r}:{61+2*r}], v[{60+2*r}:{61+2*r}], v[24:25]")
    for r in range(4):
        a(f"v_cvt_pk_bf16_f32 v{56+r}, v{60+2*r}, v{61+2*r}")
    for r in range(4):
        unpack(a, 60 + 2 * r, 61 + 2 * r, 56 + r)
    for r in range(4):
        a(f"v_pk_add_f32 v[{60+2*r}:{61+2*r}], v[{60+2*r}:{61+2*r}], v[{40+2*r}:{41+2*r}]")
    for r in range(4):
        a(f"v_cvt_pk_bf16_f32 v{56+r}, v{60+2*r}, v{61+2*r}")
    for r in range(4):
        unpack(a, 60 + 2 * r, 61 + 2 * r, 56 + r)
    for r in range(4):
        a(f"v_pk_add_f32 v[{60+2*r}:{61+2*r}], v[{60+2*r}:{61+2*r}], v[{48+2*r}:{49+2*r}]")
    for r in range(4):
        a(f"v_cvt_pk_bf16_f32 v{56+r}, v{60+2*r}, v{61+2*r}")
    for r in range(4):
        unpack(a, 60 + 2 * r, 61 + 2 * r, 56 + r)
    for r in range(4):
        a(f"v_pk_fma_f32 v[{60+2*r}:{61+2*r}], v[{32+2*r}:{33+2*r}], v[28:29], v[{60+2*r}:{61+2*r}]")
    for r in range(4):
        a(f"v_cvt_pk_bf16_f32 v{68+r}, v{60+2*r}, v{61+2*r}")
    a(f"""
    s_cmp_lg_u32 s12, 0
    s_cbranch_scc1 EP_NOX
    global_store_dwordx4 v78, v[68:71], {P_WS}
    """)
    piece_hash(a, [8], [68], 82, 9)
    a(f"""
    v_add_u32 v8, s10, v8
    s_mov_b32 exec_lo, 0x00010001
    s_mov_b32 exec_hi, 0x00010001
    global_store_dword v79, v8, {P_WS}
    s_mov_b64 exec, -1
    """)
    a.label("EP_NOX")
    a.reset()
    a(f"""
    s_lshr_b32 s50, s8, 8
    s_lshr_b32 s51, s9, 8
    s_cmp_eq_u32 s50, s14
    s_cselect_b32 s52, 1, 0
    s_cmp_eq_u32 s51, s14
    s_cselect_b32 s53, 1, 0
    s_or_b32 s54, s52, s53
    s_cmp_eq_u32 s54, 0
    s_cbranch_scc1 EP_NOSEL
    s_lshl_b32 s55, s4, 4
    s_add_u32 s55, s55, {WS_TG}
    v_mov_b32 v74, 0
    v_mov_b32 v75, s10
    """)
    for r in range(4):
        a(f"""
        v_add_u32 v7, {r}, v4
        v_cmp_eq_u32 s[50:51], s8, v7
        v_cmp_eq_u32 s[52:53], s9, v7
        v_mov_b32 v72, v{56+r}
        v_mov_b32 v73, v{XN+r}
        v_mov_b32 v76, s55
        v_mov_b32 v77, 0x1000
        s_or_b64 s[56:57], s[50:51], s[52:53]
        v_cndmask_b32 v77, 0, v77, s[52:53]
        v_add_u32 v76, v76, v77
        s_mov_b64 exec, s[56:57]
        s_cbranch_execz EPN_{r}
        global_store_dwordx4 v76, v[72:75], {P_WS} sc0 sc1
        """)
        a.label(f"EPN_{r}")
        a.reset()
        a("s_mov_b64 exec, -1\ns_nop 1")
    a.label("EP_NOSEL")
    a.reset()
    stamp(a, 13)
    a(f"""
    s_cmp_lg_u32 s12, 0
    s_cbranch_scc1 EP_SCAT
    s_mov_b32 s62, 0
    """)
    a.label("EP_POLL")
    a.reset()
    a(f"""
    global_load_dwordx4 v[8:11], v80, {P_WS} sc1
    global_load_dword v12, v81, {P_WS} sc1
    s_waitcnt vmcnt(0)
    """)
    piece_hash(a, [13], [8], 82, 14)
    a(f"""
    v_add_u32 v13, s10, v13
    v_cmp_ne_u32 vcc, v13, v12
    s_cbranch_vccz EP_GOT
    s_add_u32 s62, s62, 1
    s_cmp_lt_u32 s62, {SPIN_MAX}
    s_cbranch_scc1 EP_POLL
    """)
    a.label("EP_GOT")
    a.reset()
    stamp(a, 14)
    for r in range(4):
        a(f"ds_write_b32 v83, v{8+r} offset:{33*4*r}")
    lbar(a, 4, 14, 15)
    a(f"""
    ds_read2_b32 v[8:9], v84 offset0:0 offset1:1
    ds_read2_b32 v[10:11], v84 offset0:2 offset1:3
    v_cmp_ne_u32 vcc, s8, v86
    v_cmp_ne_u32 s[50:51], s9, v86
    s_and_b64 exec, vcc, s[50:51]
    s_waitcnt lgkmcnt(0)
    global_store_dwordx4 v85, v[8:11], {P_OUT}
    s_mov_b64 exec, -1
    s_branch EP_DONE
    """)
    a.label("EP_SCAT")
    a.reset()
    for r in range(4):
        a(f"""
        v_add_u32 v7, {r}, v4
        v_cmp_ne_u32 vcc, s8, v7
        v_cmp_ne_u32 s[50:51], s9, v7
        s_and_b64 exec, vcc, s[50:51]
        global_store_dword v3, v{68+r}, {P_OUT} offset:{1024*r}
        s_mov_b64 exec, -1
        """)
    a.label("EP_DONE")
    a.reset()


L_RB = L_MP
L_IDX = L_MISC + 88


def gen(a):
    K = NAME + "_kernel"
    a.raw(".globl " + K)
    a.raw(".p2align 8")
    a.raw(f".type {K},@function")
    a.label(K)
    a.reset()
    a(f"""
    s_cmp_ge_u32 s2, 256
    s_cbranch_scc1 L_END
    s_getpc_b64 s[100:101]
    """)
    stamp_init(a)
    a(f"""
    v_lshrrev_b32 v2, 6, v0
    v_and_b32 v1, 63, v0
    v_readfirstlane_b32 s3, v2
    s_cmp_lg_u32 s3, 11
    s_cbranch_scc1 L_NOPF
    v_lshlrev_b32 v12, 7, v1
    global_load_dword v14, v12, s[100:101]
    v_add_u32 v12, 0x2000, v12
    v_min_u32 v17, {CODE_SPAN[0]}, v12
    global_load_dword v15, v17, s[100:101]
    v_add_u32 v12, 0x2000, v12
    v_min_u32 v12, {CODE_SPAN[0]}, v12
    global_load_dword v16, v12, s[100:101]
    v_mov_b32 v8, 0
    v_mov_b32 v9, 0
    v_mov_b32 v10, 0
    v_mov_b32 v11, 0
    v_mov_b32 v13, {L_FLAG}
    ds_write_b128 v13, v[8:11]
    ds_write_b128 v13, v[8:11] offset:16
    ds_write_b128 v13, v[8:11] offset:32
    s_waitcnt lgkmcnt(0)
    """)
    a.label("L_NOPF")
    a.reset()
    a(f"""
    s_load_dwordx16 s[16:31], s[0:1], 0
    s_load_dwordx16 s[32:47], s[0:1], 64
    s_load_dwordx2 s[48:49], s[0:1], 128
    s_getreg_b32 s99, hwreg(HW_REG_XCC_ID)
    s_and_b32 s5, s2, 7
    s_lshr_b32 s6, s2, 3
    s_lshl_b32 s4, s5, 5
    s_add_u32 s4, s4, s6
    s_lshl_b32 s11, s4, 2
    s_bfe_u32 s7, s3, 0x10001
    s_and_b32 s13, s3, 1
    s_lshl_b32 s8, s4, 1
    s_add_u32 s8, s8, s7
    s_lshl_b32 s9, s8, 8
    v_lshlrev_b32 v5, 2, v1
    v_add_u32 v5, s9, v5
    s_and_b32 s99, s99, 15
    s_barrier
    s_cmp_ge_u32 s3, 8
    s_cbranch_scc1 L_MW
    s_cmp_ge_u32 s3, 4
    s_cbranch_scc1 L_BW
    """)
    a(f"""
    s_setprio 3
    v_and_b32 v6, 31, v1
    v_lshlrev_b32 v6, 4, v6
    v_lshrrev_b32 v7, 5, v1
    s_lshl_b32 s12, s2, 3
    s_lshl_b32 s14, s3, 1
    s_add_u32 s12, s12, s14
    v_add_u32 v7, s12, v7
    v_lshl_add_u32 v7, v7, 10, v6
    s_waitcnt lgkmcnt(0)
    global_load_dwordx4 v[8:11], v7, {P_X}
    global_load_dwordx4 v[12:15], v7, {P_X} offset:512
    global_load_dwordx4 v[16:19], v6, {P_WR}
    global_load_dwordx4 v[20:23], v6, {P_WR} offset:512
    s_load_dword s10, {P_WS}, {WS_W0}
    s_load_dword s15, {P_DSK}, s11
    s_branch L_PRE
    """)
    a.label("L_MW")
    a.reset()
    a(f"""
    v_and_b32 v76, 15, v1
    v_lshrrev_b32 v77, 4, v1
    s_sub_u32 s12, s3, 8
    s_lshl_b32 s14, s6, 16
    s_lshl_b32 s15, s5, 7
    s_add_u32 s14, s14, s15
    s_lshl_b32 s15, s12, 5
    s_add_u32 s14, s14, s15
    v_lshlrev_b32 v78, 12, v76
    v_lshl_add_u32 v78, v77, 3, v78
    v_add_u32 v78, s14, v78
    s_lshl_b32 s14, s4, 7
    s_add_u32 s14, s14, {WS_C2}
    v_mov_b32 v79, s14
    s_waitcnt lgkmcnt(0)
    global_load_dwordx2 v[136:137], v78, {P_X}
    global_load_dwordx2 v[138:139], v78, {P_X} offset:1024
    global_load_dwordx2 v[140:141], v78, {P_X} offset:2048
    global_load_dwordx2 v[142:143], v78, {P_X} offset:3072
    global_load_dword v100, v5, {P_ARE}
    global_load_dword v101, v5, {P_AIM}
    global_load_dword v102, v5, {P_BRE}
    global_load_dword v103, v5, {P_BIM}
    global_load_dword v104, v5, {P_CRE}
    global_load_dword v105, v5, {P_CIM}
    global_load_dword v110, v79, {P_WS} sc1
    s_load_dword s56, {P_LDT}, s11
    s_branch L_MOE
    """)
    a.label("L_BW")
    a.reset()
    a(f"""
    s_waitcnt lgkmcnt(0)
    global_load_dword v80, v5, {P_ARE}
    global_load_dword v81, v5, {P_AIM}
    s_load_dword s15, {P_DSK}, s11
    s_load_dword s56, {P_LDT}, s11
    v_mov_b32 v8, 0
    v_mov_b32 v9, 0
    v_mov_b32 v10, 0
    v_mov_b32 v11, 0
    v_lshrrev_b32 v12, 5, v1
    v_mul_u32_u24 v12, {K_CH}, v12
    v_and_b32 v13, 31, v1
    v_lshl_add_u32 v12, v13, 4, v12
    v_add_u32 v12, {L_K+4096}, v12
    ds_write_b128 v12, v[8:11]
    """)
    a.label("L_PRE")
    a.reset()
    a(f"""
    v_add_u32 v4, 256, v0
    v_and_b32 v4, 511, v4
    v_lshlrev_b32 v4, 2, v4
    v_lshlrev_b32 v3, 10, v4
    v_add_u32 v3, s11, v3
    v_lshlrev_b32 v115, 3, v4
    v_lshlrev_b32 v128, 1, v4
    v_add_u32 v128, 32, v128
    s_lshl_b32 s50, s5, 12
    s_lshl_b32 s51, s6, 2
    s_add_u32 s50, s50, s51
    s_add_u32 s50, s50, {WS_FL}
    v_lshrrev_b32 v124, 6, v4
    v_lshl_add_u32 v124, v124, 7, s50
    s_lshl_b32 s50, s4, 13
    s_add_u32 s50, s50, {WS_XC}
    v_lshl_add_u32 v126, v4, 2, s50
    v_and_b32 v24, 15, v1
    v_lshl_add_u32 v127, v24, 1, 1
    v_lshrrev_b32 v114, 8, v0
    v_mul_u32_u24 v114, {K_CH}, v114
    v_and_b32 v25, 0xff, v0
    v_lshl_add_u32 v114, v25, 4, v114
    v_add_u32 v114, {L_K}, v114
    s_lshr_b32 s57, s3, 2
    s_mul_i32 s61, s57, {AB_CH}
    v_mul_u32_u24 v26, {ROW}, v24
    v_lshrrev_b32 v25, 4, v1
    v_lshl_add_u32 v26, v25, 4, v26
    s_mul_i32 s60, s7, {16*ROW}
    s_add_u32 s60, s60, s61
    s_mul_i32 s62, s13, {16*ROW}
    s_add_u32 s62, s62, s61
    s_add_u32 s62, s62, {A_SZ}
    v_add_u32 v108, s60, v26
    v_add_u32 v109, s62, v26
    s_lshl_b32 s58, s13, 4
    v_add_u32 v24, s58, v24
    s_mul_i32 s60, s57, 1536
    s_add_u32 s60, s60, {L_TAB}
    v_cmp_eq_u32 s[50:51], 1, v25
    v_cmp_eq_u32 s[52:53], 2, v25
    v_cmp_eq_u32 s[54:55], 3, v25
    v_cmp_eq_u32 vcc, 0, v25
    v_cmp_eq_u32 s[58:59], 16, v1
    s_cmp_eq_u32 s7, 0
    s_cbranch_scc0 L_TA1
    v_mov_b32 v26, 3
    v_cndmask_b32 v26, v26, 2, s[52:53]
    v_cndmask_b32 v26, v26, 1, s[54:55]
    v_lshlrev_b32 v26, v26, v24
    """)
    for r in range(4):
        b0, b1, b2, b3 = r, 4 + r, 256 + r, 384 + (r & 1) + 64 * (r >> 1)
        a(f"""
        v_mov_b32 v27, {b0}
        v_cndmask_b32 v27, v27, {b1}, s[50:51]
        v_mov_b32 v28, {b2}
        v_cndmask_b32 v27, v27, v28, s[52:53]
        v_mov_b32 v28, {b3}
        v_cndmask_b32 v27, v27, v28, s[54:55]
        v_add_u32 v27, v27, v26
        v_lshl_add_u32 v{110+r}, v27, 1, s60
        """)
    a("s_branch L_TAD")
    a.label("L_TA1")
    a.reset()
    for r in range(4):
        a(f"""
        v_mov_b32 v27, 700
        v_add_u32 v28, {512+32*r}, v24
        v_cndmask_b32 v27, v27, v28, vcc
        """)
        if r == 0:
            a(f"""
            s_cmp_eq_u32 s13, 0
            s_cselect_b64 s[50:51], s[58:59], 0
            v_mov_b32 v28, 640
            v_cndmask_b32 v27, v27, v28, s[50:51]
            """)
        a(f"v_lshl_add_u32 v{110+r}, v27, 1, s60")
    a.label("L_TAD")
    a.reset()
    a(f"""
    v_and_b32 v30, 0xff, v0
    v_lshlrev_b32 v30, 3, v30
    v_sub_u32 v30, 0x7ff, v30
    v_lshrrev_b32 v31, 8, v0
    v_mul_u32_u24 v31, 1536, v31
    v_add_u32 v31, {L_TAB}, v31
    s_movk_i32 s57, 128
    """)
    for e in range(0, 8, 2):
        a(f"""
        v_subrev_u32 v24, {e}, v30
        v_subrev_u32 v25, {e+1}, v30
        v_cvt_f32_u32 v26, v24
        v_cvt_f32_u32 v27, v25
        v_cvt_pk_bf16_f32 v26, v26, v27
        v_and_b32 v28, 0xffff, v26
        v_lshrrev_b32 v29, 16, v26
        v_subrev_u32 v28, {0x4300-128}, v28
        v_subrev_u32 v29, {0x4300-128}, v29
        v_med3_i32 v28, v28, v24, s57
        v_med3_i32 v29, v29, v25, s57
        v_lshl_add_u32 v{100+e}, v28, 1, v31
        v_lshl_add_u32 v{101+e}, v29, 1, v31
        """)
    stamp(a, 1)
    a(f"""
    s_cmp_ge_u32 s3, 4
    s_cbranch_scc1 L_BTASK
    s_mov_b32 s50, 0
    s_mov_b32 s51, -1
    v_mov_b32 v28, 0x3b000000
    v_mov_b32 v24, {L_NONCE}
    v_mov_b32 v26, {L_FLAG+4}
    v_mov_b32 v27, 1
    s_waitcnt lgkmcnt(0)
    s_add_u32 s10, s10, 0x9e3779b1
    s_andn2_b32 s10, s10, 15
    v_mov_b32 v25, s10
    s_mov_b64 exec, 1
    ds_write_b32 v24, v25
    ds_add_u32 v26, v27
    s_mov_b64 exec, -1
    s_waitcnt vmcnt(2)
    """)
    stamp(a, 2)
    for k in range(8):
        unpack(a, 32 + 2 * k, 33 + 2 * k, 8 + k)
    a(f"""
    v_readlane_b32 s52, v32, 0
    v_readlane_b32 s53, v32, 32
    v_pk_add_f32 v[64:65], v[32:33], v[34:35]
    v_pk_add_f32 v[66:67], v[36:37], v[38:39]
    v_mov_b32 v24, s52
    v_mov_b32 v25, s53
    v_pk_add_f32 v[68:69], v[40:41], v[42:43]
    v_cndmask_b32 v24, v24, v25, s[50:51]
    v_pk_add_f32 v[70:71], v[44:45], v[46:47]
    v_mov_b32 v25, v24
    v_pk_add_f32 v[64:65], v[64:65], v[66:67]
    v_pk_add_f32 v[68:69], v[68:69], v[70:71]
    """)
    for k in range(8):
        a(f"v_pk_add_f32 v[{48+2*k}:{49+2*k}], v[{32+2*k}:{33+2*k}], v[24:25] neg_lo:[0,1] neg_hi:[0,1]")
    a(f"""
    v_pk_add_f32 v[64:65], v[64:65], v[68:69]
    v_pk_mul_f32 v[72:73], v[48:49], v[48:49]
    v_pk_mul_f32 v[74:75], v[50:51], v[50:51]
    v_add_f32 v64, v64, v65
    v_pk_fma_f32 v[72:73], v[52:53], v[52:53], v[72:73]
    v_pk_fma_f32 v[74:75], v[54:55], v[54:55], v[74:75]
    v_pk_fma_f32 v[72:73], v[56:57], v[56:57], v[72:73]
    v_pk_fma_f32 v[74:75], v[58:59], v[58:59], v[74:75]
    v_pk_fma_f32 v[72:73], v[60:61], v[60:61], v[72:73]
    v_pk_fma_f32 v[74:75], v[62:63], v[62:63], v[74:75]
    v_pk_add_f32 v[72:73], v[72:73], v[74:75]
    v_add_f32 v72, v72, v73
    """)
    half_reduce_add(a, [64, 72], [65, 73])
    a(f"""
    v_mul_f32 v64, v64, v28
    v_mul_f32 v72, v72, v28
    v_sub_f32 v65, v64, v24
    v_fma_f32 v72, -v65, v65, v72
    v_max_f32 v72, 0, v72
    v_cvt_pk_bf16_f32 v64, v64, v72
    v_and_b32 v72, 0xffff0000, v64
    v_lshlrev_b32 v66, 16, v64
    v_add_f32 v72, 0x3727c5ac, v72
    v_mov_b32 v67, v66
    v_cvt_pk_bf16_f32 v72, v72, v72
    v_lshlrev_b32 v72, 16, v72
    v_sqrt_f32 v72, v72
    """)
    for k in range(8):
        a(f"v_pk_add_f32 v[{48+2*k}:{49+2*k}], v[{32+2*k}:{33+2*k}], v[66:67] neg_lo:[0,1] neg_hi:[0,1]")
    a(f"""
    v_cvt_pk_bf16_f32 v72, v72, v72
    v_lshlrev_b32 v72, 16, v72
    v_rcp_f32 v68, v72
    v_and_b32 v64, 0xffff, v64
    v_or_b32 v64, v64, v72
    """)
    for k in range(8):
        a(f"v_cvt_pk_bf16_f32 v{8+k}, v{48+2*k}, v{49+2*k}")
    a("v_mov_b32 v69, v68")
    for k in range(8):
        unpack(a, 48 + 2 * k, 49 + 2 * k, 8 + k)
    for k in range(8):
        a(f"v_pk_mul_f32 v[{48+2*k}:{49+2*k}], v[{48+2*k}:{49+2*k}], v[68:69]")
    for k in range(8):
        a(f"v_cvt_pk_bf16_f32 v{8+k}, v{48+2*k}, v{49+2*k}")
    a("s_waitcnt vmcnt(0)")
    for k in range(4):
        a(f"v_mov_b32 v{70+k}, 0")
    for k in range(8):
        a(f"v_dot2c_f32_bf16 v{70+(k&3)}, v{8+k}, v{16+k}")
    a(f"""
    v_readlane_b32 s52, v64, 32
    s_lshl_b32 s12, s12, 3
    v_add_f32 v70, v70, v71
    v_add_f32 v72, v72, v73
    v_add_f32 v70, v70, v72
    """)
    half_reduce_add(a, [70], [71])
    a(f"""
    v_cvt_pk_bf16_f32 v70, v70, v70
    v_mov_b32 v65, s52
    v_mov_b32 v71, s12
    v_readlane_b32 s53, v70, 32
    v_and_b32 v66, 0xffff, v70
    s_or_b32 s54, s10, s99
    s_and_b32 s53, s53, 0xffff0000
    v_mov_b32 v67, s54
    v_or_b32 v66, s53, v66
    s_mov_b64 exec, 1
    global_store_dwordx4 v71, v[64:67], {P_WS} sc0 sc1
    s_mov_b64 exec, -1
    s_setprio 0
    """)
    stamp(a, 3)
    a("s_branch L_COMMON")

    def kgen_common(pa, pb):
        a(f"""
        s_lshl_b32 s57, s7, 4
        s_lshr_b32 s56, s56, s57
        s_lshl_b32 s56, s56, 16
        v_mov_b32 v24, {LOG2E}
        v_mul_f32 v24, s56, v24
        v_exp_f32 v24, v24
        s_lshl_b32 s58, s13, 4
        s_sub_u32 s59, 16, s58
        s_lshl_b32 s60, s13, 8
        s_mul_i32 s61, s7, {AB_CH}
        s_add_u32 s60, s60, s61
        v_lshlrev_b32 v28, 2, v1
        v_add_u32 v28, s60, v28
        v_cvt_pk_bf16_f32 v24, v24, v24
        v_lshlrev_b32 v24, 16, v24
        """)

    def kgen_ab(pa, pb):
        a(f"""
        v_lshrrev_b32 v26, s58, v{pa}
        v_lshrrev_b32 v27, s58, v{pb}
        v_lshlrev_b32 v26, 16, v26
        v_lshlrev_b32 v27, 16, v27
        v_mul_f32 v26, v24, v26
        v_mul_f32 v27, v24, v27
        v_mul_f32 v26, {LOG2E}, v26
        v_mul_f32 v27, 0.15915494, v27
        """)
    cnt = [0]
    a.label("L_BTASK")
    a.reset()
    a("s_waitcnt lgkmcnt(0)")
    kgen_common(80, 81)
    a("s_waitcnt vmcnt(0)")
    stamp(a, 2)
    kgen_ab(80, 81)

    def putB(j, reg):
        t = 92 + (cnt[0] % 6)
        cnt[0] += 1
        a(f"v_cvt_pk_f16_f32 v{t}, v{reg}, v{reg+1}")
        a(f"ds_write_b32 v28, v{t} offset:{A_SZ + j*ROW}")

    anchor(a, 42, 26, 27, "0x41000000", 46, 47)
    a(f"""
    v_mov_b32 v92, 0x3c00
    ds_write_b32 v28, v92 offset:{A_SZ}
    """)
    cnt[0] = 1
    cmul(a, 44, 42, 42, 44)
    putB(1, 42)
    prev = 44
    putB(2, 44)
    for k in range(1, 16):
        nxt = 48 + 2 * (k % 2)
        o = 52 + 2 * (k % 2)
        if k < 15:
            cmul(a, nxt, prev, 44, nxt)
        cmul(a, o, prev, 42, o)
        if k < 15:
            putB(2 * (k + 1), nxt)
        putB(2 * k + 1, o)
        prev = nxt
    lds_signal(a, 16, 24, 25)
    a.label("L_COMMON")
    a.reset()
    stamp(a, 4)
    a("v_mov_b32 v96, 0\nv_mov_b32 v97, 0\nv_mov_b32 v98, 0\nv_mov_b32 v99, 0")
    lds_wait_flag(a, "AB", 16, 8, 24, 25)
    stamp(a, 5)
    for s in range(8):
        a(f"ds_read_b128 v[{32+8*s}:{35+8*s}], v108 offset:{64*s}")
        a(f"ds_read_b128 v[{36+8*s}:{39+8*s}], v109 offset:{64*s}")
    for s in range(8):
        a(f"s_waitcnt lgkmcnt({14-2*s})")
        a(f"v_mfma_f32_16x16x32_f16 v[96:99], v[{32+8*s}:{35+8*s}], v[{36+8*s}:{39+8*s}], v[96:99]")
    for r in range(4):
        a(f"v_ldexp_f32 v{32+r}, v{96+r}, -8")
    for r in range(4):
        a(f"v_cvt_f16_f32 v{32+r}, v{32+r}")
    for r in range(4):
        a(f"ds_write_b16 v{110+r}, v{32+r}")
    a(f"""
    global_load_dword v125, v124, {P_WS} sc0 sc1
    global_load_dwordx4 v[{XG}:{XG+3}], v126, {P_WS} sc1
    global_load_dwordx4 v[116:119], v115, {P_WS} sc0 sc1
    global_load_dwordx4 v[120:123], v115, {P_WS} offset:16 sc0 sc1
    """)
    stamp(a, 6)
    lbar(a, 1)
    for e in range(0, 8, 2):
        a(f"ds_read_u16_d16 v{32+e//2}, v{100+e}")
        a(f"ds_read_u16_d16_hi v{36+e//2}, v{101+e}")
    a(f"""
    v_mov_b32 v40, {L_NONCE}
    ds_read_b32 v40, v40
    s_waitcnt lgkmcnt(0)
    v_readfirstlane_b32 s10, v40
    v_or_b32 v32, v32, v36
    v_or_b32 v33, v33, v37
    v_or_b32 v34, v34, v38
    v_or_b32 v35, v35, v39
    ds_write_b128 v114, v[32:35]
    s_mov_b32 s62, 0
    s_cmp_eq_u32 s3, 5
    s_cbranch_scc0 L_NOPAD
    v_mov_b32 v32, 0
    v_mov_b32 v33, 0
    v_mov_b32 v34, 0
    v_mov_b32 v35, 0
    v_bfe_u32 v36, v1, 1, 3
    v_mul_u32_u24 v36, {UCOPY}, v36
    v_and_b32 v37, 1, v1
    v_lshl_add_u32 v36, v37, 4, v36
    s_mov_b64 exec, 0xffff
    ds_write_b128 v36, v[32:35]
    s_mov_b64 exec, -1
    """)
    a.label("L_NOPAD")
    a.reset()
    stamp(a, 7)
    a.label("L_GPOLL")
    a.reset()
    a("s_waitcnt vmcnt(0)")
    piece_hash(a, [32], [XG], 127, 33)
    a(f"""
    v_add_u32 v32, s10, v32
    v_cmp_ne_u32 vcc, v32, v125
    v_xor_b32 v33, s10, v119
    v_xor_b32 v34, s10, v123
    v_or_b32 v34, v33, v34
    v_cmp_lt_u32 s[50:51], 15, v34
    s_or_b64 vcc, vcc, s[50:51]
    s_cbranch_vccz L_GOK
    s_add_u32 s62, s62, 1
    s_cmp_ge_u32 s62, {SPIN_MAX}
    s_cbranch_scc1 L_GOK
    global_load_dword v125, v124, {P_WS} sc0 sc1
    global_load_dwordx4 v[{XG}:{XG+3}], v126, {P_WS} sc1
    global_load_dwordx4 v[116:119], v115, {P_WS} sc0 sc1
    global_load_dwordx4 v[120:123], v115, {P_WS} offset:16 sc0 sc1
    s_branch L_GPOLL
    """)
    a.label("L_GOK")
    a.reset()
    stamp(a, 8)
    a(f"""
    v_mov_b32 v32, v118
    v_mov_b32 v33, v122
    v_add_u32 v34, {L_RB-32}, v128
    ds_write_b64 v34, v[32:33]
    v_bfe_u32 v35, v4, 3, 3
    v_and_b32 v36, 15, v119
    v_cmp_eq_u32 vcc, s5, v35
    v_cmp_ne_u32 s[50:51], s99, v36
    s_and_b64 vcc, vcc, s[50:51]
    s_cbranch_vccz L_UNI
    """)
    lds_signal(a, 32, 34, 35)
    a.label("L_UNI")
    a.reset()
    lds_signal(a, 28, 34, 35)
    st = [116, 117, 120, 121]
    for r in range(4):
        a(f"v_and_b32 v{40+r}, 0xffff0000, v{st[r]}")
    for r in range(4):
        a(f"v_rcp_f32 v{40+r}, v{40+r}")
    for r in range(4):
        a(f"v_lshlrev_b32 v{44+r}, 16, v{st[r]}")
    for r in range(4):
        unpack(a, 48 + 2 * r, 49 + 2 * r, XG + r)
    for r in range(4):
        a(f"v_sub_f32 v{48+2*r}, v{48+2*r}, v{44+r}")
        a(f"v_sub_f32 v{49+2*r}, v{49+2*r}, v{44+r}")
    for r in range(4):
        a(f"v_mul_f32 v{40+r}, 0x45000000, v{40+r}")
    for r in range(4):
        a(f"v_cvt_pk_bf16_f32 v{56+r}, v{48+2*r}, v{49+2*r}")
    for r in range(4):
        unpack(a, 48 + 2 * r, 49 + 2 * r, 56 + r)
    for r in range(4):
        a(f"v_mul_f32 v{48+2*r}, v{48+2*r}, v{40+r}")
        a(f"v_mul_f32 v{49+2*r}, v{49+2*r}, v{40+r}")
    for r in range(4):
        a(f"v_cvt_pk_bf16_f32 v{XN+r}, v{48+2*r}, v{49+2*r}")
    for r in range(4):
        unpack(a, 48 + 2 * r, 49 + 2 * r, XN + r)
    a(f"""
    v_cvt_pk_f16_f32 v60, v48, v50
    v_cvt_pk_f16_f32 v61, v52, v54
    v_cvt_pk_f16_f32 v62, v49, v51
    v_cvt_pk_f16_f32 v63, v53, v55
    ds_write_b64 v128, v[60:61]
    ds_write_b64 v128, v[62:63] offset:{U_CH}
    v_subrev_u32 v9, 8, v128
    """)
    stamp(a, 9)
    lbar(a, 2)
    a(f"""
    ds_read_b64 v[64:65], v9
    ds_read_b64 v[66:67], v9 offset:{U_CH}
    """)
    for c in range(2):
        W0, W1, P0, P1 = 60 + 2 * c, 61 + 2 * c, 64 + 2 * c, 65 + 2 * c
        t = 68 + 8 * c
        a(f"""
        v_alignbyte_b32 v{t+1}, v{W1}, v{W0}, 2
        v_mov_b32 v{t+3}, v{W0}
        """)
    for c in range(2):
        W0, W1, P0, P1 = 60 + 2 * c, 61 + 2 * c, 64 + 2 * c, 65 + 2 * c
        t = 68 + 8 * c
        a(f"s_waitcnt lgkmcnt({1 if c == 0 else 3})")
        a(f"""
        v_alignbyte_b32 v{t}, v{W0}, v{P1}, 2
        v_mov_b32 v{t+2}, v{P1}
        v_alignbyte_b32 v{t+4}, v{P1}, v{P0}, 2
        v_alignbyte_b32 v{t+5}, v{W0}, v{P1}, 2
        ds_write_b64 v128, v[{t}:{t+1}] offset:{c*U_CH+UCOPY}
        ds_write_b64 v128, v[{t+2}:{t+3}] offset:{c*U_CH+2*UCOPY}
        ds_write_b64 v128, v[{t+4}:{t+5}] offset:{c*U_CH+3*UCOPY}
        """)
    a(f"""
    s_cmp_ge_u32 s3, 4
    s_cbranch_scc1 L_AUX
    """)
    a(f"""
    s_setprio 2
    v_and_b32 v8, 15, v1
    v_lshrrev_b32 v9, 4, v1
    v_sub_u32 v10, 15, v8
    v_and_b32 v11, 3, v10
    v_lshrrev_b32 v10, 2, v10
    v_mul_u32_u24 v12, {UCOPY}, v11
    v_lshlrev_b32 v11, 1, v9
    v_sub_u32 v11, v11, v10
    v_add_u32 v11, 4, v11
    v_lshl_add_u32 v12, v11, 3, v12
    s_mul_i32 s12, s7, {U_CH}
    s_lshl_b32 s14, s13, 8
    s_add_u32 s12, s12, s14
    v_add_u32 v12, s12, v12
    v_lshlrev_b32 v13, 4, v9
    v_lshlrev_b32 v11, 5, v8
    v_sub_u32 v13, v13, v11
    s_mul_i32 s12, s7, {K_CH}
    s_add_u32 s12, s12, s14
    s_add_u32 s12, s12, {L_K+480}
    v_add_u32 v13, s12, v13
    v_lshl_add_u32 v14, v8, 2, v9
    v_bfe_u32 v11, v14, 3, 2
    v_xor_b32 v14, v14, v11
    s_lshl_b32 s12, s3, 10
    s_add_u32 s12, s12, {L_PA}
    v_lshl_add_u32 v14, v14, 4, s12
    """)
    ACC = 96
    for i in range(32):
        a(f"v_mov_b32 v{ACC+i}, 0")
    stamp(a, 10)
    lbar(a, 3)
    stamp(a, 11)
    conv_loop(a, ACC, 16, 20)
    for ct in range(8):
        a(f"ds_write_b128 v14, v[{ACC+4*ct}:{ACC+4*ct+3}] offset:{4096*ct}")
    lds_signal(a, 0, 10, 11)
    a(f"""
    s_setprio 0
    s_add_u32 s14, s3, 4
    s_branch L_EPI
    """)
    a.label("L_AUX")
    a.reset()
    stamp(a, 10)
    a("s_waitcnt lgkmcnt(0)")
    lds_signal(a, 12, 10, 11)
    a("s_sub_u32 s14, s3, 4")
    a.label("L_EPI")
    a.reset()
    epilogue(a)
    a(f"""
    s_lshl_b32 s50, s2, 4
    s_add_u32 s50, s50, s3
    s_cmp_eq_u32 s50, 4
    s_cbranch_scc0 L_NOEP
    v_mov_b32 v8, {WS_W0}
    v_mov_b32 v9, s10
    s_mov_b64 exec, 1
    global_store_dword v8, v9, {P_WS} sc0 sc1
    s_mov_b64 exec, -1
    """)
    a.label("L_NOEP")
    a.reset()
    finish(a)
    a.label("L_MOE")
    a.reset()
    a(f"""
    v_subrev_u32 v20, 512, v0
    v_lshrrev_b32 v106, 5, v20
    v_and_b32 v22, 31, v20
    s_lshl_b32 s14, s6, 4
    v_add_u32 v106, s14, v106
    v_mul_u32_u24 v106, 3584, v106
    v_min_u32 v22, 27, v22
    v_lshl_add_u32 v106, v22, 4, v106
    s_mul_i32 s14, s5, 448
    v_add_u32 v106, s14, v106
    v_add_u32 v107, {8*3584}, v106
    v_lshrrev_b32 v108, 3, v20
    s_mul_i32 s14, s6, 56
    v_add_u32 v108, s14, v108
    v_lshlrev_b32 v108, 10, v108
    v_and_b32 v22, 7, v20
    v_lshl_add_u32 v108, v22, 4, v108
    s_lshl_b32 s14, s5, 7
    v_add_u32 v108, s14, v108
    v_add_u32 v109, {24*1024}, v108
    s_waitcnt lgkmcnt(0)
    """)
    kgen_common(100, 101)
    a(f"""
    s_lshl_b32 s14, s5, 18
    s_lshl_b32 s50, s6, 8
    s_add_u32 s14, s14, s50
    s_lshl_b32 s50, s12, 16
    s_add_u32 s14, s14, s50
    s_add_u32 s14, s14, {WS_XC}
    v_lshlrev_b32 v8, 14, v77
    v_lshl_add_u32 v8, v76, 4, v8
    v_add_u32 v8, s14, v8
    v_add_u32 v9, 0x2000, v8
    s_lshl_b32 s14, s4, 7
    s_lshl_b32 s50, s12, 5
    s_add_u32 s14, s14, s50
    s_add_u32 s14, s14, {WS_FL}
    v_lshl_add_u32 v10, v77, 3, s14
    v_lshl_add_u32 v11, v76, 1, 1
    s_waitcnt vmcnt(7)
    """)
    for k in range(2):
        for r in range(4):
            a(f"v_mov_b32 v{112+4*k+r}, v{136+2*r+k}")
    a(f"""
    global_store_dwordx4 v8, v[112:115], {P_WS} sc0 sc1
    global_store_dwordx4 v9, v[116:119], {P_WS} sc0 sc1
    """)
    piece_hash(a, [12, 13], [112, 116], 11, 18)
    lds_wait_flag(a, "N", 4, 1, 18, 19, sleep=False)
    a(f"""
    v_mov_b32 v18, {L_NONCE}
    ds_read_b32 v18, v18
    s_waitcnt lgkmcnt(0)
    v_add_u32 v12, v18, v12
    v_add_u32 v13, v18, v13
    s_mov_b32 exec_lo, 0x00010001
    s_mov_b32 exec_hi, 0x00010001
    global_store_dwordx2 v10, v[12:13], {P_WS} sc0 sc1
    s_mov_b64 exec, -1
    """)
    stamp(a, 10)
    a("s_waitcnt vmcnt(4)")
    stamp(a, 7)
    a(f"""
    global_load_dwordx4 v[144:147], v106, s[38:39]
    global_load_dwordx4 v[148:151], v106, s[40:41]
    global_load_dwordx4 v[152:155], v107, s[38:39]
    global_load_dwordx4 v[156:159], v107, s[40:41]
    global_load_dwordx4 v[160:163], v108, s[42:43]
    global_load_dwordx4 v[164:167], v109, s[42:43]
    """)
    kgen_ab(100, 101)
    for (dst, sh) in ((32, "s58"), (34, "s59")):
        a(f"""
        v_lshrrev_b32 v36, {sh}, v102
        v_lshrrev_b32 v37, {sh}, v103
        v_lshrrev_b32 v38, {sh}, v104
        v_lshrrev_b32 v39, {sh}, v105
        v_lshlrev_b32 v36, 16, v36
        v_lshlrev_b32 v37, 16, v37
        v_lshlrev_b32 v38, 16, v38
        v_lshlrev_b32 v39, 16, v39
        v_mul_f32 v36, v24, v36
        v_mul_f32 v37, v24, v37
        """)
        cmul(a, dst, 38, 36, 40)
    a(f"""
    v_max3_f32 v36, |v32|, |v33|, |v34|
    v_max_f32 v36, v36, |v35|
    """)
    anchor(a, 42, 26, 27, None, 46, 47)
    anchor(a, 44, 26, 27, "0x43800000", 48, 49)
    dpp_reduce(a, "v_max_f32", [36])
    a(f"""
    v_readlane_b32 s62, v36, 63
    v_frexp_exp_i32_f32 v36, s62
    v_sub_u32 v37, 10, v36
    v_ldexp_f32 v50, v32, v37
    v_ldexp_f32 v51, v33, v37
    v_subrev_u32 v36, 13, v36
    v_ldexp_f32 v36, 1.0, v36
    s_lshl_b32 s62, s7, 2
    s_add_u32 s62, s62, {L_KS}
    v_mov_b32 v37, s62
    ds_write_b32 v37, v36
    """)
    Q = lambda k: 50 + 2 * k
    R = lambda row: 66 + 2 * (row - 8)

    def putA(row, reg):
        t = 92 + (cnt[0] % 6)
        cnt[0] += 1
        a(f"v_cvt_pk_f16_f32 v{t}, v{reg}, -v{reg+1}")
        a(f"ds_write_b32 v28, v{t} offset:{row*ROW}")

    putA(0, Q(0))
    cmul(a, R(8), Q(0), 44, R(8))
    cmul(a, Q(1), Q(0), 42, Q(1))
    beta = [(12, 8), (14, 12), (16, 14), (17, 16), (18, 17), (19, 18), (20, 19)]
    putA(8, R(8))
    putA(1, Q(1))
    for k in range(2, 8):
        row, src = beta[k - 2]
        cmul(a, R(row), R(src), 44, R(row))
        cmul(a, Q(k), Q(k - 1), 42, Q(k))
        putA(row, R(row))
        putA(k, Q(k))
    row, src = beta[6]
    cmul(a, R(row), R(src), 44, R(row))
    cmul(a, R(9), Q(2), 44, R(9))
    cmul(a, R(10), Q(4), 44, R(10))
    cmul(a, R(11), Q(6), 44, R(11))
    putA(20, R(20))
    cmul(a, R(13), R(10), 44, R(13))
    putA(9, R(9))
    putA(10, R(10))
    cmul(a, R(15), R(13), 44, R(15))
    putA(11, R(11))
    putA(13, R(13))
    putA(15, R(15))
    lds_signal(a, 16, 24, 25)
    stamp(a, 8)
    a(f"""
    s_sub_u32 s7, s3, 8
    v_and_b32 v8, 15, v1
    v_lshrrev_b32 v9, 4, v1
    s_mov_b32 s12, 0x05040100
    s_mov_b32 s13, 0x07060302
    """)

    def pack(L, F):
        for j in range(8):
            for k in range(4):
                a(f"v_perm_b32 v{F+4*j+k}, v{L+4*(2*k+1)+(j>>1)}, v{L+4*(2*k)+(j>>1)}, s{12+(j&1)}")

    def keys(tag, B):
        a(f"""
        v_lshlrev_b32 v{B+20}, 4, v20
        v_add_u32 v{B+20}, {L_RB}, v{B+20}
        v_lshlrev_b32 v{B+21}, 3, v20
        v_sub_u32 v{B+21}, 0x7ff, v{B+21}
        v_mov_b32 v{B+19}, {L_NONCE}
        ds_read_b128 v[{B+4}:{B+7}], v{B+20}
        ds_read_b32 v{B+19}, v{B+19}
        s_waitcnt lgkmcnt(0)
        v_readfirstlane_b32 s10, v{B+19}
        """)
        for q in range(4):
            x = B + 4 + q
            a(f"""
            v_pk_ashrrev_i16 v{B+22}, 15, v{x} op_sel_hi:[0,1]
            v_or_b32 v{B+22}, 0x80008000, v{B+22}
            v_xor_b32 v{x}, v{x}, v{B+22}
            v_subrev_u32 v{B+22}, {2*q}, v{B+21}
            v_lshl_or_b32 v{B+8+2*q}, v{x}, 16, v{B+22}
            v_subrev_u32 v{B+22}, {2*q+1}, v{B+21}
            v_and_or_b32 v{B+9+2*q}, v{x}, s58, v{B+22}
            """)
        k0 = B + 8
        a(f"""
        v_max_u32 v{B}, v{k0}, v{k0+1}
        v_min_u32 v{B+1}, v{k0}, v{k0+1}
        """)
        for k in range(k0 + 2, k0 + 8):
            a(f"""
            v_min_u32 v{B+2}, v{B}, v{k}
            v_max_u32 v{B}, v{B}, v{k}
            v_max_u32 v{B+1}, v{B+1}, v{B+2}
            """)
        a(f"v_mov_b32 v{B+2}, v{B}")
        dpp_reduce(a, "v_max_u32", [B + 2])
        a(f"""
        v_readlane_b32 s50, v{B+2}, 63
        v_cmp_eq_u32 vcc, s50, v{B}
        v_cndmask_b32 v{B+2}, v{B}, v{B+1}, vcc
        """)
        dpp_reduce(a, "v_max_u32", [B + 2])
        a(f"""
        v_readlane_b32 s51, v{B+2}, 63
        s_lshl_b32 s52, s7, 3
        s_add_u32 s52, s52, {L_KEYS}
        v_mov_b32 v{B}, s50
        v_mov_b32 v{B+1}, s51
        v_mov_b32 v{B+2}, s52
        ds_write_b64 v{B+2}, v[{B}:{B+1}]
        """)
        lds_signal(a, 20, B + 3, B + 4)
        lds_wait_flag(a, "KK" + tag, 20, 4, B + 3, B + 4, sleep=False)
        a(f"""
        v_mov_b32 v{B+2}, {L_KEYS}
        ds_read_b128 v[{B+8}:{B+11}], v{B+2}
        ds_read_b128 v[{B+12}:{B+15}], v{B+2} offset:16
        s_waitcnt lgkmcnt(0)
        v_max_u32 v{B}, v{B+8}, v{B+10}
        v_min_u32 v{B+1}, v{B+8}, v{B+10}
        v_max3_u32 v{B+1}, v{B+1}, v{B+9}, v{B+11}
        """)
        for k in (B + 12, B + 14):
            a(f"""
            v_min_u32 v{B+2}, v{B}, v{k}
            v_max_u32 v{B}, v{B}, v{k}
            v_max3_u32 v{B+1}, v{B+1}, v{B+2}, v{k+1}
            """)
        a(f"""
        v_readfirstlane_b32 s50, v{B}
        v_readfirstlane_b32 s51, v{B+1}
        s_and_b32 s8, s50, 0x7ff
        s_sub_u32 s8, 0x7ff, s8
        s_and_b32 s9, s51, 0x7ff
        s_sub_u32 s9, 0x7ff, s9
        v_mov_b32 v{B}, s8
        v_mov_b32 v{B+1}, s9
        v_mov_b32 v{B+2}, {L_IDX}
        ds_write_b64 v{B+2}, v[{B}:{B+1}]
        """)
        lds_signal(a, 24, B + 3, B + 4)
        stamp(a, 4)

    lds_wait_flag(a, "RB", 28, 8, 12, 13)
    a("s_setprio 3")
    stamp(a, 9)
    a(f"""
    s_mov_b32 s58, 0xffff0000
    s_cmp_ge_u32 s6, 18
    s_cbranch_scc1 L_NOMOE
    s_cmp_ge_u32 s6, 14
    s_cbranch_scc1 L_DOWN
    """)
    a(f"""
    s_mul_i32 s11, s5, 14
    s_add_u32 s11, s11, s6
    v_lshrrev_b32 v10, 2, v8
    v_lshlrev_b32 v4, 5, v10
    v_lshl_add_u32 v4, v9, 3, v4
    s_lshl_b32 s14, s7, 7
    v_add_u32 v4, s14, v4
    v_mul_u32_u24 v4, 3584, v4
    v_and_b32 v5, 1, v1
    v_lshl_add_u32 v4, v5, 4, v4
    s_lshl_b32 s14, s11, 5
    v_add_u32 v4, s14, v4
    v_and_b32 v5, 2, v1
    v_cmp_ne_u32 s[50:51], 0, v5
    s_waitcnt lgkmcnt(0)
    v_mov_b32 v6, s38
    v_mov_b32 v7, s39
    v_mov_b32 v11, s40
    v_mov_b32 v12, s41
    v_cndmask_b32 v6, v6, v11, s[50:51]
    v_cndmask_b32 v7, v7, v12, s[50:51]
    v_add_co_u32 v6, vcc, v6, v4
    v_addc_co_u32 v7, vcc, 0, v7, vcc
    """)
    L, F, AC = 112, 64, 32
    for e2 in range(4):
        a(f"global_load_dwordx4 v[{L+8*e2}:{L+8*e2+3}], v[6:7], off")
        a(f"global_load_dwordx4 v[{L+8*e2+4}:{L+8*e2+7}], v[6:7], off offset:3584")
        if e2 < 3:
            a("v_add_co_u32 v6, vcc, 7168, v6")
            a("v_addc_co_u32 v7, vcc, 0, v7, vcc")
    stamp(a, 1)
    keys("G", 32)
    a(f"""
    s_mov_b32 s52, 0
    s_mov_b32 s53, -1
    v_mov_b32 v12, s8
    v_mov_b32 v13, s9
    v_cndmask_b32 v12, v12, v13, s[52:53]
    v_and_b32 v13, 31, v1
    v_lshlrev_b32 v13, 3, v13
    s_lshl_b32 s14, s7, 8
    v_add_u32 v13, s14, v13
    v_lshl_add_u32 v14, v12, 10, v13
    global_load_dwordx2 v[16:17], v14, {P_X}
    v_lshrrev_b32 v15, 1, v12
    v_lshlrev_b32 v15, 4, v15
    v_and_b32 v18, 1, v12
    v_lshl_add_u32 v15, v18, 2, v15
    global_load_dword v18, v15, {P_WS} sc0 sc1
    v_lshrrev_b32 v19, 5, v1
    v_lshl_add_u32 v13, v19, 10, v13
    v_add_u32 v13, {L_MOE}, v13
    v_and_b32 v19, 1, v1
    v_lshlrev_b32 v19, 10, v19
    v_lshl_add_u32 v19, v9, 4, v19
    v_lshl_add_u32 v19, v10, 6, v19
    s_add_u32 s14, s14, {L_MOE}
    v_add_u32 v19, s14, v19
    """)
    for i in range(32):
        a(f"v_mov_b32 v{AC+i}, 0")
    a(f"""
    v_cmp_eq_u32 s[54:55], v9, v10
    s_lshl_b32 s14, s7, 10
    s_add_u32 s14, s14, {L_MP}
    v_lshl_add_u32 v24, v10, 8, s14
    v_bfe_u32 v25, v1, 1, 1
    v_lshl_add_u32 v24, v25, 7, v24
    v_and_b32 v25, 1, v1
    v_lshl_add_u32 v24, v25, 5, v24
    s_waitcnt vmcnt(2)
    """)
    stamp(a, 2)
    pack(L, F)
    a("s_waitcnt vmcnt(0)")
    stamp(a, 5)
    a(f"""
    v_and_b32 v20, 0xffff0000, v18
    v_rcp_f32 v20, v20
    v_lshlrev_b32 v21, 16, v18
    """)
    unpack(a, 26, 27, 16)
    unpack(a, 28, 29, 17)
    for k in range(4):
        a(f"v_sub_f32 v{26+k}, v{26+k}, v21")
    a("v_cvt_pk_bf16_f32 v16, v26, v27\nv_cvt_pk_bf16_f32 v17, v28, v29")
    unpack(a, 26, 27, 16)
    unpack(a, 28, 29, 17)
    for k in range(4):
        a(f"v_mul_f32 v{26+k}, v{26+k}, v20")
    a("v_cvt_pk_bf16_f32 v16, v26, v27\nv_cvt_pk_bf16_f32 v17, v28, v29")
    a(f"""
    ds_write_b64 v13, v[16:17]
    ds_read_b128 v[20:23], v19
    s_waitcnt lgkmcnt(0)
    """)
    for j in range(8):
        a(f"v_mfma_f32_16x16x32_bf16 v[{AC+4*j}:{AC+4*j+3}], v[20:23], v[{F+4*j}:{F+4*j+3}], v[{AC+4*j}:{AC+4*j+3}]")
    a("s_mov_b64 exec, s[54:55]")
    for j in range(8):
        a(f"ds_write2_b32 v24, v{AC+4*j}, v{AC+4*j+1} offset0:{j} offset1:{16+j}")
    a("s_mov_b64 exec, -1")
    lds_signal(a, 8, 12, 13)
    a(f"""
    s_cmp_eq_u32 s7, 0
    s_cbranch_scc0 L_MFIN
    v_lshlrev_b32 v28, 2, v1
    v_add_u32 v28, {L_MP}, v28
    """)
    lds_wait_flag(a, "G", 8, 4, 12, 13)
    for i in range(16):
        a(f"ds_read_b32 v{32+i}, v28 offset:{256*i}")
    a("s_waitcnt lgkmcnt(0)")
    for st in (1, 2, 4, 8):
        for i in range(0, 16, 2 * st):
            a(f"v_add_f32 v{32+i}, v{32+i}, v{32+i+st}")
    a(f"""
    v_mov_b32 v36, v32
    v_permlane32_swap_b32 v32, v36
    v_cvt_pk_bf16_f32 v32, v32, v36
    v_and_b32 v36, 0xffff0000, v32
    v_lshlrev_b32 v32, 16, v32
    v_mul_f32 v33, {NEGL2E}, v32
    v_exp_f32 v33, v33
    v_add_f32 v33, 1.0, v33
    v_rcp_f32 v33, v33
    v_mul_f32 v32, v32, v33
    v_cvt_pk_bf16_f32 v32, v32, v32
    v_lshlrev_b32 v32, 16, v32
    v_mul_f32 v32, v32, v36
    v_cvt_pk_bf16_f32 v32, v32, v32
    v_and_b32 v32, 0xffff, v32
    v_mov_b32_dpp v33, v32 quad_perm:[1,1,1,1] row_mask:0xf bank_mask:0xf
    v_mov_b32_dpp v34, v32 quad_perm:[2,2,2,2] row_mask:0xf bank_mask:0xf
    v_mov_b32_dpp v35, v32 quad_perm:[3,3,3,3] row_mask:0xf bank_mask:0xf
    v_lshl_or_b32 v40, v33, 16, v32
    v_lshl_or_b32 v41, v35, 16, v34
    v_mov_b32 v42, s10
    v_mov_b32 v43, s10
    v_lshrrev_b32 v24, 2, v1
    v_lshlrev_b32 v24, 4, v24
    s_lshl_b32 s14, s11, 7
    s_add_u32 s14, s14, {WS_HG}
    v_add_u32 v24, s14, v24
    s_mov_b64 exec, 0x11111111
    global_store_dwordx4 v24, v[40:43], {P_WS} sc0 sc1
    s_mov_b64 exec, -1
    """)
    stamp(a, 6)
    a.label("L_MFIN")
    a.reset()
    finish(a)
    a.label("L_DOWN")
    a.reset()
    a(f"""
    s_lshl_b32 s11, s5, 2
    s_add_u32 s11, s11, s6
    s_sub_u32 s11, s11, 14
    v_lshrrev_b32 v10, 1, v8
    v_lshlrev_b32 v4, 5, v10
    v_lshl_add_u32 v4, v9, 3, v4
    s_lshl_b32 s14, s7, 8
    v_add_u32 v4, s14, v4
    v_lshlrev_b32 v4, 10, v4
    v_and_b32 v5, 1, v1
    v_lshl_add_u32 v4, v5, 4, v4
    s_lshl_b32 s14, s11, 5
    v_add_u32 v4, s14, v4
    v_add_u32 v5, 0x1000, v4
    s_cmp_eq_u32 s7, 3
    s_cselect_b32 s15, 0, {1024*1024}
    v_add_u32 v6, s15, v4
    v_add_u32 v7, s15, v5
    s_waitcnt lgkmcnt(0)
    """)
    L0, L1, F0, AC = 32, 64, 96, 128
    for e in range(8):
        a(f"global_load_dwordx4 v[{L0+4*e}:{L0+4*e+3}], v{4+(e>>2)}, s[42:43] offset:{1024*(e&3)}")
    for e in range(8):
        a(f"global_load_dwordx4 v[{L1+4*e}:{L1+4*e+3}], v{6+(e>>2)}, s[42:43] offset:{1024*(e&3)}")
    stamp(a, 1)
    keys("D", 100)
    a("s_waitcnt vmcnt(8)")
    pack(L0, F0)
    a("s_waitcnt vmcnt(0)")
    stamp(a, 2)
    pack(L1, L0)
    F1 = L0
    a(f"""
    s_lshl_b32 s14, s7, 11
    s_add_u32 s14, s14, {WS_HG}
    v_lshl_add_u32 v12, v1, 4, s14
    s_cmp_eq_u32 s7, 3
    s_cselect_b32 s15, 0, 0x2000
    v_add_u32 v13, s15, v12
    s_mov_b32 s62, 0
    """)
    for i in range(32):
        a(f"v_mov_b32 v{AC+i}, 0")
    a(f"""
    s_lshl_b32 s14, s7, 11
    s_add_u32 s14, s14, {L_MOE}
    v_lshrrev_b32 v24, 3, v1
    v_lshlrev_b32 v24, 5, v24
    v_and_b32 v25, 3, v1
    v_lshl_add_u32 v24, v25, 3, v24
    v_bfe_u32 v25, v1, 2, 1
    v_lshl_add_u32 v24, v25, 9, v24
    v_add_u32 v24, s14, v24
    v_and_b32 v25, 1, v1
    v_lshlrev_b32 v25, 9, v25
    v_lshl_add_u32 v25, v10, 6, v25
    v_lshl_add_u32 v25, v9, 4, v25
    v_add_u32 v25, s14, v25
    """)
    stamp(a, 3)
    a.label("L_HPOLL")
    a.reset()
    a(f"""
    global_load_dwordx4 v[64:67], v12, {P_WS} sc0 sc1
    global_load_dwordx4 v[68:71], v12, {P_WS} offset:1024 sc0 sc1
    global_load_dwordx4 v[72:75], v13, {P_WS} sc0 sc1
    global_load_dwordx4 v[76:79], v13, {P_WS} offset:1024 sc0 sc1
    s_waitcnt vmcnt(0)
    v_cmp_ne_u32 vcc, s10, v67
    v_cmp_ne_u32 s[52:53], s10, v71
    v_cmp_ne_u32 s[54:55], s10, v75
    v_cmp_ne_u32 s[56:57], s10, v79
    s_or_b64 vcc, vcc, s[52:53]
    s_or_b64 s[54:55], s[54:55], s[56:57]
    s_or_b64 vcc, vcc, s[54:55]
    s_cbranch_vccz L_HOK
    s_sleep 2
    s_add_u32 s62, s62, 1
    s_cmp_lt_u32 s62, {SPIN_MAX}
    s_cbranch_scc1 L_HPOLL
    """)
    a.label("L_HOK")
    a.reset()
    stamp(a, 4)
    a(f"""
    ds_write_b64 v24, v[64:65]
    ds_write_b64 v24, v[68:69] offset:256
    ds_write_b64 v24, v[72:73] offset:1024
    ds_write_b64 v24, v[76:77] offset:1280
    ds_read_b128 v[16:19], v25
    ds_read_b128 v[20:23], v25 offset:1024
    s_waitcnt lgkmcnt(1)
    """)
    for j in range(8):
        a(f"v_mfma_f32_16x16x32_bf16 v[{AC+4*j}:{AC+4*j+3}], v[16:19], v[{F0+4*j}:{F0+4*j+3}], v[{AC+4*j}:{AC+4*j+3}]")
    a(f"""
    s_waitcnt lgkmcnt(0)
    s_cmp_eq_u32 s7, 3
    s_cbranch_scc1 L_DSKIP
    """)
    for j in range(8):
        a(f"v_mfma_f32_16x16x32_bf16 v[{AC+4*j}:{AC+4*j+3}], v[20:23], v[{F1+4*j}:{F1+4*j+3}], v[{AC+4*j}:{AC+4*j+3}]")
    a.label("L_DSKIP")
    a.reset()
    a(f"""
    v_lshrrev_b32 v26, 1, v10
    v_cmp_eq_u32 s[54:55], v9, v26
    v_and_b32 v26, 1, v10
    v_cmp_eq_u32 s[52:53], 1, v26
    s_lshl_b32 s14, s7, 10
    s_add_u32 s14, s14, {L_MP}
    v_lshl_add_u32 v24, v10, 7, s14
    v_and_b32 v26, 1, v1
    v_lshl_add_u32 v24, v26, 5, v24
    s_nop 7
    """)
    for j in range(8):
        a(f"v_cndmask_b32 v{AC+4*j}, v{AC+4*j}, v{AC+4*j+2}, s[52:53]")
        a(f"v_cndmask_b32 v{AC+4*j+1}, v{AC+4*j+1}, v{AC+4*j+3}, s[52:53]")
    a("s_mov_b64 exec, s[54:55]")
    for j in range(8):
        a(f"ds_write2_b32 v24, v{AC+4*j}, v{AC+4*j+1} offset0:{j} offset1:{16+j}")
    a("s_mov_b64 exec, -1")
    lds_signal(a, 8, 12, 13)
    a(f"""
    s_cmp_eq_u32 s7, 0
    s_cbranch_scc0 L_DFIN
    """)
    a(f"""
    v_bfe_u32 v24, v1, 4, 1
    v_bfe_u32 v27, v1, 1, 3
    s_lshl_b32 s14, s11, 3
    v_add_u32 v26, s14, v27
    v_lshlrev_b32 v29, 4, v26
    v_lshl_add_u32 v29, v24, 12, v29
    v_add_u32 v29, {WS_TG}, v29
    v_cmp_eq_u32 vcc, 1, v24
    v_mov_b32 v30, s50
    v_mov_b32 v31, s51
    v_cndmask_b32 v30, v30, v31, vcc
    v_mov_b32 v44, s8
    v_mov_b32 v31, s9
    v_cndmask_b32 v44, v44, v31, vcc
    v_lshrrev_b32 v30, 16, v30
    v_bfe_i32 v31, v30, 15, 1
    v_not_b32 v31, v31
    v_or_b32 v31, 0x8000, v31
    v_xor_b32 v30, v30, v31
    v_lshlrev_b32 v30, 16, v30
    v_mul_f32 v30, {NEGL2E}, v30
    v_exp_f32 v30, v30
    v_add_f32 v30, 1.0, v30
    v_rcp_f32 v30, v30
    v_cvt_pk_bf16_f32 v30, v30, v30
    v_lshlrev_b32 v30, 16, v30
    v_lshlrev_b32 v44, 10, v44
    v_lshl_add_u32 v44, v26, 2, v44
    v_and_b32 v28, 31, v1
    v_lshlrev_b32 v28, 2, v28
    v_lshrrev_b32 v31, 5, v1
    v_lshl_add_u32 v28, v31, 11, v28
    v_add_u32 v28, {L_MP}, v28
    """)
    lds_wait_flag(a, "D", 8, 4, 12, 13)
    for i in range(16):
        a(f"ds_read_b32 v{48+i}, v28 offset:{128*i}")
    a("s_waitcnt lgkmcnt(0)")
    for st in (1, 2, 4, 8):
        for i in range(0, 16, 2 * st):
            a(f"v_add_f32 v{48+i}, v{48+i}, v{48+i+st}")
    a(f"""
    v_mov_b32 v49, v48
    v_permlane32_swap_b32 v48, v49
    v_add_f32 v52, v48, v49
    v_mov_b32_dpp v53, v52 quad_perm:[1,1,3,3] row_mask:0xf bank_mask:0xf
    v_cvt_pk_bf16_f32 v52, v52, v53
    v_and_b32 v53, 0xffff0000, v52
    v_lshlrev_b32 v52, 16, v52
    v_mul_f32 v52, v52, v30
    v_mul_f32 v53, v53, v30
    v_cvt_pk_bf16_f32 v52, v52, v53
    v_and_b32 v53, 0xffff0000, v52
    v_lshlrev_b32 v52, 16, v52
    s_mov_b32 s62, 0
    """)
    stamp(a, 5)
    a.label("L_TPOLL")
    a.reset()
    a(f"""
    global_load_dwordx4 v[56:59], v29, {P_WS} sc0 sc1
    s_waitcnt vmcnt(0)
    v_cmp_ne_u32 vcc, s10, v59
    s_cbranch_vccz L_TOK
    s_sleep 1
    s_add_u32 s62, s62, 1
    s_cmp_lt_u32 s62, {SPIN_MAX}
    s_cbranch_scc1 L_TPOLL
    """)
    a.label("L_TOK")
    a.reset()
    stamp(a, 6)
    a(f"""
    v_mov_b32 v62, 0x3a000000
    v_lshlrev_b32 v60, 16, v57
    v_and_b32 v61, 0xffff0000, v57
    v_fma_f32 v52, v60, v62, v52
    v_fma_f32 v53, v61, v62, v53
    v_cvt_pk_bf16_f32 v52, v52, v53
    v_and_b32 v53, 0xffff0000, v52
    v_lshlrev_b32 v52, 16, v52
    v_lshlrev_b32 v60, 16, v56
    v_and_b32 v61, 0xffff0000, v56
    v_add_f32 v52, v52, v60
    v_add_f32 v53, v53, v61
    v_cvt_pk_bf16_f32 v52, v52, v53
    s_mov_b64 exec, 0x55555555
    global_store_dword v44, v52, {P_OUT}
    s_mov_b64 exec, -1
    """)
    a.label("L_DFIN")
    a.reset()
    finish(a)
    a.label("L_NOMOE")
    a.reset()
    keys("N", 32)
    finish(a)
    a.label("L_END")
    a("s_endpgm")


def main(out):
    a = Asm()
    a.raw(f"; @launch grid=(256,1,1) block=(768,1,1) lds={LDS_SIZE}")
    a.raw('.amdgcn_target "amdgcn-amd-amdhsa--gfx950"')
    a.raw(".text")
    gen(a)
    a.raw('.section .rodata,"a"')
    a.raw(f""".p2align 6
.amdhsa_kernel {NAME}_kernel
  .amdhsa_next_free_vgpr 168
  .amdhsa_next_free_sgpr 102
  .amdhsa_accum_offset 168
  .amdhsa_group_segment_fixed_size 0
  .amdhsa_kernarg_size 136
  .amdhsa_user_sgpr_count 2
  .amdhsa_user_sgpr_kernarg_segment_ptr 1
  .amdhsa_system_sgpr_workgroup_id_x 1
  .amdhsa_float_denorm_mode_32 3
.end_amdhsa_kernel
""")
    open(out, "w").write(a.text())
    print("nops inserted:", a.nops_inserted)


if __name__ == "__main__":
    import subprocess
    out = sys.argv[1] if len(sys.argv) > 1 else "k2.s"
    main(out)
    subprocess.check_call(["clang", "-x", "assembler", "-target", "amdgcn-amd-amdhsa", "-mcpu=gfx950", "-c", out, "-o", "pass1.o"])
    syms = subprocess.check_output(["llvm-objdump", "-t", "pass1.o"]).decode().split("\n")
    addr = {l.split()[-1]: int(l.split()[0], 16) for l in syms if ".text" in l and len(l.split()) >= 5}
    CODE_SPAN[0] = addr["L_END"] - addr[NAME + "_kernel"] - 16
    print("code bytes", CODE_SPAN[0] + 16)
    main(out)
```

```python
import sys, os
from asmlib import Asm

NAME = "parallel_sum__ssm_conv_s4__moe_arch_mod__prompt"
MB = 1 << 20
STAMP = os.environ.get("STAMP", "0") == "1"
WS_GR = 0x0
WS_HG = 0x8000
WS_TG = 0x10000
WS_C2 = 0x28000
WS_W0 = 0x30000
WS_FL = 0x20000
WS_XC = 1 * MB
WS_STAMP = 16 * MB

LOG2E = "0x3fb8aa3b"
NEGL2E = "0xbfb8aa3b"
SPIN_MAX = 1 << 18
CODE_SPAN = [0x1000]

ROW = 544
A_SZ = 21 * ROW
AB_CH = A_SZ + 32 * ROW
UCOPY = 4160
U_CH = 4 * UCOPY
L_PA = 2 * U_CH
L_PB = L_PA + 16384
L_K = L_PB + 16384
K_CH = 4608
L_TAB = L_K + 2 * K_CH
L_MOE = L_TAB + 3072
L_MP = L_MOE + 8192
L_MISC = L_MP + 4096
L_KEYS = L_MISC
L_NONCE = L_MISC + 64
L_KS = L_MISC + 80
L_FLAG = L_MISC + 96
T_OFF = L_MISC + 192
LDS_SIZE = T_OFF + 8448

P_X, P_ARE, P_AIM, P_BRE, P_BIM, P_CRE, P_CIM, P_LDT = [f"s[{16+2*i}:{17+2*i}]" for i in range(8)]
P_DSK, P_WR, P_OUT, P_DBG, P_WS = "s[32:33]", "s[36:37]", "s[44:45]", "s[46:47]", "s[48:49]"


def stamp(a, idx):
    if STAMP:
        a(f"{'s_memtime' if os.environ.get('STAMPCLK') == '1' else 's_memrealtime'} s[{64+2*idx}:{65+2*idx}]")


def stamp_init(a):
    if STAMP:
        for i in range(64, 96, 2):
            a(f"s_mov_b64 s[{i}:{i+1}], 0")
        stamp(a, 0)


def finish(a):
    if STAMP:
        a("s_waitcnt vmcnt(0)")
        stamp(a, 15)
        a(f"""
        s_lshl_b32 s98, s2, 4
        s_add_u32 s98, s98, s3
        s_lshl_b32 s98, s98, 7
        s_add_u32 s98, s98, {WS_STAMP}
        s_waitcnt lgkmcnt(0)
        s_mov_b64 exec, 1
        v_mov_b32 v0, s98
        """)
        for q in range(8):
            for k in range(4):
                a(f"v_mov_b32 v{4+k}, s{64+4*q+k}")
            a(f"global_store_dwordx4 v0, v[4:7], {P_WS} offset:{16*q}")
            a("s_nop 1")
    a("s_endpgm")


def cmul(a, R, X, Y, T):
    a(f"v_pk_mul_f32 v[{T}:{T+1}], v[{X}:{X+1}], v[{Y}:{Y+1}] op_sel:[0,0] op_sel_hi:[0,1]")
    a(f"v_pk_fma_f32 v[{R}:{R+1}], v[{X}:{X+1}], v[{Y}:{Y+1}], v[{T}:{T+1}] op_sel:[1,1,0] op_sel_hi:[1,0,1] neg_lo:[1,0,0]")


ROWSTEPS = ["quad_perm:[1,0,3,2] row_mask:0xf bank_mask:0xf",
            "quad_perm:[2,3,0,1] row_mask:0xf bank_mask:0xf",
            "row_half_mirror row_mask:0xf bank_mask:0xf",
            "row_mirror row_mask:0xf bank_mask:0xf"]


def dpp_reduce(a, op, regs):
    for s in ROWSTEPS + ["row_bcast:15 row_mask:0xa bank_mask:0xf", "row_bcast:31 row_mask:0xc bank_mask:0xf"]:
        for r in regs:
            a(f"{op}_dpp v{r}, v{r}, v{r} {s}")


def half_reduce_add(a, regs, tmps):
    for s in ROWSTEPS:
        for r in regs:
            a(f"v_add_f32_dpp v{r}, v{r}, v{r} {s}")
    for r, t in zip(regs, tmps):
        a(f"v_mov_b32 v{t}, v{r}")
    for r, t in zip(regs, tmps):
        a(f"v_permlane16_swap_b32 v{r}, v{t}")
    for r, t in zip(regs, tmps):
        a(f"v_add_f32 v{r}, v{r}, v{t}")


def anchor(a, P, vA, vB, lf, t0, t1):
    if lf is None:
        a(f"v_exp_f32 v{t0}, v{vA}")
        a(f"v_fract_f32 v{t1}, v{vB}")
    else:
        a(f"v_mul_f32 v{t0}, {lf}, v{vA}")
        a(f"v_mul_f32 v{t1}, {lf}, v{vB}")
        a(f"v_exp_f32 v{t0}, v{t0}")
        a(f"v_fract_f32 v{t1}, v{t1}")
    a(f"v_cos_f32 v{P}, v{t1}")
    a(f"v_sin_f32 v{P+1}, v{t1}")
    a(f"v_mul_f32 v{P}, v{t0}, v{P}")
    a(f"v_mul_f32 v{P+1}, v{t0}, v{P+1}")


def unpack(a, lo, hi, src):
    a(f"v_lshlrev_b32 v{lo}, 16, v{src}")
    a(f"v_and_b32 v{hi}, 0xffff0000, v{src}")


def lds_wait_flag(a, tag, off, val, vaddr, vtmp, sleep=True, saddr=None):
    a(f"""
    v_mov_b32 v{vaddr}, {saddr if saddr else L_FLAG+off}
    s_mov_b32 s62, 0
    """)
    a.label(f"LW_{tag}")
    a.reset()
    a(f"""
    ds_read_b32 v{vtmp}, v{vaddr}
    s_add_u32 s62, s62, 1
    s_waitcnt lgkmcnt(0)
    v_readfirstlane_b32 s63, v{vtmp}
    s_cmp_ge_u32 s63, {val}
    s_cbranch_scc1 LWD_{tag}
    {"s_sleep 1" if sleep else ""}
    s_cmp_lt_u32 s62, {SPIN_MAX}
    s_cbranch_scc1 LW_{tag}
    """)
    a.label(f"LWD_{tag}")
    a.reset()


def lds_signal(a, off, vaddr, vtmp):
    a(f"""
    v_mov_b32 v{vaddr}, {L_FLAG+off}
    v_mov_b32 v{vtmp}, 1
    s_mov_b64 exec, 1
    ds_add_u32 v{vaddr}, v{vtmp}
    s_mov_b64 exec, -1
    """)


def piece_hash(a, dst, d, vmul, t):
    for D, B in zip(dst, d):
        a(f"v_alignbit_b32 v{t}, v{B+1}, v{B+1}, 25")
        a(f"v_alignbit_b32 v{t+1}, v{B+2}, v{B+2}, 19")
        a(f"v_alignbit_b32 v{D}, v{B+3}, v{B+3}, 10")
        a(f"v_add3_u32 v{t}, v{t}, v{t+1}, v{B}")
        a(f"v_add_u32 v{D}, v{D}, v{t}")
        a(f"v_mul_lo_u32 v{D}, v{D}, v{vmul}")
    for s in ROWSTEPS:
        for D in dst:
            a(f"v_add_u32_dpp v{D}, v{D}, v{D} {s}")


def lbar(a, n, va=158, vb=159, sleep=False):
    a("s_waitcnt lgkmcnt(0)")
    a(f"""
    v_mov_b32 v{va}, {L_FLAG+12}
    v_mov_b32 v{vb}, 1
    s_mov_b64 exec, 1
    ds_add_u32 v{va}, v{vb}
    s_mov_b64 exec, -1
    s_mov_b32 s62, 0
    """)
    a.label(f"LB_{n}")
    a.reset()
    a(f"""
    ds_read_b32 v{vb}, v{va}
    s_add_u32 s62, s62, 1
    s_waitcnt lgkmcnt(0)
    v_readfirstlane_b32 s63, v{vb}
    s_cmp_ge_u32 s63, {8*n}
    s_cbranch_scc1 LBD_{n}
    {"s_sleep 1" if sleep else ""}
    s_cmp_lt_u32 s62, {SPIN_MAX}
    s_cbranch_scc1 LB_{n}
    """)
    a.label(f"LBD_{n}")
    a.reset()


XG = 160
XN = 164


def conv_loop(a, ACC, FB, NS, fillers):
    desc = []
    for lv in range(7, -1, -1):
        for o in range(0, lv + 1):
            if lv + o <= 7:
                desc.append((lv, o))
                if o != lv:
                    desc.append((o, lv))
    asc = [(q, ct - q) for ct in range(8) for q in range(ct + 1)]
    ml = []
    loads = []
    for ri in range(4):
        pairs = asc if (ri == 3 and os.environ.get("CONV_ASC", "1") == "1") else desc
        for (q, m) in pairs:
            ml.append((ri, q, m))
            for f in ((ri, "U", q), (ri, "K", m)):
                if f not in loads:
                    loads.append(f)
    last_use = {}
    last_ct = {}
    for i, (ri, q, m) in enumerate(ml):
        last_use[(ri, "U", q)] = i
        last_use[(ri, "K", m)] = i
        last_ct[q + m] = i
    free = list(range(NS))
    slot = {}
    ready = {}
    st = {"iss": 0, "done": 0}
    li = 0
    fillers = list(fillers)

    def issue(key):
        sl = free.pop(0)
        slot[key] = sl
        reg = FB + 4 * sl
        ri, kind, n = key
        if kind == "U":
            a(f"ds_read_b64 v[{reg}:{reg+1}], v12 offset:{512*n+64*ri}")
            a(f"ds_read_b64 v[{reg+2}:{reg+3}], v12 offset:{512*n+64*ri+8}")
            st["iss"] += 2
        else:
            a(f"ds_read_b128 v[{reg}:{reg+3}], v13 offset:{512*(7-n)+64*ri}")
            st["iss"] += 1
        ready[key] = st["iss"]

    def dump(ct):
        a(f"ds_write_b128 v14, v[{ACC+4*ct}:{ACC+4*ct+3}] offset:{4096*ct}")
        a("s_mov_b64 exec, 1")
        a(f"ds_add_u32 v10, v11 offset:{4*ct}")
        a("s_mov_b64 exec, -1")
        st["iss"] += 2

    pend = []
    while li < len(loads) and free and st["iss"] < 13:
        issue(loads[li]); li += 1
    for i, (ri, q, m) in enumerate(ml):
        ku, kk = (ri, "U", q), (ri, "K", m)
        while ku not in ready or kk not in ready:
            issue(loads[li]); li += 1
        need = max(ready[ku], ready[kk])
        if need > st["done"]:
            a(f"s_waitcnt lgkmcnt({min(st['iss'] - need, 15)})")
            st["done"] = need
        ct = q + m
        ru, rk = FB + 4 * slot[ku], FB + 4 * slot[kk]
        a(f"v_mfma_f32_16x16x32_f16 v[{ACC+4*ct}:{ACC+4*ct+3}], v[{ru}:{ru+3}], v[{rk}:{rk+3}], v[{ACC+4*ct}:{ACC+4*ct+3}]")
        for k in (ku, kk):
            if last_use[k] == i:
                free.append(slot[k])
        if last_ct[ct] == i:
            pend.append((i + 4 if os.environ.get("CONV_EARLY", "1") == "1" else 10**6, ct))
        did = False
        if pend and pend[0][0] <= i:
            dump(pend.pop(0)[1]); did = True
        if not did and li < len(loads) and free and st["iss"] - st["done"] < 13:
            issue(loads[li]); li += 1; did = True
        if not did and fillers and i > 8 and os.environ.get("CONV_FILL", "1") == "1":
            a(fillers.pop(0))
    for _, ct in pend:
        dump(ct)
    for f in fillers:
        a(f)


EA = 129
ED = 138


def epi_addr(a):
    a(f"""
    v_bfe_u32 v24, v1, 3, 2
    v_xor_b32 v24, v24, v1
    v_lshrrev_b32 v25, 8, v4
    v_lshlrev_b32 v25, 12, v25
    v_lshl_add_u32 v129, v24, 4, v25
    v_add_u32 v129, {L_PA}, v129
    s_lshl_b32 s50, s4, 13
    s_add_u32 s50, s50, {WS_XC}
    v_lshl_add_u32 v130, v4, 2, s50
    s_lshl_b32 s50, s4, 7
    s_add_u32 s50, s50, {WS_C2}
    v_lshrrev_b32 v131, 6, v4
    v_lshl_add_u32 v131, v131, 2, s50
    v_lshrrev_b32 v24, 4, v0
    v_and_b32 v25, 15, v0
    s_lshl_b32 s50, s5, 18
    s_lshl_b32 s51, s6, 8
    s_add_u32 s50, s50, s51
    s_add_u32 s50, s50, {WS_XC}
    v_lshlrev_b32 v132, 13, v24
    v_lshl_add_u32 v132, v25, 4, v132
    v_add_u32 v132, s50, v132
    s_lshl_b32 s50, s5, 12
    s_lshl_b32 s51, s6, 2
    s_add_u32 s50, s50, s51
    s_add_u32 s50, s50, {WS_C2}
    v_lshl_add_u32 v133, v24, 7, s50
    v_mul_u32_u24 v134, {4*33*4}, v25
    v_lshl_add_u32 v134, v24, 2, v134
    v_add_u32 v134, {T_OFF}, v134
    v_lshrrev_b32 v137, 3, v0
    v_and_b32 v25, 7, v0
    v_mul_u32_u24 v135, {33*4}, v137
    v_lshl_add_u32 v135, v25, 4, v135
    s_lshl_b32 s50, s6, 6
    v_add_u32 v137, s50, v137
    v_lshlrev_b32 v136, 10, v137
    v_lshl_add_u32 v136, v25, 4, v136
    s_lshl_b32 s50, s5, 7
    v_add_u32 v136, s50, v136
    """)


def epi_data():
    L = []
    for r in range(4):
        L += [f"v_lshlrev_b32 v{148+2*r}, 16, v{XN+r}", f"v_and_b32 v{149+2*r}, 0xffff0000, v{XN+r}"]
    for r in range(4):
        L += [f"v_mul_f32 v{140+2*r}, v{148+2*r}, v156", f"v_mul_f32 v{141+2*r}, v{149+2*r}, v157"]
    for r in range(4):
        L += [f"v_cvt_pk_bf16_f32 v{140+2*r}, v{140+2*r}, v{141+2*r}"]
    for r in range(4):
        L += [f"v_and_b32 v{141+2*r}, 0xffff0000, v{140+2*r}", f"v_lshlrev_b32 v{140+2*r}, 16, v{140+2*r}"]
    return L


def epilogue(a):
    a(f"""
    v_mov_b32 v28, 0x3a000000
    v_mov_b32 v29, 0x3a000000
    v_and_b32 v82, 15, v1
    v_lshl_add_u32 v82, v82, 1, 1
    s_lshl_b32 s13, s14, 2
    s_add_u32 s13, s13, {L_FLAG+48}
    """)
    for r in range(4):
        unpack(a, 48 + 2 * r, 49 + 2 * r, XG + r)
    lds_wait_flag(a, "I", 24, 1, 10, 11)
    a(f"""
    v_mov_b32 v10, {L_KS}
    ds_read_b128 v[20:23], v10
    ds_read_b32 v24, v10 offset:{L_FLAG+32-L_KS}
    s_waitcnt lgkmcnt(0)
    v_readfirstlane_b32 s8, v22
    v_readfirstlane_b32 s9, v23
    v_readfirstlane_b32 s12, v24
    v_mov_b32 v24, v20
    v_mov_b32 v25, v21
    """)
    lds_wait_flag(a, "P", None, 4, 10, 11, saddr="s13")
    stamp(a, 12)
    a(f"""
    ds_read_b128 v[8:11], v129
    ds_read_b128 v[12:15], v129 offset:1024
    ds_read_b128 v[16:19], v129 offset:2048
    ds_read_b128 v[20:23], v129 offset:3072
    s_waitcnt lgkmcnt(2)
    """)
    for r in range(4):
        a(f"v_add_f32 v{60+2*r}, v{8+r}, v{12+r}")
    a("s_waitcnt lgkmcnt(0)")
    for r in range(4):
        a(f"v_add_f32 v{61+2*r}, v{16+r}, v{20+r}")
    for r in range(4):
        a(f"v_pk_mul_f32 v[{60+2*r}:{61+2*r}], v[{60+2*r}:{61+2*r}], v[24:25]")
    for r in range(4):
        a(f"v_cvt_pk_bf16_f32 v{56+r}, v{60+2*r}, v{61+2*r}")
    for r in range(4):
        unpack(a, 60 + 2 * r, 61 + 2 * r, 56 + r)
    for r in range(4):
        a(f"v_pk_add_f32 v[{60+2*r}:{61+2*r}], v[{60+2*r}:{61+2*r}], v[{140+2*r}:{141+2*r}]")
    for r in range(4):
        a(f"v_cvt_pk_bf16_f32 v{56+r}, v{60+2*r}, v{61+2*r}")
    for r in range(4):
        unpack(a, 60 + 2 * r, 61 + 2 * r, 56 + r)
    for r in range(4):
        a(f"v_pk_add_f32 v[{60+2*r}:{61+2*r}], v[{60+2*r}:{61+2*r}], v[{48+2*r}:{49+2*r}]")
    for r in range(4):
        a(f"v_cvt_pk_bf16_f32 v{56+r}, v{60+2*r}, v{61+2*r}")
    for r in range(4):
        unpack(a, 60 + 2 * r, 61 + 2 * r, 56 + r)
    for r in range(4):
        a(f"v_pk_fma_f32 v[{60+2*r}:{61+2*r}], v[{148+2*r}:{149+2*r}], v[28:29], v[{60+2*r}:{61+2*r}]")
    for r in range(4):
        a(f"v_cvt_pk_bf16_f32 v{68+r}, v{60+2*r}, v{61+2*r}")
    a(f"""
    s_cmp_lg_u32 s12, 0
    s_cbranch_scc1 EP_NOX
    global_store_dwordx4 v130, v[68:71], {P_WS}
    """)
    piece_hash(a, [8], [68], 82, 9)
    a(f"""
    v_add_u32 v8, s10, v8
    s_mov_b32 exec_lo, 0x00010001
    s_mov_b32 exec_hi, 0x00010001
    global_store_dword v131, v8, {P_WS}
    s_mov_b64 exec, -1
    """)
    a.label("EP_NOX")
    a.reset()
    a(f"""
    s_lshr_b32 s50, s8, 8
    s_lshr_b32 s51, s9, 8
    s_cmp_eq_u32 s50, s14
    s_cselect_b32 s52, 1, 0
    s_cmp_eq_u32 s51, s14
    s_cselect_b32 s53, 1, 0
    s_or_b32 s54, s52, s53
    s_cmp_eq_u32 s54, 0
    s_cbranch_scc1 EP_NOSEL
    s_lshl_b32 s55, s4, 4
    s_add_u32 s55, s55, {WS_TG}
    v_mov_b32 v74, 0
    v_mov_b32 v75, s10
    """)
    for r in range(4):
        a(f"""
        v_add_u32 v7, {r}, v4
        v_cmp_eq_u32 s[50:51], s8, v7
        v_cmp_eq_u32 s[52:53], s9, v7
        v_mov_b32 v72, v{56+r}
        v_mov_b32 v73, v{XN+r}
        v_mov_b32 v76, s55
        v_mov_b32 v77, 0x1000
        s_or_b64 s[56:57], s[50:51], s[52:53]
        v_cndmask_b32 v77, 0, v77, s[52:53]
        v_add_u32 v76, v76, v77
        s_mov_b64 exec, s[56:57]
        s_cbranch_execz EPN_{r}
        global_store_dwordx4 v76, v[72:75], {P_WS} sc0 sc1
        """)
        a.label(f"EPN_{r}")
        a.reset()
        a("s_mov_b64 exec, -1\ns_nop 1")
    a.label("EP_NOSEL")
    a.reset()
    stamp(a, 13)
    a(f"""
    s_cmp_lg_u32 s12, 0
    s_cbranch_scc1 EP_SCAT
    """)
    lds_wait_flag(a, "C", 48 + 28, 4, 10, 11)
    a("s_mov_b32 s62, 0")
    a.label("EP_POLL")
    a.reset()
    a(f"""
    global_load_dwordx4 v[8:11], v132, {P_WS} sc1
    global_load_dword v12, v133, {P_WS} sc1
    s_mov_b64 exec, -1
    s_waitcnt vmcnt(0)
    """)
    piece_hash(a, [13], [8], 82, 14)
    a(f"""
    v_add_u32 v13, s10, v13
    v_cmp_ne_u32 vcc, v13, v12
    s_cbranch_vccz EP_GOT
    s_add_u32 s62, s62, 1
    s_mov_b64 exec, vcc
    s_cmp_lt_u32 s62, {SPIN_MAX}
    s_cbranch_scc1 EP_POLL
    s_mov_b64 exec, -1
    """)
    a.label("EP_GOT")
    a.reset()
    stamp(a, 14)
    for r in range(4):
        a(f"ds_write_b32 v134, v{8+r} offset:{33*4*r}")
    lbar(a, 4, 14, 15)
    a(f"""
    v_add_u32 v135, {T_OFF}, v135
    ds_read2_b32 v[8:9], v135 offset0:0 offset1:1
    ds_read2_b32 v[10:11], v135 offset0:2 offset1:3
    v_cmp_ne_u32 vcc, s8, v137
    v_cmp_ne_u32 s[50:51], s9, v137
    s_and_b64 exec, vcc, s[50:51]
    s_waitcnt lgkmcnt(0)
    global_store_dwordx4 v136, v[8:11], {P_OUT}
    s_mov_b64 exec, -1
    s_branch EP_DONE
    """)
    a.label("EP_SCAT")
    a.reset()
    for r in range(4):
        a(f"""
        v_add_u32 v7, {r}, v4
        v_cmp_ne_u32 vcc, s8, v7
        v_cmp_ne_u32 s[50:51], s9, v7
        s_and_b64 exec, vcc, s[50:51]
        global_store_dword v3, v{68+r}, {P_OUT} offset:{1024*r}
        s_mov_b64 exec, -1
        """)
    a.label("EP_DONE")
    a.reset()


L_RB = L_MP
L_IDX = L_MISC + 88


def gen(a):
    K = NAME + "_kernel"
    a.raw(".globl " + K)
    a.raw(".p2align 8")
    a.raw(f".type {K},@function")
    a.label(K)
    a.reset()
    a(f"""
    s_cmp_ge_u32 s2, 256
    s_cbranch_scc1 L_END
    s_getpc_b64 s[100:101]
    """)
    stamp_init(a)
    a(f"""
    v_lshrrev_b32 v2, 6, v0
    v_and_b32 v1, 63, v0
    v_readfirstlane_b32 s3, v2
    s_cmp_lg_u32 s3, 11
    s_cbranch_scc1 L_NOPF
    v_lshlrev_b32 v12, 7, v1
    global_load_dword v14, v12, s[100:101]
    v_add_u32 v12, 0x2000, v12
    v_min_u32 v17, {CODE_SPAN[0]}, v12
    global_load_dword v15, v17, s[100:101]
    v_add_u32 v12, 0x2000, v12
    v_min_u32 v12, {CODE_SPAN[0]}, v12
    global_load_dword v16, v12, s[100:101]
    v_mov_b32 v8, 0
    v_mov_b32 v9, 0
    v_mov_b32 v10, 0
    v_mov_b32 v11, 0
    v_mov_b32 v13, {L_FLAG}
    ds_write_b128 v13, v[8:11]
    ds_write_b128 v13, v[8:11] offset:16
    ds_write_b128 v13, v[8:11] offset:32
    ds_write_b128 v13, v[8:11] offset:48
    ds_write_b128 v13, v[8:11] offset:64
    s_waitcnt lgkmcnt(0)
    """)
    a.label("L_NOPF")
    a.reset()
    a(f"""
    s_load_dwordx16 s[16:31], s[0:1], 0
    s_load_dwordx16 s[32:47], s[0:1], 64
    s_load_dwordx2 s[48:49], s[0:1], 128
    s_getreg_b32 s99, hwreg(HW_REG_XCC_ID)
    s_and_b32 s5, s2, 7
    s_lshr_b32 s6, s2, 3
    s_lshl_b32 s4, s5, 5
    s_add_u32 s4, s4, s6
    s_lshl_b32 s11, s4, 2
    s_bfe_u32 s7, s3, 0x10001
    s_and_b32 s13, s3, 1
    s_lshl_b32 s8, s4, 1
    s_add_u32 s8, s8, s7
    s_lshl_b32 s9, s8, 8
    v_lshlrev_b32 v5, 2, v1
    v_add_u32 v5, s9, v5
    s_and_b32 s99, s99, 15
    s_barrier
    s_cmp_ge_u32 s3, 8
    s_cbranch_scc1 L_MW
    s_cmp_ge_u32 s3, 4
    s_cbranch_scc1 L_BW
    """)
    a(f"""
    s_setprio 3
    v_and_b32 v6, 31, v1
    v_lshlrev_b32 v6, 4, v6
    v_lshrrev_b32 v7, 5, v1
    s_lshl_b32 s12, s2, 3
    s_lshl_b32 s14, s3, 1
    s_add_u32 s12, s12, s14
    v_add_u32 v7, s12, v7
    v_lshl_add_u32 v7, v7, 10, v6
    v_and_b32 v76, 15, v1
    v_lshrrev_b32 v77, 4, v1
    s_lshl_b32 s14, s6, 16
    s_lshl_b32 s15, s5, 7
    s_add_u32 s14, s14, s15
    s_lshl_b32 s15, s3, 5
    s_add_u32 s14, s14, s15
    v_lshrrev_b32 v78, 2, v1
    v_lshlrev_b32 v78, 12, v78
    v_and_b32 v79, 3, v1
    v_lshl_add_u32 v78, v79, 3, v78
    v_add_u32 v78, s14, v78
    v_lshl_add_u32 v79, v76, 2, v77
    v_lshlrev_b32 v79, 2, v79
    s_waitcnt lgkmcnt(0)
    global_load_dwordx4 v[8:11], v7, {P_X}
    global_load_dwordx4 v[12:15], v7, {P_X} offset:512
    global_load_dwordx4 v[16:19], v6, {P_WR}
    global_load_dwordx4 v[20:23], v6, {P_WR} offset:512
    s_load_dword s10, {P_WS}, {WS_W0}
    s_load_dword s15, {P_DSK}, s11
    global_load_dwordx2 v[80:81], v78, {P_X}
    global_load_dwordx2 v[82:83], v78, {P_X} offset:1024
    global_load_dwordx2 v[84:85], v78, {P_X} offset:2048
    global_load_dwordx2 v[86:87], v78, {P_X} offset:3072
    s_branch L_PRE
    """)
    a.label("L_MW")
    a.reset()
    a(f"""
    s_lshl_b32 s14, s4, 7
    s_add_u32 s14, s14, {WS_C2}
    v_mov_b32 v79, s14
    s_waitcnt lgkmcnt(0)
    global_load_dword v100, v5, {P_ARE}
    global_load_dword v101, v5, {P_AIM}
    global_load_dword v102, v5, {P_BRE}
    global_load_dword v103, v5, {P_BIM}
    global_load_dword v104, v5, {P_CRE}
    global_load_dword v105, v5, {P_CIM}
    global_load_dword v110, v79, {P_WS} sc1
    s_load_dword s56, {P_LDT}, s11
    """)
    stamp(a, 14)
    a("s_branch L_MOE")
    a.label("L_BW")
    a.reset()
    a(f"""
    s_waitcnt lgkmcnt(0)
    global_load_dword v80, v5, {P_ARE}
    global_load_dword v81, v5, {P_AIM}
    s_load_dword s15, {P_DSK}, s11
    s_load_dword s56, {P_LDT}, s11
    v_mov_b32 v8, 0
    v_mov_b32 v9, 0
    v_mov_b32 v10, 0
    v_mov_b32 v11, 0
    v_lshrrev_b32 v12, 5, v1
    v_mul_u32_u24 v12, {K_CH}, v12
    v_and_b32 v13, 31, v1
    v_lshl_add_u32 v12, v13, 4, v12
    v_add_u32 v12, {L_K+4096}, v12
    ds_write_b128 v12, v[8:11]
    """)
    a.label("L_PRE")
    a.reset()
    a(f"""
    v_add_u32 v4, 256, v0
    v_and_b32 v4, 511, v4
    v_lshlrev_b32 v4, 2, v4
    v_lshlrev_b32 v3, 10, v4
    v_add_u32 v3, s11, v3
    v_lshlrev_b32 v115, 3, v4
    v_lshlrev_b32 v128, 1, v4
    v_add_u32 v128, 32, v128
    s_lshl_b32 s50, s5, 12
    s_lshl_b32 s51, s6, 2
    s_add_u32 s50, s50, s51
    s_add_u32 s50, s50, {WS_FL}
    v_lshrrev_b32 v124, 6, v4
    v_lshl_add_u32 v124, v124, 7, s50
    s_lshl_b32 s50, s4, 13
    s_add_u32 s50, s50, {WS_XC}
    v_lshl_add_u32 v126, v4, 2, s50
    v_and_b32 v24, 15, v1
    v_lshl_add_u32 v127, v24, 1, 1
    v_lshrrev_b32 v114, 8, v0
    v_mul_u32_u24 v114, {K_CH}, v114
    v_and_b32 v25, 0xff, v0
    v_lshl_add_u32 v114, v25, 4, v114
    v_add_u32 v114, {L_K}, v114
    s_lshr_b32 s57, s3, 2
    s_mul_i32 s61, s57, {AB_CH}
    v_mul_u32_u24 v26, {ROW}, v24
    v_lshrrev_b32 v25, 4, v1
    v_lshl_add_u32 v26, v25, 4, v26
    s_mul_i32 s60, s7, {16*ROW}
    s_add_u32 s60, s60, s61
    s_mul_i32 s62, s13, {16*ROW}
    s_add_u32 s62, s62, s61
    s_add_u32 s62, s62, {A_SZ}
    v_add_u32 v108, s60, v26
    v_add_u32 v109, s62, v26
    s_lshl_b32 s58, s13, 4
    v_add_u32 v24, s58, v24
    s_mul_i32 s60, s57, 1536
    s_add_u32 s60, s60, {L_TAB}
    v_cmp_eq_u32 s[50:51], 1, v25
    v_cmp_eq_u32 s[52:53], 2, v25
    v_cmp_eq_u32 s[54:55], 3, v25
    v_cmp_eq_u32 vcc, 0, v25
    v_cmp_eq_u32 s[58:59], 16, v1
    s_cmp_eq_u32 s7, 0
    s_cbranch_scc0 L_TA1
    v_mov_b32 v26, 3
    v_cndmask_b32 v26, v26, 2, s[52:53]
    v_cndmask_b32 v26, v26, 1, s[54:55]
    v_lshlrev_b32 v26, v26, v24
    """)
    for r in range(4):
        b0, b1, b2, b3 = r, 4 + r, 256 + r, 384 + (r & 1) + 64 * (r >> 1)
        a(f"""
        v_mov_b32 v27, {b0}
        v_cndmask_b32 v27, v27, {b1}, s[50:51]
        v_mov_b32 v28, {b2}
        v_cndmask_b32 v27, v27, v28, s[52:53]
        v_mov_b32 v28, {b3}
        v_cndmask_b32 v27, v27, v28, s[54:55]
        v_add_u32 v27, v27, v26
        v_lshl_add_u32 v{110+r}, v27, 1, s60
        """)
    a("s_branch L_TAD")
    a.label("L_TA1")
    a.reset()
    for r in range(4):
        a(f"""
        v_mov_b32 v27, 700
        v_add_u32 v28, {512+32*r}, v24
        v_cndmask_b32 v27, v27, v28, vcc
        """)
        if r == 0:
            a(f"""
            s_cmp_eq_u32 s13, 0
            s_cselect_b64 s[50:51], s[58:59], 0
            v_mov_b32 v28, 640
            v_cndmask_b32 v27, v27, v28, s[50:51]
            """)
        a(f"v_lshl_add_u32 v{110+r}, v27, 1, s60")
    a.label("L_TAD")
    a.reset()
    a(f"""
    v_and_b32 v30, 0xff, v0
    v_lshlrev_b32 v30, 3, v30
    v_sub_u32 v30, 0x7ff, v30
    v_lshrrev_b32 v31, 8, v0
    v_mul_u32_u24 v31, 1536, v31
    v_add_u32 v31, {L_TAB}, v31
    s_movk_i32 s57, 128
    """)
    for e in range(0, 8, 2):
        a(f"""
        v_subrev_u32 v24, {e}, v30
        v_subrev_u32 v25, {e+1}, v30
        v_cvt_f32_u32 v26, v24
        v_cvt_f32_u32 v27, v25
        v_cvt_pk_bf16_f32 v26, v26, v27
        v_and_b32 v28, 0xffff, v26
        v_lshrrev_b32 v29, 16, v26
        v_subrev_u32 v28, {0x4300-128}, v28
        v_subrev_u32 v29, {0x4300-128}, v29
        v_med3_i32 v28, v28, v24, s57
        v_med3_i32 v29, v29, v25, s57
        v_lshl_add_u32 v{100+e}, v28, 1, v31
        v_lshl_add_u32 v{101+e}, v29, 1, v31
        """)
    epi_addr(a)
    stamp(a, 1)
    a(f"""
    s_cmp_ge_u32 s3, 4
    s_cbranch_scc1 L_BTASK
    s_mov_b32 s50, 0
    s_mov_b32 s51, -1
    v_mov_b32 v28, 0x3b000000
    s_waitcnt vmcnt(6)
    """)
    stamp(a, 2)
    for k in range(8):
        unpack(a, 32 + 2 * k, 33 + 2 * k, 8 + k)
    a(f"""
    v_readlane_b32 s52, v32, 0
    v_readlane_b32 s53, v32, 32
    v_pk_add_f32 v[64:65], v[32:33], v[34:35]
    v_pk_add_f32 v[66:67], v[36:37], v[38:39]
    v_mov_b32 v24, s52
    v_mov_b32 v25, s53
    v_pk_add_f32 v[68:69], v[40:41], v[42:43]
    v_cndmask_b32 v24, v24, v25, s[50:51]
    v_pk_add_f32 v[70:71], v[44:45], v[46:47]
    v_mov_b32 v25, v24
    v_pk_add_f32 v[64:65], v[64:65], v[66:67]
    v_pk_add_f32 v[68:69], v[68:69], v[70:71]
    """)
    for k in range(8):
        a(f"v_pk_add_f32 v[{48+2*k}:{49+2*k}], v[{32+2*k}:{33+2*k}], v[24:25] neg_lo:[0,1] neg_hi:[0,1]")
    a(f"""
    v_pk_add_f32 v[64:65], v[64:65], v[68:69]
    v_pk_mul_f32 v[72:73], v[48:49], v[48:49]
    v_pk_mul_f32 v[74:75], v[50:51], v[50:51]
    v_add_f32 v64, v64, v65
    v_pk_fma_f32 v[72:73], v[52:53], v[52:53], v[72:73]
    v_pk_fma_f32 v[74:75], v[54:55], v[54:55], v[74:75]
    v_pk_fma_f32 v[72:73], v[56:57], v[56:57], v[72:73]
    v_pk_fma_f32 v[74:75], v[58:59], v[58:59], v[74:75]
    v_pk_fma_f32 v[72:73], v[60:61], v[60:61], v[72:73]
    v_pk_fma_f32 v[74:75], v[62:63], v[62:63], v[74:75]
    v_pk_add_f32 v[72:73], v[72:73], v[74:75]
    v_add_f32 v72, v72, v73
    """)
    half_reduce_add(a, [64, 72], [65, 73])
    a(f"""
    v_mul_f32 v64, v64, v28
    v_mul_f32 v72, v72, v28
    v_sub_f32 v65, v64, v24
    v_fma_f32 v72, -v65, v65, v72
    v_max_f32 v72, 0, v72
    v_cvt_pk_bf16_f32 v64, v64, v72
    v_and_b32 v72, 0xffff0000, v64
    v_lshlrev_b32 v66, 16, v64
    v_add_f32 v72, 0x3727c5ac, v72
    v_mov_b32 v67, v66
    v_cvt_pk_bf16_f32 v72, v72, v72
    v_lshlrev_b32 v72, 16, v72
    v_sqrt_f32 v72, v72
    """)
    for k in range(8):
        a(f"v_pk_add_f32 v[{48+2*k}:{49+2*k}], v[{32+2*k}:{33+2*k}], v[66:67] neg_lo:[0,1] neg_hi:[0,1]")
    a(f"""
    v_cvt_pk_bf16_f32 v72, v72, v72
    v_lshlrev_b32 v72, 16, v72
    v_rcp_f32 v68, v72
    v_and_b32 v64, 0xffff, v64
    v_or_b32 v64, v64, v72
    """)
    for k in range(8):
        a(f"v_cvt_pk_bf16_f32 v{8+k}, v{48+2*k}, v{49+2*k}")
    a("v_mov_b32 v69, v68")
    for k in range(8):
        unpack(a, 48 + 2 * k, 49 + 2 * k, 8 + k)
    for k in range(8):
        a(f"v_pk_mul_f32 v[{48+2*k}:{49+2*k}], v[{48+2*k}:{49+2*k}], v[68:69]")
    for k in range(8):
        a(f"v_cvt_pk_bf16_f32 v{8+k}, v{48+2*k}, v{49+2*k}")
    a("s_waitcnt vmcnt(4)")
    for k in range(4):
        a(f"v_mov_b32 v{70+k}, 0")
    for k in range(8):
        a(f"v_dot2c_f32_bf16 v{70+(k&3)}, v{8+k}, v{16+k}")
    a(f"""
    v_readlane_b32 s52, v64, 32
    s_lshl_b32 s12, s12, 3
    v_add_f32 v70, v70, v71
    v_add_f32 v72, v72, v73
    v_add_f32 v70, v70, v72
    """)
    half_reduce_add(a, [70], [71])
    a(f"""
    v_cvt_pk_bf16_f32 v70, v70, v70
    v_ashrrev_i32 v72, 31, v70
    v_or_b32 v72, 0x80008000, v72
    v_xor_b32 v70, v70, v72
    v_mov_b32 v65, s52
    v_mov_b32 v71, s12
    v_readlane_b32 s53, v70, 32
    v_and_b32 v66, 0xffff, v70
    s_waitcnt lgkmcnt(0)
    s_add_u32 s10, s10, 0x9e3779b1
    s_andn2_b32 s10, s10, 15
    s_or_b32 s54, s10, s99
    s_and_b32 s53, s53, 0xffff0000
    v_mov_b32 v67, s54
    v_or_b32 v66, s53, v66
    v_mov_b32 v72, {L_NONCE}
    v_mov_b32 v73, s10
    s_mov_b64 exec, 1
    global_store_dwordx4 v71, v[64:67], {P_WS} sc0 sc1
    ds_write_b32 v72, v73
    s_mov_b64 exec, -1
    """)
    stamp(a, 3)
    a(f"""
    s_lshl_b32 s14, s5, 18
    s_lshl_b32 s50, s6, 8
    s_add_u32 s14, s14, s50
    s_lshl_b32 s50, s3, 16
    s_add_u32 s14, s14, s50
    s_add_u32 s14, s14, {WS_XC}
    v_lshlrev_b32 v8, 14, v77
    v_lshl_add_u32 v8, v76, 4, v8
    v_add_u32 v8, s14, v8
    v_add_u32 v9, 0x2000, v8
    s_lshl_b32 s14, s4, 7
    s_lshl_b32 s50, s3, 5
    s_add_u32 s14, s14, s50
    s_add_u32 s14, s14, {WS_FL}
    v_lshl_add_u32 v10, v77, 3, s14
    s_waitcnt vmcnt(1)
    """)
    for k in range(2):
        for r in range(4):
            a(f"ds_bpermute_b32 v{88+4*k+r}, v79, v{80+2*r+k}")
    a(f"""
    s_waitcnt lgkmcnt(4)
    global_store_dwordx4 v8, v[88:91], {P_WS} sc0 sc1
    s_waitcnt lgkmcnt(0)
    global_store_dwordx4 v9, v[92:95], {P_WS} sc0 sc1
    """)
    piece_hash(a, [12, 13], [88, 92], 127, 14)
    a(f"""
    v_add_u32 v12, s10, v12
    v_add_u32 v13, s10, v13
    s_mov_b32 exec_lo, 0x00010001
    s_mov_b32 exec_hi, 0x00010001
    global_store_dwordx2 v10, v[12:13], {P_WS} sc0 sc1
    s_mov_b64 exec, -1
    s_setprio 0
    """)
    lds_signal(a, 4, 12, 13)
    a("s_branch L_COMMON")

    def kgen_common(pa, pb):
        a(f"""
        s_lshl_b32 s57, s7, 4
        s_lshr_b32 s56, s56, s57
        s_lshl_b32 s56, s56, 16
        v_mov_b32 v24, {LOG2E}
        v_mul_f32 v24, s56, v24
        v_exp_f32 v24, v24
        s_lshl_b32 s58, s13, 4
        s_sub_u32 s59, 16, s58
        s_lshl_b32 s60, s13, 8
        s_mul_i32 s61, s7, {AB_CH}
        s_add_u32 s60, s60, s61
        v_lshlrev_b32 v28, 2, v1
        v_add_u32 v28, s60, v28
        v_cvt_pk_bf16_f32 v24, v24, v24
        v_lshlrev_b32 v24, 16, v24
        """)

    def kgen_ab(pa, pb):
        a(f"""
        v_lshrrev_b32 v26, s58, v{pa}
        v_lshrrev_b32 v27, s58, v{pb}
        v_lshlrev_b32 v26, 16, v26
        v_lshlrev_b32 v27, 16, v27
        v_mul_f32 v26, v24, v26
        v_mul_f32 v27, v24, v27
        v_mul_f32 v26, {LOG2E}, v26
        v_mul_f32 v27, 0.15915494, v27
        """)
    cnt = [0]
    a.label("L_BTASK")
    a.reset()
    a("s_waitcnt lgkmcnt(0)")
    kgen_common(80, 81)
    a("s_waitcnt vmcnt(0)")
    stamp(a, 2)
    kgen_ab(80, 81)

    def putB(j, reg):
        t = 92 + (cnt[0] % 6)
        cnt[0] += 1
        a(f"v_cvt_pk_f16_f32 v{t}, v{reg}, v{reg+1}")
        a(f"ds_write_b32 v28, v{t} offset:{A_SZ + j*ROW}")

    anchor(a, 42, 26, 27, "0x41000000", 46, 47)
    a(f"""
    v_mov_b32 v92, 0x3c00
    ds_write_b32 v28, v92 offset:{A_SZ}
    """)
    cnt[0] = 1
    cmul(a, 44, 42, 42, 44)
    putB(1, 42)
    prev = 44
    putB(2, 44)
    for k in range(1, 16):
        nxt = 48 + 2 * (k % 2)
        o = 52 + 2 * (k % 2)
        if k < 15:
            cmul(a, nxt, prev, 44, nxt)
        cmul(a, o, prev, 42, o)
        if k < 15:
            putB(2 * (k + 1), nxt)
        putB(2 * k + 1, o)
        prev = nxt
    lds_signal(a, 16, 24, 25)
    a.label("L_COMMON")
    a.reset()
    stamp(a, 4)
    a("v_mov_b32 v96, 0\nv_mov_b32 v97, 0\nv_mov_b32 v98, 0\nv_mov_b32 v99, 0")
    lds_wait_flag(a, "AB", 16, 8, 24, 25)
    stamp(a, 5)
    PP = int(os.environ.get("POLLPOS", "0"))
    POLLS = f"""
    global_load_dword v125, v124, {P_WS} sc0 sc1
    global_load_dwordx4 v[{XG}:{XG+3}], v126, {P_WS} sc1
    global_load_dwordx4 v[116:119], v115, {P_WS} sc0 sc1
    global_load_dwordx4 v[120:123], v115, {P_WS} offset:16 sc0 sc1
    """
    for s in range(8):
        a(f"ds_read_b128 v[{32+8*s}:{35+8*s}], v108 offset:{64*s}")
        a(f"ds_read_b128 v[{36+8*s}:{39+8*s}], v109 offset:{64*s}")
    if PP == 0:
        a(POLLS)
    for s in range(8):
        a(f"s_waitcnt lgkmcnt({14-2*s})")
        a(f"v_mfma_f32_16x16x32_f16 v[96:99], v[{32+8*s}:{35+8*s}], v[{36+8*s}:{39+8*s}], v[96:99]")
    for r in range(4):
        a(f"v_ldexp_f32 v{32+r}, v{96+r}, -8")
    for r in range(4):
        a(f"v_cvt_f16_f32 v{32+r}, v{32+r}")
    for r in range(4):
        a(f"ds_write_b16 v{110+r}, v{32+r}")
    if PP == 1:
        a(POLLS)
    stamp(a, 6)
    lbar(a, 1)
    for e in range(0, 8, 2):
        a(f"ds_read_u16_d16 v{32+e//2}, v{100+e}")
        a(f"ds_read_u16_d16_hi v{36+e//2}, v{101+e}")
    a(f"""
    v_mov_b32 v40, {L_NONCE}
    ds_read_b32 v40, v40
    s_waitcnt lgkmcnt(0)
    v_readfirstlane_b32 s10, v40
    v_or_b32 v32, v32, v36
    v_or_b32 v33, v33, v37
    v_or_b32 v34, v34, v38
    v_or_b32 v35, v35, v39
    ds_write_b128 v114, v[32:35]
    """)
    if PP == 2:
        a(POLLS)
    a(f"""
    s_mov_b32 s62, 0
    s_cmp_eq_u32 s3, 5
    s_cbranch_scc0 L_NOPAD
    v_mov_b32 v32, 0
    v_mov_b32 v33, 0
    v_mov_b32 v34, 0
    v_mov_b32 v35, 0
    v_bfe_u32 v36, v1, 1, 3
    v_mul_u32_u24 v36, {UCOPY}, v36
    v_and_b32 v37, 1, v1
    v_lshl_add_u32 v36, v37, 4, v36
    s_mov_b64 exec, 0xffff
    ds_write_b128 v36, v[32:35]
    s_mov_b64 exec, -1
    """)
    a.label("L_NOPAD")
    a.reset()
    stamp(a, 7)
    if STAMP:
        a("s_mov_b64 s[96:97], 0")
    a.label("L_GPOLL")
    a.reset()
    a("s_waitcnt vmcnt(0)")
    piece_hash(a, [32], [XG], 127, 33)
    a(f"""
    v_add_u32 v32, s10, v32
    v_cmp_ne_u32 vcc, v32, v125
    v_xor_b32 v33, s10, v119
    v_xor_b32 v34, s10, v123
    v_or_b32 v34, v33, v34
    v_cmp_lt_u32 s[50:51], 15, v34
    s_or_b64 s[52:53], vcc, s[50:51]
    s_cbranch_scc0 L_GOK
    s_add_u32 s62, s62, 1
    s_cmp_ge_u32 s62, {SPIN_MAX}
    s_cbranch_scc1 L_GOK
    s_sleep 2
    """)
    if STAMP:
        a("""
        s_cmp_lg_u64 vcc, 0
        s_addc_u32 s96, s96, 0
        s_cmp_lg_u64 s[50:51], 0
        s_addc_u32 s97, s97, 0
        """)
    a(f"""
    s_mov_b64 exec, vcc
    s_cbranch_execz L_GP2
    global_load_dword v125, v124, {P_WS} sc0 sc1
    global_load_dwordx4 v[{XG}:{XG+3}], v126, {P_WS} sc1
    """)
    a.label("L_GP2")
    a.reset()
    a(f"""
    s_mov_b64 exec, s[50:51]
    s_cbranch_execz L_GP3
    global_load_dwordx4 v[116:119], v115, {P_WS} sc0 sc1
    global_load_dwordx4 v[120:123], v115, {P_WS} offset:16 sc0 sc1
    """)
    a.label("L_GP3")
    a.reset()
    a(f"""
    s_mov_b64 exec, -1
    s_branch L_GPOLL
    """)
    a.label("L_GOK")
    a.reset()
    stamp(a, 8)
    if STAMP:
        a("s_waitcnt lgkmcnt(0)\ns_mov_b64 s[74:75], s[96:97]")
    a(f"""
    v_mov_b32 v32, v118
    v_mov_b32 v33, v122
    v_add_u32 v34, {L_RB-32}, v128
    ds_write_b64 v34, v[32:33]
    v_bfe_u32 v35, v4, 3, 3
    v_and_b32 v36, 15, v119
    v_cmp_eq_u32 vcc, s5, v35
    v_cmp_ne_u32 s[50:51], s99, v36
    s_and_b64 vcc, vcc, s[50:51]
    s_cbranch_vccz L_UNI
    """)
    lds_signal(a, 32, 34, 35)
    a.label("L_UNI")
    a.reset()
    lds_signal(a, 28, 34, 35)
    st = [116, 117, 120, 121]
    for r in range(4):
        a(f"v_and_b32 v{40+r}, 0xffff0000, v{st[r]}")
    for r in range(4):
        a(f"v_rcp_f32 v{40+r}, v{40+r}")
    for r in range(4):
        a(f"v_lshlrev_b32 v{44+r}, 16, v{st[r]}")
    for r in range(4):
        unpack(a, 48 + 2 * r, 49 + 2 * r, XG + r)
    for r in range(4):
        a(f"v_sub_f32 v{48+2*r}, v{48+2*r}, v{44+r}")
        a(f"v_sub_f32 v{49+2*r}, v{49+2*r}, v{44+r}")
    for r in range(4):
        a(f"v_mul_f32 v{40+r}, 0x45000000, v{40+r}")
    for r in range(4):
        a(f"v_cvt_pk_bf16_f32 v{56+r}, v{48+2*r}, v{49+2*r}")
    for r in range(4):
        unpack(a, 48 + 2 * r, 49 + 2 * r, 56 + r)
    for r in range(4):
        a(f"v_mul_f32 v{48+2*r}, v{48+2*r}, v{40+r}")
        a(f"v_mul_f32 v{49+2*r}, v{49+2*r}, v{40+r}")
    for r in range(4):
        a(f"v_cvt_pk_bf16_f32 v{XN+r}, v{48+2*r}, v{49+2*r}")
    for r in range(4):
        unpack(a, 48 + 2 * r, 49 + 2 * r, XN + r)
    a(f"""
    v_cvt_pk_f16_f32 v60, v48, v50
    v_cvt_pk_f16_f32 v61, v52, v54
    v_cvt_pk_f16_f32 v62, v49, v51
    v_cvt_pk_f16_f32 v63, v53, v55
    ds_write_b64 v128, v[60:61]
    ds_write_b64 v128, v[62:63] offset:{U_CH}
    v_subrev_u32 v9, 8, v128
    """)
    stamp(a, 9)
    lbar(a, 2)
    a(f"""
    ds_read_b64 v[64:65], v9
    ds_read_b64 v[66:67], v9 offset:{U_CH}
    """)
    for c in range(2):
        W0, W1, P0, P1 = 60 + 2 * c, 61 + 2 * c, 64 + 2 * c, 65 + 2 * c
        t = 68 + 8 * c
        a(f"""
        v_alignbyte_b32 v{t+1}, v{W1}, v{W0}, 2
        v_mov_b32 v{t+3}, v{W0}
        """)
    for c in range(2):
        W0, W1, P0, P1 = 60 + 2 * c, 61 + 2 * c, 64 + 2 * c, 65 + 2 * c
        t = 68 + 8 * c
        a(f"s_waitcnt lgkmcnt({1 if c == 0 else 3})")
        a(f"""
        v_alignbyte_b32 v{t}, v{W0}, v{P1}, 2
        v_mov_b32 v{t+2}, v{P1}
        v_alignbyte_b32 v{t+4}, v{P1}, v{P0}, 2
        v_alignbyte_b32 v{t+5}, v{W0}, v{P1}, 2
        ds_write_b64 v128, v[{t}:{t+1}] offset:{c*U_CH+UCOPY}
        ds_write_b64 v128, v[{t+2}:{t+3}] offset:{c*U_CH+2*UCOPY}
        ds_write_b64 v128, v[{t+4}:{t+5}] offset:{c*U_CH+3*UCOPY}
        """)
    a(f"""
    s_lshl_b32 s50, s15, 16
    s_and_b32 s51, s15, 0xffff0000
    v_mov_b32 v156, 0x3a000000
    v_mul_f32 v157, s51, v156
    v_mul_f32 v156, s50, v156
    s_cmp_ge_u32 s3, 4
    s_cbranch_scc1 L_AUX
    """)
    a(f"""
    s_setprio 2
    v_and_b32 v8, 15, v1
    v_lshrrev_b32 v9, 4, v1
    v_sub_u32 v10, 15, v8
    v_and_b32 v11, 3, v10
    v_lshrrev_b32 v10, 2, v10
    v_mul_u32_u24 v12, {UCOPY}, v11
    v_lshlrev_b32 v11, 1, v9
    v_sub_u32 v11, v11, v10
    v_add_u32 v11, 4, v11
    v_lshl_add_u32 v12, v11, 3, v12
    s_mul_i32 s12, s7, {U_CH}
    s_lshl_b32 s14, s13, 8
    s_add_u32 s12, s12, s14
    v_add_u32 v12, s12, v12
    v_lshlrev_b32 v13, 4, v9
    v_lshlrev_b32 v11, 5, v8
    v_sub_u32 v13, v13, v11
    s_mul_i32 s12, s7, {K_CH}
    s_add_u32 s12, s12, s14
    s_add_u32 s12, s12, {L_K+480}
    v_add_u32 v13, s12, v13
    v_lshl_add_u32 v14, v8, 2, v9
    v_bfe_u32 v11, v14, 3, 2
    v_xor_b32 v14, v14, v11
    s_lshl_b32 s12, s3, 10
    s_add_u32 s12, s12, {L_PA}
    v_lshl_add_u32 v14, v14, 4, s12
    """)
    ACC = 96
    for i in range(32):
        a(f"v_mov_b32 v{ACC+i}, 0")
    a(f"""
    v_mov_b32 v10, {L_FLAG+48}
    v_mov_b32 v11, 1
    """)
    stamp(a, 10)
    lbar(a, 3)
    stamp(a, 11)
    conv_loop(a, ACC, 16, 20, epi_data())
    stamp(a, 1)
    a(f"""
    s_setprio 0
    s_add_u32 s14, s3, 4
    s_branch L_EPI
    """)
    a.label("L_AUX")
    a.reset()
    stamp(a, 10)
    a("s_waitcnt lgkmcnt(0)")
    lds_signal(a, 12, 10, 11)
    for f in epi_data():
        a(f)
    a("s_sub_u32 s14, s3, 4")
    a.label("L_EPI")
    a.reset()
    epilogue(a)
    a(f"""
    s_lshl_b32 s50, s2, 4
    s_add_u32 s50, s50, s3
    s_cmp_eq_u32 s50, 4
    s_cbranch_scc0 L_NOEP
    v_mov_b32 v8, {WS_W0}
    v_mov_b32 v9, s10
    s_mov_b64 exec, 1
    global_store_dword v8, v9, {P_WS} sc0 sc1
    s_mov_b64 exec, -1
    """)
    a.label("L_NOEP")
    a.reset()
    finish(a)
    a.label("L_MOE")
    a.reset()
    a(f"""
    v_subrev_u32 v20, 512, v0
    v_lshrrev_b32 v106, 5, v20
    v_and_b32 v22, 31, v20
    s_lshl_b32 s14, s6, 4
    v_add_u32 v106, s14, v106
    v_mul_u32_u24 v106, 3584, v106
    v_min_u32 v22, 27, v22
    v_lshl_add_u32 v106, v22, 4, v106
    s_mul_i32 s14, s5, 448
    v_add_u32 v106, s14, v106
    v_add_u32 v107, {8*3584}, v106
    v_lshrrev_b32 v108, 3, v20
    s_mul_i32 s14, s6, 56
    v_add_u32 v108, s14, v108
    v_lshlrev_b32 v108, 10, v108
    v_and_b32 v22, 7, v20
    v_lshl_add_u32 v108, v22, 4, v108
    s_lshl_b32 s14, s5, 7
    v_add_u32 v108, s14, v108
    v_add_u32 v109, {24*1024}, v108
    s_waitcnt lgkmcnt(0)
    """)
    PF = f"""
    global_load_dwordx4 v[144:147], v106, s[38:39]
    global_load_dwordx4 v[148:151], v106, s[40:41]
    global_load_dwordx4 v[152:155], v107, s[38:39]
    global_load_dwordx4 v[156:159], v107, s[40:41]
    global_load_dwordx4 v[160:163], v108, s[42:43]
    global_load_dwordx4 v[164:167], v109, s[42:43]
    """
    pmode = int(os.environ.get("PREF_MODE", "0"))
    early = pmode == 1
    if early:
        a(PF)
    kgen_common(100, 101)
    a(f"s_waitcnt vmcnt({7 if early else 1})")
    stamp(a, 7)
    if pmode == 0:
        a(PF)
    kgen_ab(100, 101)
    for (dst, sh) in ((32, "s58"), (34, "s59")):
        a(f"""
        v_lshrrev_b32 v36, {sh}, v102
        v_lshrrev_b32 v37, {sh}, v103
        v_lshrrev_b32 v38, {sh}, v104
        v_lshrrev_b32 v39, {sh}, v105
        v_lshlrev_b32 v36, 16, v36
        v_lshlrev_b32 v37, 16, v37
        v_lshlrev_b32 v38, 16, v38
        v_lshlrev_b32 v39, 16, v39
        v_mul_f32 v36, v24, v36
        v_mul_f32 v37, v24, v37
        """)
        cmul(a, dst, 38, 36, 40)
    a(f"""
    v_max3_f32 v36, |v32|, |v33|, |v34|
    v_max_f32 v36, v36, |v35|
    """)
    anchor(a, 42, 26, 27, None, 46, 47)
    anchor(a, 44, 26, 27, "0x43800000", 48, 49)
    dpp_reduce(a, "v_max_f32", [36])
    a(f"""
    v_readlane_b32 s62, v36, 63
    v_frexp_exp_i32_f32 v36, s62
    v_sub_u32 v37, 10, v36
    v_ldexp_f32 v50, v32, v37
    v_ldexp_f32 v51, v33, v37
    v_subrev_u32 v36, 13, v36
    v_ldexp_f32 v36, 1.0, v36
    s_lshl_b32 s62, s7, 2
    s_add_u32 s62, s62, {L_KS}
    v_mov_b32 v37, s62
    ds_write_b32 v37, v36
    """)
    Q = lambda k: 50 + 2 * k
    R = lambda row: 66 + 2 * (row - 8)

    def putA(row, reg):
        t = 92 + (cnt[0] % 6)
        cnt[0] += 1
        a(f"v_cvt_pk_f16_f32 v{t}, v{reg}, -v{reg+1}")
        a(f"ds_write_b32 v28, v{t} offset:{row*ROW}")

    putA(0, Q(0))
    cmul(a, R(8), Q(0), 44, R(8))
    cmul(a, Q(1), Q(0), 42, Q(1))
    beta = [(12, 8), (14, 12), (16, 14), (17, 16), (18, 17), (19, 18), (20, 19)]
    putA(8, R(8))
    putA(1, Q(1))
    for k in range(2, 8):
        row, src = beta[k - 2]
        cmul(a, R(row), R(src), 44, R(row))
        cmul(a, Q(k), Q(k - 1), 42, Q(k))
        putA(row, R(row))
        putA(k, Q(k))
    row, src = beta[6]
    cmul(a, R(row), R(src), 44, R(row))
    cmul(a, R(9), Q(2), 44, R(9))
    cmul(a, R(10), Q(4), 44, R(10))
    cmul(a, R(11), Q(6), 44, R(11))
    putA(20, R(20))
    cmul(a, R(13), R(10), 44, R(13))
    putA(9, R(9))
    putA(10, R(10))
    cmul(a, R(15), R(13), 44, R(15))
    putA(11, R(11))
    putA(13, R(13))
    putA(15, R(15))
    lds_signal(a, 16, 24, 25)
    stamp(a, 8)
    if pmode == 2:
        lds_wait_flag(a, "XS0", 4, 4, 12, 13)
        a(PF)
    a(f"""
    s_sub_u32 s7, s3, 8
    v_and_b32 v8, 15, v1
    v_lshrrev_b32 v9, 4, v1
    s_mov_b32 s12, 0x05040100
    s_mov_b32 s13, 0x07060302
    """)

    def pack(L, F):
        for j in range(8):
            for k in range(4):
                a(f"v_perm_b32 v{F+4*j+k}, v{L+4*(2*k+1)+(j>>1)}, v{L+4*(2*k)+(j>>1)}, s{12+(j&1)}")

    def keys_pre(B):
        a(f"""
        s_mov_b32 s58, 0xffff0000
        v_lshlrev_b32 v{B+24}, 4, v20
        v_add_u32 v{B+24}, {L_RB}, v{B+24}
        v_lshlrev_b32 v{B+16}, 3, v20
        v_sub_u32 v{B+16}, 0x7ff, v{B+16}
        """)
        for k in range(1, 8):
            a(f"v_subrev_u32 v{B+16+k}, {k}, v{B+16}")

    def keys(tag, B, prio):
        lds_wait_flag(a, "RB" + tag, 28, 8, B, B + 1)
        if prio:
            a(f"s_setprio {prio}")
        stamp(a, 9)
        a(f"""
        v_mov_b32 v{B+3}, {L_NONCE}
        ds_read_b128 v[{B+4}:{B+7}], v{B+24}
        ds_read_b32 v{B+3}, v{B+3}
        s_lshl_b32 s52, s7, 3
        s_add_u32 s52, s52, {L_KEYS}
        v_mov_b32 v{B+25}, s52
        s_waitcnt lgkmcnt(0)
        v_readfirstlane_b32 s10, v{B+3}
        """)
        for q in range(4):
            a(f"v_lshl_or_b32 v{B+8+2*q}, v{B+4+q}, 16, v{B+16+2*q}")
            a(f"v_and_or_b32 v{B+9+2*q}, v{B+4+q}, s58, v{B+17+2*q}")
        for q in range(4):
            a(f"v_max_u32 v{B+4+q}, v{B+8+2*q}, v{B+9+2*q}")
            a(f"v_min_u32 v{B+8+2*q}, v{B+8+2*q}, v{B+9+2*q}")
        a(f"""
        v_min_u32 v{B+9}, v{B+4}, v{B+5}
        v_min_u32 v{B+13}, v{B+6}, v{B+7}
        v_max_u32 v{B+4}, v{B+4}, v{B+5}
        v_max_u32 v{B+6}, v{B+6}, v{B+7}
        v_max3_u32 v{B+8}, v{B+8}, v{B+9}, v{B+10}
        v_max3_u32 v{B+12}, v{B+12}, v{B+13}, v{B+14}
        v_min_u32 v{B+9}, v{B+4}, v{B+6}
        v_max_u32 v{B}, v{B+4}, v{B+6}
        v_max_u32 v{B+2}, v{B+4}, v{B+6}
        v_max3_u32 v{B+1}, v{B+8}, v{B+9}, v{B+12}
        """)
        dpp_reduce(a, "v_max_u32", [B + 2])
        a(f"""
        v_readlane_b32 s50, v{B+2}, 63
        v_cmp_eq_u32 vcc, s50, v{B}
        v_cndmask_b32 v{B+2}, v{B}, v{B+1}, vcc
        """)
        dpp_reduce(a, "v_max_u32", [B + 2])
        a(f"""
        v_readlane_b32 s51, v{B+2}, 63
        v_mov_b32 v{B}, s50
        v_mov_b32 v{B+1}, s51
        ds_write_b64 v{B+25}, v[{B}:{B+1}]
        """)
        lds_signal(a, 20, B + 3, B + 4)
        lds_wait_flag(a, "KK" + tag, 20, 4, B + 3, B + 4, sleep=not prio)
        a(f"""
        v_mov_b32 v{B+2}, {L_KEYS}
        ds_read_b128 v[{B+8}:{B+11}], v{B+2}
        ds_read_b128 v[{B+12}:{B+15}], v{B+2} offset:16
        s_waitcnt lgkmcnt(0)
        v_min_u32 v{B+1}, v{B+8}, v{B+10}
        v_min_u32 v{B+3}, v{B+12}, v{B+14}
        v_max_u32 v{B}, v{B+8}, v{B+10}
        v_max_u32 v{B+2}, v{B+12}, v{B+14}
        v_max3_u32 v{B+1}, v{B+1}, v{B+9}, v{B+11}
        v_max3_u32 v{B+3}, v{B+3}, v{B+13}, v{B+15}
        v_min_u32 v{B+4}, v{B}, v{B+2}
        v_max_u32 v{B}, v{B}, v{B+2}
        v_max3_u32 v{B+1}, v{B+1}, v{B+3}, v{B+4}
        v_readfirstlane_b32 s50, v{B}
        v_readfirstlane_b32 s51, v{B+1}
        s_and_b32 s8, s50, 0x7ff
        s_sub_u32 s8, 0x7ff, s8
        s_and_b32 s9, s51, 0x7ff
        s_sub_u32 s9, 0x7ff, s9
        """)

    def idx_pub(B):
        a(f"""
        v_mov_b32 v{B}, s8
        v_mov_b32 v{B+1}, s9
        v_mov_b32 v{B+2}, {L_IDX}
        ds_write_b64 v{B+2}, v[{B}:{B+1}]
        """)
        lds_signal(a, 24, B + 3, B + 4)
        stamp(a, 4)

    a(f"""
    s_cmp_ge_u32 s6, 18
    s_cbranch_scc1 L_NOMOE
    s_cmp_ge_u32 s6, 14
    s_cbranch_scc1 L_DOWN
    """)
    a(f"""
    s_mul_i32 s11, s5, 7
    s_lshr_b32 s14, s6, 1
    s_add_u32 s11, s11, s14
    s_and_b32 s15, s6, 1
    s_cmp_eq_u32 s15, 0
    s_cselect_b32 s54, s38, s40
    s_cselect_b32 s55, s39, s41
    v_lshrrev_b32 v10, 2, v8
    v_lshlrev_b32 v4, 5, v10
    v_lshl_add_u32 v4, v9, 3, v4
    s_lshl_b32 s14, s7, 7
    v_add_u32 v4, s14, v4
    v_mul_u32_u24 v4, 3584, v4
    v_and_b32 v5, 3, v1
    v_lshl_add_u32 v4, v5, 4, v4
    s_lshl_b32 s14, s11, 6
    v_add_u32 v4, s14, v4
    v_add_u32 v6, 7168, v4
    v_add_u32 v7, 14336, v4
    v_add_u32 v11, 21504, v4
    """)
    L, F, AC = 112, 64, 32
    gl = os.environ.get("GATE_LATE", "1") == "1"

    def gloads():
        for e2, ar in enumerate((4, 6, 7, 11)):
            a(f"global_load_dwordx4 v[{L+8*e2}:{L+8*e2+3}], v{ar}, s[54:55]")
            a(f"global_load_dwordx4 v[{L+8*e2+4}:{L+8*e2+7}], v{ar}, s[54:55] offset:3584")
    if not gl:
        lds_wait_flag(a, "XS", 4, 4, 12, 13)
        gloads()
    stamp(a, 1)
    keys_pre(32)
    a(f"""
    v_and_b32 v13, 31, v1
    v_lshlrev_b32 v13, 3, v13
    s_lshl_b32 s14, s7, 8
    v_add_u32 v13, s14, v13
    v_lshrrev_b32 v19, 5, v1
    v_lshl_add_u32 v22, v19, 10, v13
    v_add_u32 v22, {L_MOE}, v22
    v_and_b32 v19, 1, v1
    v_lshlrev_b32 v19, 10, v19
    v_lshl_add_u32 v19, v9, 4, v19
    v_lshl_add_u32 v19, v10, 6, v19
    s_add_u32 s14, s14, {L_MOE}
    v_add_u32 v19, s14, v19
    v_cmp_eq_u32 s[60:61], v9, v10
    s_lshl_b32 s14, s7, 10
    s_add_u32 s14, s14, {L_MP}
    v_lshl_add_u32 v24, v10, 8, s14
    v_lshl_add_u32 v24, v5, 5, v24
    v_lshlrev_b32 v23, 2, v1
    v_add_u32 v23, {L_MP}, v23
    v_lshrrev_b32 v25, 2, v1
    v_lshlrev_b32 v25, 4, v25
    s_lshl_b32 s14, s11, 8
    s_mul_i32 s59, s15, 14336
    s_add_u32 s14, s14, s59
    s_add_u32 s14, s14, {WS_HG}
    v_add_u32 v25, s14, v25
    """)
    if not gl:
        a("s_waitcnt vmcnt(0)")
        stamp(a, 2)
        pack(L, F)
    else:
        lds_wait_flag(a, "RBG0", 28, 8, 12, 14)
        gloads()
    keys("G", 32, 3)
    a(f"""
    s_mov_b32 s52, 0
    s_mov_b32 s53, -1
    v_mov_b32 v12, s8
    v_mov_b32 v14, s9
    v_cndmask_b32 v12, v12, v14, s[52:53]
    v_lshl_add_u32 v14, v12, 10, v13
    global_load_dwordx2 v[16:17], v14, {P_X}
    v_lshrrev_b32 v15, 1, v12
    v_lshlrev_b32 v15, 4, v15
    v_and_b32 v18, 1, v12
    v_lshl_add_u32 v15, v18, 2, v15
    global_load_dword v18, v15, {P_WS} sc0 sc1
    """)
    idx_pub(32)
    if gl:
        a("s_waitcnt vmcnt(2)")
        stamp(a, 2)
        pack(L, F)
    a("s_waitcnt vmcnt(0)")
    stamp(a, 5)
    a(f"""
    v_and_b32 v20, 0xffff0000, v18
    v_rcp_f32 v20, v20
    v_lshlrev_b32 v21, 16, v18
    """)
    unpack(a, 26, 27, 16)
    unpack(a, 28, 29, 17)
    for k in range(4):
        a(f"v_sub_f32 v{26+k}, v{26+k}, v21")
    a("v_cvt_pk_bf16_f32 v16, v26, v27\nv_cvt_pk_bf16_f32 v17, v28, v29")
    unpack(a, 26, 27, 16)
    unpack(a, 28, 29, 17)
    for k in range(4):
        a(f"v_mul_f32 v{26+k}, v{26+k}, v20")
    a("v_cvt_pk_bf16_f32 v16, v26, v27\nv_cvt_pk_bf16_f32 v17, v28, v29")
    a(f"""
    ds_write_b64 v22, v[16:17]
    ds_read_b128 v[28:31], v19
    s_waitcnt lgkmcnt(0)
    """)
    for j in range(8):
        a(f"v_mfma_f32_16x16x32_bf16 v[{AC+4*j}:{AC+4*j+3}], v[28:31], v[{F+4*j}:{F+4*j+3}], 0")
    a("s_mov_b64 exec, s[60:61]")
    for j in range(8):
        a(f"ds_write2_b32 v24, v{AC+4*j}, v{AC+4*j+1} offset0:{j} offset1:{32+j}")
    a("s_mov_b64 exec, -1")
    lds_signal(a, 8, 12, 13)
    a(f"""
    s_cmp_eq_u32 s7, 0
    s_cbranch_scc0 L_MFIN
    """)
    lds_wait_flag(a, "G", 8, 4, 12, 13, sleep=False)
    for i in range(16):
        a(f"ds_read_b32 v{32+i}, v23 offset:{256*i}")
    a(f"""
    v_mov_b32 v58, s10
    v_mov_b32 v59, s10
    s_waitcnt lgkmcnt(0)
    """)
    for st in (1, 2, 4, 8):
        for i in range(0, 16, 2 * st):
            a(f"v_add_f32 v{32+i}, v{32+i}, v{32+i+st}")
    a(f"""
    v_cvt_pk_bf16_f32 v32, v32, v32
    s_cmp_eq_u32 s15, 0
    s_cbranch_scc0 L_NOSILU
    v_lshlrev_b32 v32, 16, v32
    v_mul_f32 v33, {NEGL2E}, v32
    v_exp_f32 v33, v33
    v_add_f32 v33, 1.0, v33
    v_rcp_f32 v33, v33
    v_mul_f32 v32, v32, v33
    v_cvt_pk_bf16_f32 v32, v32, v32
    """)
    a.label("L_NOSILU")
    a.reset()
    a(f"""
    v_and_b32 v32, 0xffff, v32
    s_nop 1
    v_mov_b32_dpp v33, v32 quad_perm:[1,1,1,1] row_mask:0xf bank_mask:0xf
    v_mov_b32_dpp v34, v32 quad_perm:[2,2,2,2] row_mask:0xf bank_mask:0xf
    v_mov_b32_dpp v35, v32 quad_perm:[3,3,3,3] row_mask:0xf bank_mask:0xf
    v_lshl_or_b32 v56, v33, 16, v32
    v_lshl_or_b32 v57, v35, 16, v34
    s_mov_b32 exec_lo, 0x11111111
    s_mov_b32 exec_hi, 0x11111111
    global_store_dwordx4 v25, v[56:59], {P_WS} sc0 sc1
    s_mov_b64 exec, -1
    """)
    stamp(a, 6)
    a.label("L_MFIN")
    a.reset()
    finish(a)
    a.label("L_DOWN")
    a.reset()
    a(f"""
    s_lshl_b32 s11, s5, 2
    s_add_u32 s11, s11, s6
    s_sub_u32 s11, s11, 14
    v_lshrrev_b32 v10, 1, v8
    v_lshlrev_b32 v4, 5, v10
    v_lshl_add_u32 v4, v9, 3, v4
    s_lshl_b32 s14, s7, 8
    v_add_u32 v4, s14, v4
    v_lshlrev_b32 v4, 10, v4
    v_and_b32 v5, 1, v1
    v_lshl_add_u32 v4, v5, 4, v4
    s_lshl_b32 s14, s11, 5
    v_add_u32 v4, s14, v4
    v_add_u32 v5, 0x1000, v4
    s_cmp_eq_u32 s7, 3
    s_cselect_b32 s15, 0, {1024*1024}
    v_add_u32 v6, s15, v4
    v_add_u32 v7, s15, v5
    s_waitcnt lgkmcnt(0)
    """)
    L0, L1, F0, AC = 32, 64, 96, 128
    keys_pre(100)
    lds_wait_flag(a, "RBD0", 28, 8, 12, 13)
    for e in range(8):
        a(f"global_load_dwordx4 v[{L0+4*e}:{L0+4*e+3}], v{4+(e>>2)}, s[42:43] offset:{1024*(e&3)}")
    for e in range(8):
        a(f"global_load_dwordx4 v[{L1+4*e}:{L1+4*e+3}], v{6+(e>>2)}, s[42:43] offset:{1024*(e&3)}")
    stamp(a, 1)
    keys("D", 100, 0)
    idx_pub(100)
    a("s_waitcnt vmcnt(8)")
    pack(L0, F0)
    a("s_waitcnt vmcnt(0)")
    stamp(a, 2)
    pack(L1, L0)
    F1 = L0
    a(f"""
    s_lshl_b32 s14, s7, 11
    s_add_u32 s14, s14, {WS_HG}
    v_lshl_add_u32 v12, v1, 4, s14
    s_cmp_eq_u32 s7, 3
    s_cselect_b32 s15, 0, 0x2000
    v_add_u32 v13, s15, v12
    s_mov_b32 s62, 0
    """)
    a(f"""
    s_lshl_b32 s14, s7, 11
    s_add_u32 s14, s14, {L_MOE}
    v_lshrrev_b32 v24, 4, v1
    v_lshlrev_b32 v24, 6, v24
    v_and_b32 v25, 7, v1
    v_lshl_add_u32 v24, v25, 3, v24
    v_bfe_u32 v25, v1, 3, 1
    v_lshl_add_u32 v24, v25, 9, v24
    v_add_u32 v24, s14, v24
    v_add_u32 v14, 14336, v12
    v_add_u32 v15, 14336, v13
    v_and_b32 v25, 1, v1
    v_lshlrev_b32 v25, 9, v25
    v_lshl_add_u32 v25, v10, 6, v25
    v_lshl_add_u32 v25, v9, 4, v25
    v_add_u32 v25, s14, v25
    """)
    stamp(a, 3)
    a.label("L_HPOLL")
    a.reset()
    a(f"""
    global_load_dwordx4 v[64:67], v12, {P_WS} sc0 sc1
    global_load_dwordx4 v[68:71], v12, {P_WS} offset:1024 sc0 sc1
    global_load_dwordx4 v[72:75], v13, {P_WS} sc0 sc1
    global_load_dwordx4 v[76:79], v13, {P_WS} offset:1024 sc0 sc1
    global_load_dwordx4 v[80:83], v14, {P_WS} sc0 sc1
    global_load_dwordx4 v[84:87], v14, {P_WS} offset:1024 sc0 sc1
    global_load_dwordx4 v[88:91], v15, {P_WS} sc0 sc1
    global_load_dwordx4 v[92:95], v15, {P_WS} offset:1024 sc0 sc1
    s_waitcnt vmcnt(0)
    v_xor_b32 v16, s10, v67
    v_xor_b32 v17, s10, v71
    v_xor_b32 v18, s10, v75
    v_xor_b32 v19, s10, v79
    v_xor_b32 v20, s10, v83
    v_xor_b32 v21, s10, v87
    v_xor_b32 v22, s10, v91
    v_xor_b32 v23, s10, v95
    v_or3_b32 v16, v16, v17, v18
    v_or3_b32 v19, v19, v20, v21
    v_or3_b32 v16, v16, v22, v23
    v_or_b32 v16, v16, v19
    v_cmp_ne_u32 vcc, 0, v16
    s_cbranch_vccz L_HOK
    s_sleep 3
    s_add_u32 s62, s62, 1
    s_cmp_lt_u32 s62, {SPIN_MAX}
    s_cbranch_scc1 L_HPOLL
    """)
    a.label("L_HOK")
    a.reset()
    a("s_setprio 3")
    stamp(a, 10)
    for g in range(4):
        G, U = 64 + 4 * g, 80 + 4 * g
        for d in range(2):
            a(f"""
            v_lshlrev_b32 v16, 16, v{G+d}
            v_and_b32 v17, 0xffff0000, v{G+d}
            v_lshlrev_b32 v18, 16, v{U+d}
            v_and_b32 v19, 0xffff0000, v{U+d}
            v_pk_mul_f32 v[16:17], v[16:17], v[18:19]
            v_cvt_pk_bf16_f32 v{G+d}, v16, v17
            """)
    a(f"""
    ds_write_b64 v24, v[64:65]
    ds_write_b64 v24, v[68:69] offset:256
    ds_write_b64 v24, v[72:73] offset:1024
    ds_write_b64 v24, v[76:77] offset:1280
    ds_read_b128 v[16:19], v25
    ds_read_b128 v[20:23], v25 offset:1024
    s_waitcnt lgkmcnt(1)
    """)
    for j in range(8):
        a(f"v_mfma_f32_16x16x32_bf16 v[{AC+4*j}:{AC+4*j+3}], v[16:19], v[{F0+4*j}:{F0+4*j+3}], 0")
    a(f"""
    s_waitcnt lgkmcnt(0)
    s_cmp_eq_u32 s7, 3
    s_cbranch_scc1 L_DSKIP
    """)
    for j in range(8):
        a(f"v_mfma_f32_16x16x32_bf16 v[{AC+4*j}:{AC+4*j+3}], v[20:23], v[{F1+4*j}:{F1+4*j+3}], v[{AC+4*j}:{AC+4*j+3}]")
    a.label("L_DSKIP")
    a.reset()
    a(f"""
    v_lshrrev_b32 v26, 1, v10
    v_cmp_eq_u32 s[54:55], v9, v26
    v_and_b32 v26, 1, v10
    v_cmp_eq_u32 s[52:53], 1, v26
    s_lshl_b32 s14, s7, 10
    s_add_u32 s14, s14, {L_MP}
    v_lshl_add_u32 v24, v10, 7, s14
    v_and_b32 v26, 1, v1
    v_lshl_add_u32 v24, v26, 5, v24
    s_nop 7
    """)
    for j in range(8):
        a(f"v_cndmask_b32 v{AC+4*j}, v{AC+4*j}, v{AC+4*j+2}, s[52:53]")
        a(f"v_cndmask_b32 v{AC+4*j+1}, v{AC+4*j+1}, v{AC+4*j+3}, s[52:53]")
    a("s_mov_b64 exec, s[54:55]")
    for j in range(8):
        a(f"ds_write2_b32 v24, v{AC+4*j}, v{AC+4*j+1} offset0:{j} offset1:{16+j}")
    a("s_mov_b64 exec, -1")
    lds_signal(a, 8, 12, 13)
    a(f"""
    s_cmp_eq_u32 s7, 0
    s_cbranch_scc0 L_DFIN
    """)
    a(f"""
    v_bfe_u32 v24, v1, 4, 1
    v_bfe_u32 v27, v1, 1, 3
    s_lshl_b32 s14, s11, 3
    v_add_u32 v26, s14, v27
    v_lshlrev_b32 v29, 4, v26
    v_lshl_add_u32 v29, v24, 12, v29
    v_add_u32 v29, {WS_TG}, v29
    v_cmp_eq_u32 vcc, 1, v24
    v_mov_b32 v30, s50
    v_mov_b32 v31, s51
    v_cndmask_b32 v30, v30, v31, vcc
    v_mov_b32 v44, s8
    v_mov_b32 v31, s9
    v_cndmask_b32 v44, v44, v31, vcc
    v_lshrrev_b32 v30, 16, v30
    v_bfe_i32 v31, v30, 15, 1
    v_not_b32 v31, v31
    v_or_b32 v31, 0x8000, v31
    v_xor_b32 v30, v30, v31
    v_lshlrev_b32 v30, 16, v30
    v_mul_f32 v30, {NEGL2E}, v30
    v_exp_f32 v30, v30
    v_add_f32 v30, 1.0, v30
    v_rcp_f32 v30, v30
    v_cvt_pk_bf16_f32 v30, v30, v30
    v_lshlrev_b32 v30, 16, v30
    v_lshlrev_b32 v44, 10, v44
    v_lshl_add_u32 v44, v26, 2, v44
    v_and_b32 v28, 31, v1
    v_lshlrev_b32 v28, 2, v28
    v_lshrrev_b32 v31, 5, v1
    v_lshl_add_u32 v28, v31, 11, v28
    v_add_u32 v28, {L_MP}, v28
    """)
    lds_wait_flag(a, "D", 8, 4, 12, 13)
    for i in range(16):
        a(f"ds_read_b32 v{48+i}, v28 offset:{128*i}")
    a("s_waitcnt lgkmcnt(0)")
    for st in (1, 2, 4, 8):
        for i in range(0, 16, 2 * st):
            a(f"v_add_f32 v{48+i}, v{48+i}, v{48+i+st}")
    a(f"""
    v_mov_b32 v49, v48
    v_permlane32_swap_b32 v48, v49
    v_add_f32 v52, v48, v49
    v_mov_b32_dpp v53, v52 quad_perm:[1,1,3,3] row_mask:0xf bank_mask:0xf
    v_cvt_pk_bf16_f32 v52, v52, v53
    v_and_b32 v53, 0xffff0000, v52
    v_lshlrev_b32 v52, 16, v52
    v_mul_f32 v52, v52, v30
    v_mul_f32 v53, v53, v30
    v_cvt_pk_bf16_f32 v52, v52, v53
    v_and_b32 v53, 0xffff0000, v52
    v_lshlrev_b32 v52, 16, v52
    s_mov_b32 s62, 0
    """)
    stamp(a, 5)
    a.label("L_TPOLL")
    a.reset()
    a(f"""
    global_load_dwordx4 v[56:59], v29, {P_WS} sc0 sc1
    s_waitcnt vmcnt(0)
    v_cmp_ne_u32 vcc, s10, v59
    s_cbranch_vccz L_TOK
    s_sleep 1
    s_add_u32 s62, s62, 1
    s_cmp_lt_u32 s62, {SPIN_MAX}
    s_cbranch_scc1 L_TPOLL
    """)
    a.label("L_TOK")
    a.reset()
    stamp(a, 6)
    a(f"""
    v_mov_b32 v62, 0x3a000000
    v_lshlrev_b32 v60, 16, v57
    v_and_b32 v61, 0xffff0000, v57
    v_fma_f32 v52, v60, v62, v52
    v_fma_f32 v53, v61, v62, v53
    v_cvt_pk_bf16_f32 v52, v52, v53
    v_and_b32 v53, 0xffff0000, v52
    v_lshlrev_b32 v52, 16, v52
    v_lshlrev_b32 v60, 16, v56
    v_and_b32 v61, 0xffff0000, v56
    v_add_f32 v52, v52, v60
    v_add_f32 v53, v53, v61
    v_cvt_pk_bf16_f32 v52, v52, v53
    s_mov_b64 exec, 0x55555555
    global_store_dword v44, v52, {P_OUT}
    s_mov_b64 exec, -1
    """)
    a.label("L_DFIN")
    a.reset()
    finish(a)
    a.label("L_NOMOE")
    a.reset()
    keys_pre(32)
    keys("N", 32, 0)
    idx_pub(32)
    finish(a)
    a.label("L_END")
    a("s_endpgm")


def main(out):
    a = Asm()
    a.raw(f"; @launch grid=(256,1,1) block=(768,1,1) lds={LDS_SIZE}")
    a.raw('.amdgcn_target "amdgcn-amd-amdhsa--gfx950"')
    a.raw(".text")
    gen(a)
    a.raw('.section .rodata,"a"')
    a.raw(f""".p2align 6
.amdhsa_kernel {NAME}_kernel
  .amdhsa_next_free_vgpr 168
  .amdhsa_next_free_sgpr 102
  .amdhsa_accum_offset 168
  .amdhsa_group_segment_fixed_size 0
  .amdhsa_kernarg_size 136
  .amdhsa_user_sgpr_count 2
  .amdhsa_user_sgpr_kernarg_segment_ptr 1
  .amdhsa_system_sgpr_workgroup_id_x 1
  .amdhsa_float_denorm_mode_32 3
.end_amdhsa_kernel
""")
    open(out, "w").write(a.text())
    print("nops inserted:", a.nops_inserted)


if __name__ == "__main__":
    import subprocess
    out = sys.argv[1] if len(sys.argv) > 1 else "k2.s"
    main(out)
    subprocess.check_call(["clang", "-x", "assembler", "-target", "amdgcn-amd-amdhsa", "-mcpu=gfx950", "-c", out, "-o", "pass1.o"])
    syms = subprocess.check_output(["llvm-objdump", "-t", "pass1.o"]).decode().split("\n")
    addr = {l.split()[-1]: int(l.split()[0], 16) for l in syms if ".text" in l and len(l.split()) >= 5}
    CODE_SPAN[0] = addr["L_END"] - addr[NAME + "_kernel"] - 16
    print("code bytes", CODE_SPAN[0] + 16)
    main(out)
```

```python
import sys, os
from asmlib import Asm

NAME = "parallel_sum__ssm_conv_s4__moe_arch_mod__prompt"
MB = 1 << 20
STAMP = os.environ.get("STAMP", "0") == "1"
WS_GR = 0x0
WS_RG = 0x4000
WS_HG = 0x8000
WS_TG = 0x10000
WS_C2 = 0x28000
WS_W0 = 0x30000
WS_FL = 0x20000
WS_XC = 1 * MB
WS_STAMP = 16 * MB

LOG2E = "0x3fb8aa3b"
NEGL2E = "0xbfb8aa3b"
SPIN_MAX = 1 << 18
CODE_SPAN = [0x1000]

ROW = 544
A_SZ = 21 * ROW
AB_CH = A_SZ + 32 * ROW
UCOPY = 4160
U_CH = 4 * UCOPY
L_PA = 2 * U_CH
L_PB = L_PA + 16384
L_K = L_PB + 16384
K_CH = 4608
L_TAB = L_K + 2 * K_CH
L_MOE = L_TAB + 3072
L_MP = L_MOE + 8192
L_MISC = L_MP + 4096
L_KEYS = L_MISC
L_NONCE = L_MISC + 64
L_KS = L_MISC + 80
L_FLAG = L_MISC + 96
T_OFF = L_MISC + 192
LDS_SIZE = T_OFF + 8448

P_X, P_ARE, P_AIM, P_BRE, P_BIM, P_CRE, P_CIM, P_LDT = [f"s[{16+2*i}:{17+2*i}]" for i in range(8)]
P_DSK, P_WR, P_OUT, P_DBG, P_WS = "s[32:33]", "s[36:37]", "s[44:45]", "s[46:47]", "s[48:49]"


def stamp(a, idx):
    if STAMP:
        a(f"{'s_memtime' if os.environ.get('STAMPCLK') == '1' else 's_memrealtime'} s[{64+2*idx}:{65+2*idx}]")


def stamp_init(a):
    if STAMP:
        for i in range(64, 96, 2):
            a(f"s_mov_b64 s[{i}:{i+1}], 0")
        stamp(a, 0)


def finish(a):
    if STAMP:
        a("s_waitcnt vmcnt(0)")
        stamp(a, 15)
        a(f"""
        s_lshl_b32 s98, s2, 4
        s_add_u32 s98, s98, s3
        s_lshl_b32 s98, s98, 7
        s_add_u32 s98, s98, {WS_STAMP}
        s_waitcnt lgkmcnt(0)
        s_mov_b64 exec, 1
        v_mov_b32 v0, s98
        """)
        for q in range(8):
            for k in range(4):
                a(f"v_mov_b32 v{4+k}, s{64+4*q+k}")
            a(f"global_store_dwordx4 v0, v[4:7], {P_WS} offset:{16*q}")
            a("s_nop 1")
    a("s_endpgm")


def cmul(a, R, X, Y, T):
    a(f"v_pk_mul_f32 v[{T}:{T+1}], v[{X}:{X+1}], v[{Y}:{Y+1}] op_sel:[0,0] op_sel_hi:[0,1]")
    a(f"v_pk_fma_f32 v[{R}:{R+1}], v[{X}:{X+1}], v[{Y}:{Y+1}], v[{T}:{T+1}] op_sel:[1,1,0] op_sel_hi:[1,0,1] neg_lo:[1,0,0]")


ROWSTEPS = ["quad_perm:[1,0,3,2] row_mask:0xf bank_mask:0xf",
            "quad_perm:[2,3,0,1] row_mask:0xf bank_mask:0xf",
            "row_half_mirror row_mask:0xf bank_mask:0xf",
            "row_mirror row_mask:0xf bank_mask:0xf"]


def dpp_reduce(a, op, regs):
    for s in ROWSTEPS + ["row_bcast:15 row_mask:0xa bank_mask:0xf", "row_bcast:31 row_mask:0xc bank_mask:0xf"]:
        for r in regs:
            a(f"{op}_dpp v{r}, v{r}, v{r} {s}")


def half_reduce_add(a, regs, tmps):
    for s in ROWSTEPS:
        for r in regs:
            a(f"v_add_f32_dpp v{r}, v{r}, v{r} {s}")
    for r, t in zip(regs, tmps):
        a(f"v_mov_b32 v{t}, v{r}")
    for r, t in zip(regs, tmps):
        a(f"v_permlane16_swap_b32 v{r}, v{t}")
    for r, t in zip(regs, tmps):
        a(f"v_add_f32 v{r}, v{r}, v{t}")


def anchor(a, P, vA, vB, lf, t0, t1):
    if lf is None:
        a(f"v_exp_f32 v{t0}, v{vA}")
        a(f"v_fract_f32 v{t1}, v{vB}")
    else:
        a(f"v_mul_f32 v{t0}, {lf}, v{vA}")
        a(f"v_mul_f32 v{t1}, {lf}, v{vB}")
        a(f"v_exp_f32 v{t0}, v{t0}")
        a(f"v_fract_f32 v{t1}, v{t1}")
    a(f"v_cos_f32 v{P}, v{t1}")
    a(f"v_sin_f32 v{P+1}, v{t1}")
    a(f"v_mul_f32 v{P}, v{t0}, v{P}")
    a(f"v_mul_f32 v{P+1}, v{t0}, v{P+1}")


def unpack(a, lo, hi, src):
    a(f"v_lshlrev_b32 v{lo}, 16, v{src}")
    a(f"v_and_b32 v{hi}, 0xffff0000, v{src}")


def lds_wait_flag(a, tag, off, val, vaddr, vtmp, sleep=True, saddr=None):
    a(f"""
    v_mov_b32 v{vaddr}, {saddr if saddr else L_FLAG+off}
    s_mov_b32 s62, 0
    """)
    a.label(f"LW_{tag}")
    a.reset()
    a(f"""
    ds_read_b32 v{vtmp}, v{vaddr}
    s_add_u32 s62, s62, 1
    s_waitcnt lgkmcnt(0)
    v_readfirstlane_b32 s63, v{vtmp}
    s_cmp_ge_u32 s63, {val}
    s_cbranch_scc1 LWD_{tag}
    {("s_sleep %d" % int(sleep)) if sleep else ""}
    s_cmp_lt_u32 s62, {SPIN_MAX}
    s_cbranch_scc1 LW_{tag}
    """)
    a.label(f"LWD_{tag}")
    a.reset()


def lds_signal(a, off, vaddr, vtmp):
    a(f"""
    v_mov_b32 v{vaddr}, {L_FLAG+off}
    v_mov_b32 v{vtmp}, 1
    s_mov_b64 exec, 1
    ds_add_u32 v{vaddr}, v{vtmp}
    s_mov_b64 exec, -1
    """)


def piece_hash(a, dst, d, vmul, t):
    for D, B in zip(dst, d):
        a(f"v_alignbit_b32 v{t}, v{B+1}, v{B+1}, 25")
        a(f"v_alignbit_b32 v{t+1}, v{B+2}, v{B+2}, 19")
        a(f"v_alignbit_b32 v{D}, v{B+3}, v{B+3}, 10")
        a(f"v_add3_u32 v{t}, v{t}, v{t+1}, v{B}")
        a(f"v_add_u32 v{D}, v{D}, v{t}")
        a(f"v_mul_lo_u32 v{D}, v{D}, v{vmul}")
    for s in ROWSTEPS:
        for D in dst:
            a(f"v_add_u32_dpp v{D}, v{D}, v{D} {s}")


def lbar(a, n, va=158, vb=159, sleep=False):
    a("s_waitcnt lgkmcnt(0)")
    a(f"""
    v_mov_b32 v{va}, {L_FLAG+12}
    v_mov_b32 v{vb}, 1
    s_mov_b64 exec, 1
    ds_add_u32 v{va}, v{vb}
    s_mov_b64 exec, -1
    s_mov_b32 s62, 0
    """)
    a.label(f"LB_{n}")
    a.reset()
    a(f"""
    ds_read_b32 v{vb}, v{va}
    s_add_u32 s62, s62, 1
    s_waitcnt lgkmcnt(0)
    v_readfirstlane_b32 s63, v{vb}
    s_cmp_ge_u32 s63, {8*n}
    s_cbranch_scc1 LBD_{n}
    {"s_sleep 1" if sleep else ""}
    s_cmp_lt_u32 s62, {SPIN_MAX}
    s_cbranch_scc1 LB_{n}
    """)
    a.label(f"LBD_{n}")
    a.reset()


XG = 160
XN = 164


def conv_loop(a, ACC, FB, NS, fillers):
    desc = []
    for lv in range(7, -1, -1):
        for o in range(0, lv + 1):
            if lv + o <= 7:
                desc.append((lv, o))
                if o != lv:
                    desc.append((o, lv))
    asc = [(q, ct - q) for ct in range(8) for q in range(ct + 1)]
    if os.environ.get("CV_SPREAD") == "1":
        d2 = []
        for lv in range(7, -1, -1):
            A = [(lv, o) for o in range(0, lv + 1) if lv + o <= 7]
            B = [(o, lv) for o in range(0, lv) if lv + o <= 7]
            d2 += A + B
        desc = d2
    ml = []
    loads = []
    for ri in range(4):
        pairs = asc if (ri == 3 and os.environ.get("CONV_ASC", "1") == "1") else desc
        for (q, m) in pairs:
            ml.append((ri, q, m))
            for f in ((ri, "U", q), (ri, "K", m)):
                if f not in loads:
                    loads.append(f)
    last_use = {}
    last_ct = {}
    for i, (ri, q, m) in enumerate(ml):
        last_use[(ri, "U", q)] = i
        last_use[(ri, "K", m)] = i
        last_ct[q + m] = i
    free = list(range(NS))
    slot = {}
    ready = {}
    st = {"iss": 0, "done": 0}
    li = 0
    fillers = list(fillers)

    def issue(key):
        sl = free.pop(0)
        slot[key] = sl
        reg = FB + 4 * sl
        ri, kind, n = key
        if os.environ.get("CV_NOREAD") == "1":
            pass
        elif kind == "U" and os.environ.get("CV_U128") == "1":
            a(f"ds_read_b128 v[{reg}:{reg+3}], v13 offset:{512*n+64*ri}")
            st["iss"] += 1
        elif kind == "U":
            a(f"ds_read_b64 v[{reg}:{reg+1}], v12 offset:{512*n+64*ri}")
            a(f"ds_read_b64 v[{reg+2}:{reg+3}], v12 offset:{512*n+64*ri+8}")
            st["iss"] += 2
        else:
            a(f"ds_read_b128 v[{reg}:{reg+3}], v13 offset:{512*(7-n)+64*ri}")
            st["iss"] += 1
        ready[key] = st["iss"]

    def dump(ct):
        a(f"ds_write_b128 v14, v[{ACC+4*ct}:{ACC+4*ct+3}] offset:{4096*ct}")
        a("s_mov_b64 exec, 1")
        a(f"ds_add_u32 v10, v11 offset:{4*ct}")
        a("s_mov_b64 exec, -1")
        st["iss"] += 2

    pend = []
    while li < len(loads) and free and st["iss"] < 13:
        issue(loads[li]); li += 1
    for i, (ri, q, m) in enumerate(ml):
        ku, kk = (ri, "U", q), (ri, "K", m)
        while ku not in ready or kk not in ready:
            issue(loads[li]); li += 1
        need = max(ready[ku], ready[kk])
        if need > st["done"]:
            a(f"s_waitcnt lgkmcnt({min(st['iss'] - need, 15)})")
            st["done"] = need
        ct = q + m
        ru, rk = FB + 4 * slot[ku], FB + 4 * slot[kk]
        a(f"v_mfma_f32_16x16x32_f16 v[{ACC+4*ct}:{ACC+4*ct+3}], v[{ru}:{ru+3}], v[{rk}:{rk+3}], v[{ACC+4*ct}:{ACC+4*ct+3}]")
        for k in (ku, kk):
            if last_use[k] == i:
                free.append(slot[k])
        if last_ct[ct] == i:
            pend.append((i + 4 if os.environ.get("CONV_EARLY", "1") == "1" else 10**6, ct))
        did = False
        if pend and pend[0][0] <= i:
            dump(pend.pop(0)[1]); did = True
        if not did and li < len(loads) and free and st["iss"] - st["done"] < 13:
            issue(loads[li]); li += 1; did = True
        if not did and fillers and i > 8 and os.environ.get("CONV_FILL", "1") == "1":
            a(fillers.pop(0))
    for _, ct in pend:
        dump(ct)
    for f in fillers:
        a(f)


EA = 129
ED = 138


def epi_addr(a):
    a(f"""
    v_bfe_u32 v24, v1, 3, 2
    v_xor_b32 v24, v24, v1
    v_lshrrev_b32 v25, 8, v4
    v_lshlrev_b32 v25, 12, v25
    v_lshl_add_u32 v129, v24, 4, v25
    v_add_u32 v129, {L_PA}, v129
    s_lshl_b32 s50, s4, 13
    s_add_u32 s50, s50, {WS_XC}
    v_lshl_add_u32 v130, v4, 2, s50
    s_lshl_b32 s50, s4, 7
    s_add_u32 s50, s50, {WS_C2}
    v_lshrrev_b32 v131, 6, v4
    v_lshl_add_u32 v131, v131, 2, s50
    v_lshrrev_b32 v24, 4, v0
    v_and_b32 v25, 15, v0
    s_lshl_b32 s50, s5, 18
    s_lshl_b32 s51, s6, 8
    s_add_u32 s50, s50, s51
    s_add_u32 s50, s50, {WS_XC}
    v_lshlrev_b32 v132, 13, v24
    v_lshl_add_u32 v132, v25, 4, v132
    v_add_u32 v132, s50, v132
    s_lshl_b32 s50, s5, 12
    s_lshl_b32 s51, s6, 2
    s_add_u32 s50, s50, s51
    s_add_u32 s50, s50, {WS_C2}
    v_lshl_add_u32 v133, v24, 7, s50
    v_mul_u32_u24 v134, {4*33*4}, v25
    v_lshl_add_u32 v134, v24, 2, v134
    v_add_u32 v134, {T_OFF}, v134
    v_lshrrev_b32 v137, 3, v0
    v_and_b32 v25, 7, v0
    v_mul_u32_u24 v135, {33*4}, v137
    v_lshl_add_u32 v135, v25, 4, v135
    s_lshl_b32 s50, s6, 6
    v_add_u32 v137, s50, v137
    v_lshlrev_b32 v136, 10, v137
    v_lshl_add_u32 v136, v25, 4, v136
    s_lshl_b32 s50, s5, 7
    v_add_u32 v136, s50, v136
    """)


def epi_data():
    L = []
    for r in range(4):
        L += [f"v_lshlrev_b32 v{148+2*r}, 16, v{XN+r}", f"v_and_b32 v{149+2*r}, 0xffff0000, v{XN+r}"]
    for r in range(4):
        L += [f"v_mul_f32 v{140+2*r}, v{148+2*r}, v156", f"v_mul_f32 v{141+2*r}, v{149+2*r}, v157"]
    for r in range(4):
        L += [f"v_cvt_pk_bf16_f32 v{140+2*r}, v{140+2*r}, v{141+2*r}"]
    for r in range(4):
        L += [f"v_and_b32 v{141+2*r}, 0xffff0000, v{140+2*r}", f"v_lshlrev_b32 v{140+2*r}, 16, v{140+2*r}"]
    return L


def epilogue(a):
    a(f"""
    s_lshl_b32 s13, s14, 2
    s_add_u32 s13, s13, {L_FLAG+48}
    v_mov_b32 v6, s13
    v_mov_b32 v7, {L_KS}
    s_mov_b32 s62, 0
    """)
    a.label("EP_RD")
    a.reset()
    a(f"""
    ds_read_b32 v30, v6
    ds_read_b32 v31, v7 offset:{L_FLAG+24-L_KS}
    ds_read_b128 v[24:27], v7
    ds_read_b32 v5, v7 offset:{L_FLAG+32-L_KS}
    ds_read_b128 v[8:11], v129
    ds_read_b128 v[12:15], v129 offset:1024
    ds_read_b128 v[16:19], v129 offset:2048
    ds_read_b128 v[20:23], v129 offset:3072
    v_mov_b32 v28, 0x3a000000
    v_mov_b32 v29, 0x3a000000
    v_and_b32 v82, 15, v1
    v_lshl_add_u32 v82, v82, 1, 1
    """)
    for r in range(4):
        unpack(a, 48 + 2 * r, 49 + 2 * r, XG + r)
    a(f"""
    s_waitcnt lgkmcnt(4)
    v_readfirstlane_b32 s50, v30
    v_readfirstlane_b32 s51, v31
    v_readfirstlane_b32 s8, v26
    v_readfirstlane_b32 s9, v27
    v_readfirstlane_b32 s12, v5
    s_add_u32 s62, s62, 1
    s_cmp_ge_u32 s50, 4
    s_cselect_b32 s52, 1, 0
    s_cmp_ge_u32 s51, 1
    s_cselect_b32 s53, s52, 0
    s_cmp_ge_u32 s62, {SPIN_MAX}
    s_cselect_b32 s53, 1, s53
    s_cmp_eq_u32 s53, 1
    s_cbranch_scc1 EP_GO
    s_waitcnt lgkmcnt(0)
    s_branch EP_RD
    """)
    a.label("EP_GO")
    a.reset()
    stamp(a, 12)
    a("s_waitcnt lgkmcnt(2)")
    for r in range(4):
        a(f"v_add_f32 v{60+2*r}, v{8+r}, v{12+r}")
    a("s_waitcnt lgkmcnt(0)")
    for r in range(4):
        a(f"v_add_f32 v{61+2*r}, v{16+r}, v{20+r}")
    for r in range(4):
        a(f"v_pk_mul_f32 v[{60+2*r}:{61+2*r}], v[{60+2*r}:{61+2*r}], v[24:25]")
    for r in range(4):
        a(f"v_cvt_pk_bf16_f32 v{56+r}, v{60+2*r}, v{61+2*r}")
    for r in range(4):
        unpack(a, 60 + 2 * r, 61 + 2 * r, 56 + r)
    for r in range(4):
        a(f"v_pk_add_f32 v[{60+2*r}:{61+2*r}], v[{60+2*r}:{61+2*r}], v[{140+2*r}:{141+2*r}]")
    for r in range(4):
        a(f"v_cvt_pk_bf16_f32 v{56+r}, v{60+2*r}, v{61+2*r}")
    for r in range(4):
        unpack(a, 60 + 2 * r, 61 + 2 * r, 56 + r)
    for r in range(4):
        a(f"v_pk_add_f32 v[{60+2*r}:{61+2*r}], v[{60+2*r}:{61+2*r}], v[{48+2*r}:{49+2*r}]")
    for r in range(4):
        a(f"v_cvt_pk_bf16_f32 v{56+r}, v{60+2*r}, v{61+2*r}")
    for r in range(4):
        unpack(a, 60 + 2 * r, 61 + 2 * r, 56 + r)
    for r in range(4):
        a(f"v_pk_fma_f32 v[{60+2*r}:{61+2*r}], v[{148+2*r}:{149+2*r}], v[28:29], v[{60+2*r}:{61+2*r}]")
    for r in range(4):
        a(f"v_cvt_pk_bf16_f32 v{68+r}, v{60+2*r}, v{61+2*r}")
    a(f"""
    s_cmp_lg_u32 s12, 0
    s_cbranch_scc1 EP_NOX
    global_store_dwordx4 v130, v[68:71], {P_WS}
    """)
    piece_hash(a, [8], [68], 82, 9)
    a(f"""
    v_add_u32 v8, s10, v8
    s_mov_b32 exec_lo, 0x00010001
    s_mov_b32 exec_hi, 0x00010001
    global_store_dword v131, v8, {P_WS}
    s_mov_b64 exec, -1
    """)
    a.label("EP_NOX")
    a.reset()
    a(f"""
    s_lshr_b32 s50, s8, 8
    s_lshr_b32 s51, s9, 8
    s_cmp_eq_u32 s50, s14
    s_cselect_b32 s52, 1, 0
    s_cmp_eq_u32 s51, s14
    s_cselect_b32 s53, 1, 0
    s_or_b32 s54, s52, s53
    s_cmp_eq_u32 s54, 0
    s_cbranch_scc1 EP_NOSEL
    s_lshl_b32 s55, s4, 4
    s_add_u32 s55, s55, {WS_TG}
    v_mov_b32 v74, 0
    v_mov_b32 v75, s10
    """)
    for r in range(4):
        a(f"""
        v_add_u32 v7, {r}, v4
        v_cmp_eq_u32 s[50:51], s8, v7
        v_cmp_eq_u32 s[52:53], s9, v7
        v_mov_b32 v72, v{56+r}
        v_mov_b32 v73, v{XN+r}
        v_mov_b32 v76, s55
        v_mov_b32 v77, 0x1000
        s_or_b64 s[56:57], s[50:51], s[52:53]
        v_cndmask_b32 v77, 0, v77, s[52:53]
        v_add_u32 v76, v76, v77
        s_mov_b64 exec, s[56:57]
        s_cbranch_execz EPN_{r}
        global_store_dwordx4 v76, v[72:75], {P_WS} sc0 sc1
        """)
        a.label(f"EPN_{r}")
        a.reset()
        a("s_mov_b64 exec, -1\ns_nop 1")
    a.label("EP_NOSEL")
    a.reset()
    stamp(a, 13)
    a(f"""
    s_cmp_lg_u32 s12, 0
    s_cbranch_scc1 EP_SCAT
    """)
    lds_wait_flag(a, "C", 48 + 28, 4, 10, 11)
    a("s_mov_b32 s62, 0")
    a.label("EP_POLL")
    a.reset()
    a(f"""
    global_load_dwordx4 v[8:11], v132, {P_WS} sc1
    global_load_dword v12, v133, {P_WS} sc1
    s_mov_b64 exec, -1
    s_waitcnt vmcnt(0)
    """)
    piece_hash(a, [13], [8], 82, 14)
    a(f"""
    v_add_u32 v13, s10, v13
    v_cmp_ne_u32 vcc, v13, v12
    s_cbranch_vccz EP_GOT
    s_add_u32 s62, s62, 1
    s_mov_b64 exec, vcc
    s_cmp_lt_u32 s62, {SPIN_MAX}
    s_cbranch_scc1 EP_POLL
    s_mov_b64 exec, -1
    """)
    a.label("EP_GOT")
    a.reset()
    stamp(a, 14)
    for r in range(4):
        a(f"ds_write_b32 v134, v{8+r} offset:{33*4*r}")
    lbar(a, 1, 14, 15)
    a(f"""
    v_add_u32 v135, {T_OFF}, v135
    ds_read2_b32 v[8:9], v135 offset0:0 offset1:1
    ds_read2_b32 v[10:11], v135 offset0:2 offset1:3
    v_cmp_ne_u32 vcc, s8, v137
    v_cmp_ne_u32 s[50:51], s9, v137
    s_and_b64 exec, vcc, s[50:51]
    s_waitcnt lgkmcnt(0)
    global_store_dwordx4 v136, v[8:11], {P_OUT} sc0 sc1
    s_mov_b64 exec, -1
    s_branch EP_DONE
    """)
    a.label("EP_SCAT")
    a.reset()
    for r in range(4):
        a(f"""
        v_add_u32 v7, {r}, v4
        v_cmp_ne_u32 vcc, s8, v7
        v_cmp_ne_u32 s[50:51], s9, v7
        s_and_b64 exec, vcc, s[50:51]
        global_store_dword v3, v{68+r}, {P_OUT} offset:{1024*r}
        s_mov_b64 exec, -1
        """)
    a.label("EP_DONE")
    a.reset()


L_RB = L_MP
L_IDX = L_MISC + 88


def gen(a):
    K = NAME + "_kernel"
    a.raw(".globl " + K)
    a.raw(".p2align 8")
    a.raw(f".type {K},@function")
    a.label(K)
    a.reset()
    a(f"""
    s_cmp_ge_u32 s2, 256
    s_cbranch_scc1 L_END
    s_getpc_b64 s[100:101]
    """)
    stamp_init(a)
    a(f"""
    v_lshrrev_b32 v2, 6, v0
    v_and_b32 v1, 63, v0
    v_readfirstlane_b32 s3, v2
    s_cmp_lg_u32 s3, 11
    s_cbranch_scc1 L_NOPF
    v_lshlrev_b32 v12, 7, v1
    global_load_dword v14, v12, s[100:101]
    v_add_u32 v12, 0x2000, v12
    v_min_u32 v17, {CODE_SPAN[0]}, v12
    global_load_dword v15, v17, s[100:101]
    v_add_u32 v12, 0x2000, v12
    v_min_u32 v12, {CODE_SPAN[0]}, v12
    global_load_dword v16, v12, s[100:101]
    v_mov_b32 v8, 0
    v_mov_b32 v9, 0
    v_mov_b32 v10, 0
    v_mov_b32 v11, 0
    v_mov_b32 v13, {L_FLAG}
    ds_write_b128 v13, v[8:11]
    ds_write_b128 v13, v[8:11] offset:16
    ds_write_b128 v13, v[8:11] offset:32
    ds_write_b128 v13, v[8:11] offset:48
    ds_write_b128 v13, v[8:11] offset:64
    s_waitcnt lgkmcnt(0)
    """)
    a.label("L_NOPF")
    a.reset()
    a(f"""
    s_load_dwordx16 s[16:31], s[0:1], 0
    s_load_dwordx16 s[32:47], s[0:1], 64
    s_load_dwordx2 s[48:49], s[0:1], 128
    s_getreg_b32 s99, hwreg(HW_REG_XCC_ID)
    s_and_b32 s5, s2, 7
    s_lshr_b32 s6, s2, 3
    s_lshl_b32 s4, s5, 5
    s_add_u32 s4, s4, s6
    s_lshl_b32 s11, s4, 2
    s_bfe_u32 s7, s3, 0x10001
    s_and_b32 s13, s3, 1
    s_lshl_b32 s8, s4, 1
    s_add_u32 s8, s8, s7
    s_lshl_b32 s9, s8, 8
    v_lshlrev_b32 v5, 2, v1
    v_add_u32 v5, s9, v5
    s_and_b32 s99, s99, 15
    s_barrier
    s_cmp_ge_u32 s3, 8
    s_cbranch_scc1 L_MW
    s_cmp_ge_u32 s3, 4
    s_cbranch_scc1 L_BW
    """)
    a(f"""
    s_setprio 3
    v_and_b32 v6, 31, v1
    v_lshlrev_b32 v6, 4, v6
    v_lshrrev_b32 v7, 5, v1
    s_lshl_b32 s12, s2, 3
    s_lshl_b32 s14, s3, 1
    s_add_u32 s12, s12, s14
    v_add_u32 v7, s12, v7
    v_lshl_add_u32 v7, v7, 10, v6
    v_lshrrev_b32 v76, 7, v7
    v_and_b32 v76, 0xfffffff8, v76
    v_mov_b32 v82, 0
    v_mov_b32 v83, 0
    v_mov_b32 v84, 0
    v_mov_b32 v78, 0
    s_waitcnt lgkmcnt(0)
    global_load_dwordx4 v[8:11], v7, {P_X}
    global_load_dwordx4 v[12:15], v7, {P_X} offset:512
    global_load_dwordx4 v[16:19], v6, {P_WR}
    global_load_dwordx4 v[20:23], v6, {P_WR} offset:512
    s_load_dword s10, {P_WS}, {WS_W0}
    s_load_dword s15, {P_DSK}, s11
    s_branch L_PRE
    """)
    a.label("L_MW")
    a.reset()
    a(f"""
    s_setprio 3
    s_lshl_b32 s14, s4, 7
    s_add_u32 s14, s14, {WS_C2}
    v_mov_b32 v79, s14
    s_waitcnt lgkmcnt(0)
    global_load_dword v100, v5, {P_ARE}
    global_load_dword v101, v5, {P_AIM}
    global_load_dword v102, v5, {P_BRE}
    global_load_dword v103, v5, {P_BIM}
    global_load_dword v104, v5, {P_CRE}
    global_load_dword v105, v5, {P_CIM}
    global_load_dword v110, v79, {P_WS} sc1
    s_load_dword s56, {P_LDT}, s11
    """)
    stamp(a, 14)
    a("s_setprio 0\ns_branch L_MOE")
    a.label("L_BW")
    a.reset()
    a(f"""
    v_and_b32 v76, 15, v1
    v_lshrrev_b32 v77, 4, v1
    s_and_b32 s12, s3, 3
    s_lshl_b32 s14, s6, 16
    s_lshl_b32 s15, s5, 7
    s_add_u32 s14, s14, s15
    s_lshl_b32 s15, s12, 5
    s_add_u32 s14, s14, s15
    v_lshrrev_b32 v78, 2, v1
    v_lshlrev_b32 v78, 12, v78
    v_and_b32 v79, 3, v1
    v_lshl_add_u32 v78, v79, 3, v78
    v_add_u32 v78, s14, v78
    v_lshl_add_u32 v79, v76, 2, v77
    v_lshlrev_b32 v79, 2, v79
    s_lshl_b32 s14, s5, 18
    s_lshl_b32 s50, s6, 8
    s_add_u32 s14, s14, s50
    s_lshl_b32 s50, s12, 16
    s_add_u32 s14, s14, s50
    s_add_u32 s14, s14, {WS_XC}
    v_lshlrev_b32 v82, 14, v77
    v_lshl_add_u32 v82, v76, 4, v82
    v_add_u32 v82, s14, v82
    v_add_u32 v83, 0x2000, v82
    s_lshl_b32 s14, s4, 7
    s_lshl_b32 s50, s12, 5
    s_add_u32 s14, s14, s50
    s_add_u32 s14, s14, {WS_FL}
    v_lshl_add_u32 v84, v77, 3, s14
    s_waitcnt lgkmcnt(0)
    global_load_dword v80, v5, {P_ARE}
    global_load_dword v81, v5, {P_AIM}
    s_load_dword s15, {P_DSK}, s11
    s_load_dword s56, {P_LDT}, s11
    v_mov_b32 v8, 0
    v_mov_b32 v9, 0
    v_mov_b32 v10, 0
    v_mov_b32 v11, 0
    v_lshrrev_b32 v12, 5, v1
    v_mul_u32_u24 v12, {K_CH}, v12
    v_and_b32 v13, 31, v1
    v_lshl_add_u32 v12, v13, 4, v12
    v_add_u32 v12, {L_K+4096}, v12
    ds_write_b128 v12, v[8:11]
    """)
    a.label("L_PRE")
    a.reset()
    a(f"""
    v_add_u32 v4, 256, v0
    v_and_b32 v4, 511, v4
    v_lshlrev_b32 v4, 2, v4
    v_lshlrev_b32 v3, 10, v4
    v_add_u32 v3, s11, v3
    v_lshlrev_b32 v115, 3, v4
    v_lshlrev_b32 v128, 1, v4
    v_add_u32 v128, 32, v128
    s_lshl_b32 s50, s5, 12
    s_lshl_b32 s51, s6, 2
    s_add_u32 s50, s50, s51
    s_add_u32 s50, s50, {WS_FL}
    v_lshrrev_b32 v124, 6, v4
    v_lshl_add_u32 v124, v124, 7, s50
    s_lshl_b32 s50, s4, 13
    s_add_u32 s50, s50, {WS_XC}
    v_lshl_add_u32 v126, v4, 2, s50
    v_and_b32 v24, 15, v1
    v_lshl_add_u32 v127, v24, 1, 1
    v_lshrrev_b32 v114, 8, v0
    v_mul_u32_u24 v114, {K_CH}, v114
    v_and_b32 v25, 0xff, v0
    v_lshl_add_u32 v114, v25, 4, v114
    v_add_u32 v114, {L_K}, v114
    s_lshr_b32 s57, s3, 2
    s_mul_i32 s61, s57, {AB_CH}
    v_mul_u32_u24 v26, {ROW}, v24
    v_lshrrev_b32 v25, 4, v1
    v_lshl_add_u32 v26, v25, 4, v26
    s_mul_i32 s60, s7, {16*ROW}
    s_add_u32 s60, s60, s61
    s_mul_i32 s62, s13, {16*ROW}
    s_add_u32 s62, s62, s61
    s_add_u32 s62, s62, {A_SZ}
    v_add_u32 v108, s60, v26
    v_add_u32 v109, s62, v26
    s_lshl_b32 s58, s13, 4
    v_add_u32 v24, s58, v24
    s_mul_i32 s60, s57, 1536
    s_add_u32 s60, s60, {L_TAB}
    v_cmp_eq_u32 s[50:51], 1, v25
    v_cmp_eq_u32 s[52:53], 2, v25
    v_cmp_eq_u32 s[54:55], 3, v25
    v_cmp_eq_u32 vcc, 0, v25
    v_cmp_eq_u32 s[58:59], 16, v1
    s_cmp_eq_u32 s7, 0
    s_cbranch_scc0 L_TA1
    v_mov_b32 v26, 3
    v_cndmask_b32 v26, v26, 2, s[52:53]
    v_cndmask_b32 v26, v26, 1, s[54:55]
    v_lshlrev_b32 v26, v26, v24
    """)
    for r in range(4):
        b0, b1, b2, b3 = r, 4 + r, 256 + r, 384 + (r & 1) + 64 * (r >> 1)
        a(f"""
        v_mov_b32 v27, {b0}
        v_cndmask_b32 v27, v27, {b1}, s[50:51]
        v_mov_b32 v28, {b2}
        v_cndmask_b32 v27, v27, v28, s[52:53]
        v_mov_b32 v28, {b3}
        v_cndmask_b32 v27, v27, v28, s[54:55]
        v_add_u32 v27, v27, v26
        v_lshl_add_u32 v{110+r}, v27, 1, s60
        """)
    a("s_branch L_TAD")
    a.label("L_TA1")
    a.reset()
    for r in range(4):
        a(f"""
        v_mov_b32 v27, 700
        v_add_u32 v28, {512+32*r}, v24
        v_cndmask_b32 v27, v27, v28, vcc
        """)
        if r == 0:
            a(f"""
            s_cmp_eq_u32 s13, 0
            s_cselect_b64 s[50:51], s[58:59], 0
            v_mov_b32 v28, 640
            v_cndmask_b32 v27, v27, v28, s[50:51]
            """)
        a(f"v_lshl_add_u32 v{110+r}, v27, 1, s60")
    a.label("L_TAD")
    a.reset()
    a(f"""
    v_and_b32 v30, 0xff, v0
    v_lshlrev_b32 v30, 3, v30
    v_sub_u32 v30, 0x7ff, v30
    v_lshrrev_b32 v31, 8, v0
    v_mul_u32_u24 v31, 1536, v31
    v_add_u32 v31, {L_TAB}, v31
    s_movk_i32 s57, 128
    """)
    for e in range(0, 8, 2):
        a(f"""
        v_subrev_u32 v24, {e}, v30
        v_subrev_u32 v25, {e+1}, v30
        v_cvt_f32_u32 v26, v24
        v_cvt_f32_u32 v27, v25
        v_cvt_pk_bf16_f32 v26, v26, v27
        v_and_b32 v28, 0xffff, v26
        v_lshrrev_b32 v29, 16, v26
        v_subrev_u32 v28, {0x4300-128}, v28
        v_subrev_u32 v29, {0x4300-128}, v29
        v_med3_i32 v28, v28, v24, s57
        v_med3_i32 v29, v29, v25, s57
        v_lshl_add_u32 v{100+e}, v28, 1, v31
        v_lshl_add_u32 v{101+e}, v29, 1, v31
        """)
    epi_addr(a)
    stamp(a, 1)
    a(f"""
    s_cmp_ge_u32 s3, 4
    s_cbranch_scc1 L_BTASK
    s_mov_b32 s50, 0
    s_mov_b32 s51, -1
    s_mov_b32 s55, 0xffff
    v_mov_b32 v28, 0x3b000000
    v_mov_b32 v24, {L_NONCE}
    v_mov_b32 v26, {L_FLAG+4}
    v_mov_b32 v27, 1
    s_waitcnt lgkmcnt(0)
    s_add_u32 s10, s10, 0x9e3779b1
    s_andn2_b32 s10, s10, 15
    s_or_b32 s54, s10, s99
    v_mov_b32 v25, s10
    v_mov_b32 v79, s54
    s_mov_b64 exec, 1
    ds_write_b32 v24, v25
    ds_add_u32 v26, v27
    s_mov_b64 exec, -1
    s_waitcnt vmcnt(2)
    """)
    stamp(a, 2)
    for k in range(8):
        unpack(a, 32 + 2 * k, 33 + 2 * k, 8 + k)
    a(f"""
    v_readlane_b32 s52, v32, 0
    v_readlane_b32 s53, v32, 32
    v_pk_add_f32 v[64:65], v[32:33], v[34:35]
    v_pk_add_f32 v[66:67], v[36:37], v[38:39]
    v_mov_b32 v24, s52
    v_mov_b32 v25, s53
    v_pk_add_f32 v[68:69], v[40:41], v[42:43]
    v_cndmask_b32 v24, v24, v25, s[50:51]
    v_pk_add_f32 v[70:71], v[44:45], v[46:47]
    v_mov_b32 v25, v24
    v_pk_add_f32 v[64:65], v[64:65], v[66:67]
    v_pk_add_f32 v[68:69], v[68:69], v[70:71]
    """)
    for k in range(8):
        a(f"v_pk_add_f32 v[{48+2*k}:{49+2*k}], v[{32+2*k}:{33+2*k}], v[24:25] neg_lo:[0,1] neg_hi:[0,1]")
    a(f"""
    v_pk_add_f32 v[64:65], v[64:65], v[68:69]
    v_pk_mul_f32 v[72:73], v[48:49], v[48:49]
    v_pk_mul_f32 v[74:75], v[50:51], v[50:51]
    v_add_f32 v64, v64, v65
    v_pk_fma_f32 v[72:73], v[52:53], v[52:53], v[72:73]
    v_pk_fma_f32 v[74:75], v[54:55], v[54:55], v[74:75]
    v_pk_fma_f32 v[72:73], v[56:57], v[56:57], v[72:73]
    v_pk_fma_f32 v[74:75], v[58:59], v[58:59], v[74:75]
    v_pk_fma_f32 v[72:73], v[60:61], v[60:61], v[72:73]
    v_pk_fma_f32 v[74:75], v[62:63], v[62:63], v[74:75]
    v_pk_add_f32 v[72:73], v[72:73], v[74:75]
    v_add_f32 v72, v72, v73
    """)
    half_reduce_add(a, [64, 72], [65, 73])
    a(f"""
    v_mul_f32 v64, v64, v28
    v_mul_f32 v72, v72, v28
    v_sub_f32 v65, v64, v24
    v_fma_f32 v72, -v65, v65, v72
    v_max_f32 v72, 0, v72
    v_cvt_pk_bf16_f32 v64, v64, v72
    v_and_b32 v72, 0xffff0000, v64
    v_lshlrev_b32 v66, 16, v64
    v_add_f32 v72, 0x3727c5ac, v72
    v_mov_b32 v67, v66
    v_cvt_pk_bf16_f32 v72, v72, v72
    v_lshlrev_b32 v72, 16, v72
    v_sqrt_f32 v72, v72
    """)
    for k in range(8):
        a(f"v_pk_add_f32 v[{48+2*k}:{49+2*k}], v[{32+2*k}:{33+2*k}], v[66:67] neg_lo:[0,1] neg_hi:[0,1]")
    a(f"""
    v_cvt_pk_bf16_f32 v72, v72, v72
    v_lshlrev_b32 v72, 16, v72
    v_rcp_f32 v68, v72
    v_and_or_b32 v78, v64, s55, v72
    s_mov_b32 exec_lo, 1
    s_mov_b32 exec_hi, 1
    global_store_dwordx2 v76, v[78:79], {P_WS} sc0 sc1
    s_mov_b64 exec, -1
    s_setprio 1
    """)
    stamp(a, 3)
    for k in range(8):
        a(f"v_cvt_pk_bf16_f32 v{8+k}, v{48+2*k}, v{49+2*k}")
    a("v_mov_b32 v69, v68")
    for k in range(8):
        unpack(a, 48 + 2 * k, 49 + 2 * k, 8 + k)
    for k in range(8):
        a(f"v_pk_mul_f32 v[{48+2*k}:{49+2*k}], v[{48+2*k}:{49+2*k}], v[68:69]")
    for k in range(8):
        a(f"v_cvt_pk_bf16_f32 v{8+k}, v{48+2*k}, v{49+2*k}")
    a("s_waitcnt vmcnt(1)")
    for k in range(4):
        a(f"v_mov_b32 v{70+k}, 0")
    for k in range(8):
        a(f"v_dot2c_f32_bf16 v{70+(k&3)}, v{8+k}, v{16+k}")
    a(f"""
    s_lshl_b32 s12, s12, 2
    s_add_u32 s12, s12, {WS_RG}
    v_add_f32 v70, v70, v71
    v_add_f32 v72, v72, v73
    v_add_f32 v70, v70, v72
    """)
    half_reduce_add(a, [70], [71])
    a(f"""
    v_cvt_pk_bf16_f32 v70, v70, v70
    v_ashrrev_i32 v72, 31, v70
    v_or_b32 v72, 0x80008000, v72
    v_xor_b32 v70, v70, v72
    v_mov_b32 v71, s12
    v_mov_b32 v67, s10
    v_readlane_b32 s53, v70, 32
    v_and_b32 v66, 0xffff, v70
    s_and_b32 s53, s53, 0xffff0000
    v_or_b32 v66, s53, v66
    s_mov_b64 exec, 1
    global_store_dwordx2 v71, v[66:67], {P_WS} sc0 sc1
    s_mov_b64 exec, -1
    s_setprio 0
    s_branch L_COMMON
    """)

    def kgen_common(pa, pb):
        a(f"""
        s_lshl_b32 s57, s7, 4
        s_lshr_b32 s56, s56, s57
        s_lshl_b32 s56, s56, 16
        v_mov_b32 v24, {LOG2E}
        v_mul_f32 v24, s56, v24
        v_exp_f32 v24, v24
        s_lshl_b32 s58, s13, 4
        s_sub_u32 s59, 16, s58
        s_lshl_b32 s60, s13, 8
        s_mul_i32 s61, s7, {AB_CH}
        s_add_u32 s60, s60, s61
        v_lshlrev_b32 v28, 2, v1
        v_add_u32 v28, s60, v28
        v_cvt_pk_bf16_f32 v24, v24, v24
        v_lshlrev_b32 v24, 16, v24
        """)

    def kgen_ab(pa, pb):
        a(f"""
        v_lshrrev_b32 v26, s58, v{pa}
        v_lshrrev_b32 v27, s58, v{pb}
        v_lshlrev_b32 v26, 16, v26
        v_lshlrev_b32 v27, 16, v27
        v_mul_f32 v26, v24, v26
        v_mul_f32 v27, v24, v27
        v_mul_f32 v26, {LOG2E}, v26
        v_mul_f32 v27, 0.15915494, v27
        """)
    cnt = [0]
    a.label("L_BTASK")
    a.reset()
    a(f"""
    global_load_dwordx2 v[60:61], v78, {P_X}
    global_load_dwordx2 v[62:63], v78, {P_X} offset:1024
    global_load_dwordx2 v[64:65], v78, {P_X} offset:2048
    global_load_dwordx2 v[66:67], v78, {P_X} offset:3072
    global_load_dwordx4 v[68:71], v82, {P_WS} sc1
    global_load_dwordx4 v[72:75], v83, {P_WS} sc1
    global_load_dword v85, v84, {P_WS} sc1
    s_waitcnt lgkmcnt(0)
    """)
    kgen_common(80, 81)
    a("s_waitcnt vmcnt(7)")
    stamp(a, 2)
    kgen_ab(80, 81)

    def putB(j, reg):
        t = 92 + (cnt[0] % 6)
        cnt[0] += 1
        a(f"v_cvt_pk_f16_f32 v{t}, v{reg}, v{reg+1}")
        a(f"ds_write_b32 v28, v{t} offset:{A_SZ + j*ROW}")

    anchor(a, 42, 26, 27, "0x41000000", 46, 47)
    a(f"""
    v_mov_b32 v92, 0x3c00
    ds_write_b32 v28, v92 offset:{A_SZ}
    """)
    cnt[0] = 1
    cmul(a, 44, 42, 42, 44)
    putB(1, 42)
    prev = 44
    putB(2, 44)
    for k in range(1, 16):
        nxt = 48 + 2 * (k % 2)
        o = 52 + 2 * (k % 2)
        if k < 15:
            cmul(a, nxt, prev, 44, nxt)
        cmul(a, o, prev, 42, o)
        if k < 15:
            putB(2 * (k + 1), nxt)
        putB(2 * k + 1, o)
        prev = nxt
    a(f"""
    s_setprio 2
    s_waitcnt vmcnt(0)
    """)
    for k in range(2):
        for r in range(4):
            a(f"ds_bpermute_b32 v{68+4*k+r}, v79, v{60+2*r+k}")
    a(f"""
    s_waitcnt lgkmcnt(4)
    global_store_dwordx4 v82, v[68:71], {P_WS}
    s_waitcnt lgkmcnt(0)
    global_store_dwordx4 v83, v[72:75], {P_WS}
    """)
    piece_hash(a, [12, 13], [68, 72], 127, 14)
    lds_wait_flag(a, "N", 4, 1, 14, 15, sleep=False)
    a(f"""
    v_mov_b32 v14, {L_NONCE}
    ds_read_b32 v14, v14
    s_waitcnt lgkmcnt(0)
    v_add_u32 v12, v14, v12
    v_add_u32 v13, v14, v13
    s_mov_b32 exec_lo, 0x00010001
    s_mov_b32 exec_hi, 0x00010001
    global_store_dwordx2 v84, v[12:13], {P_WS}
    s_mov_b64 exec, -1
    s_setprio 0
    """)
    stamp(a, 3)
    a.label("L_COMMON")
    a.reset()
    stamp(a, 4)
    a("v_mov_b32 v96, 0\nv_mov_b32 v97, 0\nv_mov_b32 v98, 0\nv_mov_b32 v99, 0")
    a("s_waitcnt lgkmcnt(0)\ns_barrier")
    stamp(a, 5)
    PP = int(os.environ.get("POLLPOS", "2"))
    POLLS = f"""
    global_load_dword v125, v124, {P_WS} sc1
    global_load_dwordx4 v[{XG}:{XG+3}], v126, {P_WS} sc1
    global_load_dwordx4 v[116:119], v115, {P_WS} sc0 sc1
    global_load_dwordx4 v[120:123], v115, {P_WS} offset:16 sc0 sc1
    """
    for s in range(8):
        a(f"ds_read_b128 v[{32+8*s}:{35+8*s}], v108 offset:{64*s}")
        a(f"ds_read_b128 v[{36+8*s}:{39+8*s}], v109 offset:{64*s}")
    if PP == 0:
        a(POLLS)
    for s in range(8):
        a(f"s_waitcnt lgkmcnt({14-2*s})")
        a(f"v_mfma_f32_16x16x32_f16 v[96:99], v[{32+8*s}:{35+8*s}], v[{36+8*s}:{39+8*s}], v[96:99]")
    for r in range(4):
        a(f"v_ldexp_f32 v{32+r}, v{96+r}, -8")
    for r in range(4):
        a(f"v_cvt_f16_f32 v{32+r}, v{32+r}")
    for r in range(4):
        a(f"ds_write_b16 v{110+r}, v{32+r}")
    if PP == 1:
        a(POLLS)
    stamp(a, 6)
    a("s_waitcnt lgkmcnt(0)\ns_barrier")
    for e in range(0, 8, 2):
        a(f"ds_read_u16_d16 v{32+e//2}, v{100+e}")
        a(f"ds_read_u16_d16_hi v{36+e//2}, v{101+e}")
    a(f"""
    v_mov_b32 v40, {L_NONCE}
    ds_read_b32 v40, v40
    s_waitcnt lgkmcnt(0)
    v_readfirstlane_b32 s10, v40
    v_or_b32 v32, v32, v36
    v_or_b32 v33, v33, v37
    v_or_b32 v34, v34, v38
    v_or_b32 v35, v35, v39
    ds_write_b128 v114, v[32:35]
    """)
    if PP == 2:
        if int(os.environ.get("PSLEEP", "0")):
            a("s_sleep %d" % int(os.environ["PSLEEP"]))
        a(POLLS)
    a(f"""
    s_mov_b32 s62, 0
    s_cmp_eq_u32 s3, 5
    s_cbranch_scc0 L_NOPAD
    v_mov_b32 v32, 0
    v_mov_b32 v33, 0
    v_mov_b32 v34, 0
    v_mov_b32 v35, 0
    v_bfe_u32 v36, v1, 1, 3
    v_mul_u32_u24 v36, {UCOPY}, v36
    v_and_b32 v37, 1, v1
    v_lshl_add_u32 v36, v37, 4, v36
    s_mov_b64 exec, 0xffff
    ds_write_b128 v36, v[32:35]
    s_mov_b64 exec, -1
    """)
    a.label("L_NOPAD")
    a.reset()
    stamp(a, 7)
    if STAMP:
        a("s_mov_b64 s[96:97], 0")
    a(f"""
    s_mov_b64 s[56:57], 0
    v_lshrrev_b32 v37, 6, v4
    v_lshlrev_b32 v37, 9, v37
    s_lshl_b32 s50, s5, 6
    v_add_u32 v37, s50, v37
    s_or_b32 s54, s10, s99
    """)
    a.label("L_GPOLL")
    a.reset()
    a("s_waitcnt vmcnt(0)")
    piece_hash(a, [32], [XG], 127, 33)
    a(f"""
    v_add_u32 v32, s10, v32
    v_cmp_ne_u32 vcc, v32, v125
    v_xor_b32 v33, s10, v117
    v_xor_b32 v34, s10, v119
    v_xor_b32 v35, s10, v121
    v_xor_b32 v36, s10, v123
    v_or3_b32 v34, v33, v34, v35
    v_or_b32 v34, v34, v36
    v_cmp_lt_u32 s[50:51], 15, v34
    s_andn2_b64 vcc, vcc, s[56:57]
    s_or_b64 s[52:53], vcc, s[50:51]
    s_cbranch_scc0 L_GOK
    s_add_u32 s62, s62, 1
    s_cmp_ge_u32 s62, {SPIN_MAX}
    s_cbranch_scc1 L_GOK
    """)
    if STAMP:
        a("""
        s_cmp_lg_u64 vcc, 0
        s_addc_u32 s96, s96, 0
        s_cmp_lg_u64 s[50:51], 0
        s_addc_u32 s97, s97, 0
        """)
    a(f"""
    s_mov_b64 exec, vcc
    s_cbranch_execz L_GP2
    s_cmp_lt_u32 s62, 4
    s_cbranch_scc1 L_GP1
    global_load_dword v38, v37, {P_WS} offset:4 sc0 sc1
    s_waitcnt vmcnt(0)
    v_xor_b32 v38, s54, v38
    v_cmp_ne_u32 s[52:53], 0, v38
    v_cmp_gt_u32 s[58:59], 16, v38
    s_and_b64 s[52:53], s[52:53], s[58:59]
    s_or_b64 s[56:57], s[56:57], s[52:53]
    s_mov_b64 exec, s[52:53]
    s_cbranch_execz L_GP0
    global_load_dword v{XG}, v3, {P_X}
    global_load_dword v{XG+1}, v3, {P_X} offset:1024
    global_load_dword v{XG+2}, v3, {P_X} offset:2048
    global_load_dword v{XG+3}, v3, {P_X} offset:3072
    """)
    a.label("L_GP0")
    a.reset()
    a(f"""
    s_andn2_b64 exec, vcc, s[52:53]
    s_cbranch_execz L_GP2
    """)
    a.label("L_GP1")
    a.reset()
    a(f"""
    global_load_dword v125, v124, {P_WS} sc1
    global_load_dwordx4 v[{XG}:{XG+3}], v126, {P_WS} sc1
    """)
    a.label("L_GP2")
    a.reset()
    a(f"""
    s_mov_b64 exec, s[50:51]
    s_cbranch_execz L_GP3
    s_sleep 3
    global_load_dwordx4 v[116:119], v115, {P_WS} sc0 sc1
    global_load_dwordx4 v[120:123], v115, {P_WS} offset:16 sc0 sc1
    """)
    a.label("L_GP3")
    a.reset()
    a(f"""
    s_mov_b64 exec, -1
    s_branch L_GPOLL
    """)
    a.label("L_GOK")
    a.reset()
    stamp(a, 8)
    if STAMP:
        a("s_waitcnt lgkmcnt(0)\ns_mov_b64 s[74:75], s[96:97]")
    lds_signal(a, 28, 34, 35)
    a(f"""
    v_bfe_u32 v35, v4, 3, 3
    v_and_b32 v36, 15, v119
    v_cmp_eq_u32 vcc, s5, v35
    v_cmp_ne_u32 s[50:51], s99, v36
    s_and_b64 vcc, vcc, s[50:51]
    s_cbranch_vccz L_UNI
    """)
    lds_signal(a, 32, 34, 35)
    a.label("L_UNI")
    a.reset()
    st = [116, 118, 120, 122]
    for r in range(4):
        a(f"v_and_b32 v{40+r}, 0xffff0000, v{st[r]}")
    for r in range(4):
        a(f"v_rcp_f32 v{40+r}, v{40+r}")
    for r in range(4):
        a(f"v_lshlrev_b32 v{44+r}, 16, v{st[r]}")
    for r in range(4):
        unpack(a, 48 + 2 * r, 49 + 2 * r, XG + r)
    for r in range(4):
        a(f"v_sub_f32 v{48+2*r}, v{48+2*r}, v{44+r}")
        a(f"v_sub_f32 v{49+2*r}, v{49+2*r}, v{44+r}")
    for r in range(4):
        a(f"v_mul_f32 v{40+r}, 0x45000000, v{40+r}")
    for r in range(4):
        a(f"v_cvt_pk_bf16_f32 v{56+r}, v{48+2*r}, v{49+2*r}")
    for r in range(4):
        unpack(a, 48 + 2 * r, 49 + 2 * r, 56 + r)
    for r in range(4):
        a(f"v_mul_f32 v{48+2*r}, v{48+2*r}, v{40+r}")
        a(f"v_mul_f32 v{49+2*r}, v{49+2*r}, v{40+r}")
    for r in range(4):
        a(f"v_cvt_pk_bf16_f32 v{XN+r}, v{48+2*r}, v{49+2*r}")
    for r in range(4):
        unpack(a, 48 + 2 * r, 49 + 2 * r, XN + r)
    a(f"""
    v_cvt_pk_f16_f32 v60, v48, v50
    v_cvt_pk_f16_f32 v61, v52, v54
    v_cvt_pk_f16_f32 v62, v49, v51
    v_cvt_pk_f16_f32 v63, v53, v55
    ds_write_b64 v128, v[60:61]
    ds_write_b64 v128, v[62:63] offset:{U_CH}
    v_subrev_u32 v9, 8, v128
    """)
    stamp(a, 9)
    a("s_waitcnt lgkmcnt(0)\ns_barrier")
    a(f"""
    ds_read_b64 v[64:65], v9
    ds_read_b64 v[66:67], v9 offset:{U_CH}
    """)
    for c in range(2):
        W0, W1, P0, P1 = 60 + 2 * c, 61 + 2 * c, 64 + 2 * c, 65 + 2 * c
        t = 68 + 8 * c
        a(f"""
        v_alignbyte_b32 v{t+1}, v{W1}, v{W0}, 2
        v_mov_b32 v{t+3}, v{W0}
        """)
    for c in range(2):
        W0, W1, P0, P1 = 60 + 2 * c, 61 + 2 * c, 64 + 2 * c, 65 + 2 * c
        t = 68 + 8 * c
        a(f"s_waitcnt lgkmcnt({1 if c == 0 else 3})")
        a(f"""
        v_alignbyte_b32 v{t}, v{W0}, v{P1}, 2
        v_mov_b32 v{t+2}, v{P1}
        v_alignbyte_b32 v{t+4}, v{P1}, v{P0}, 2
        v_alignbyte_b32 v{t+5}, v{W0}, v{P1}, 2
        ds_write_b64 v128, v[{t}:{t+1}] offset:{c*U_CH+UCOPY}
        ds_write_b64 v128, v[{t+2}:{t+3}] offset:{c*U_CH+2*UCOPY}
        ds_write_b64 v128, v[{t+4}:{t+5}] offset:{c*U_CH+3*UCOPY}
        """)
    a(f"""
    s_lshl_b32 s50, s15, 16
    s_and_b32 s51, s15, 0xffff0000
    v_mov_b32 v156, 0x3a000000
    v_mul_f32 v157, s51, v156
    v_mul_f32 v156, s50, v156
    s_cmp_ge_u32 s3, 4
    s_cbranch_scc1 L_AUX
    """)
    a(f"""
    s_setprio 2
    v_and_b32 v8, 15, v1
    v_lshrrev_b32 v9, 4, v1
    v_sub_u32 v10, 15, v8
    v_and_b32 v11, 3, v10
    v_lshrrev_b32 v10, 2, v10
    v_mul_u32_u24 v12, {UCOPY}, v11
    v_lshlrev_b32 v11, 1, v9
    v_sub_u32 v11, v11, v10
    v_add_u32 v11, 4, v11
    v_lshl_add_u32 v12, v11, 3, v12
    s_mul_i32 s12, s7, {U_CH}
    s_lshl_b32 s14, s13, 8
    s_add_u32 s12, s12, s14
    v_add_u32 v12, s12, v12
    v_lshlrev_b32 v13, 4, v9
    v_lshlrev_b32 v11, 5, v8
    v_sub_u32 v13, v13, v11
    s_mul_i32 s12, s7, {K_CH}
    s_add_u32 s12, s12, s14
    s_add_u32 s12, s12, {L_K+480}
    v_add_u32 v13, s12, v13
    v_lshl_add_u32 v14, v8, 2, v9
    v_bfe_u32 v11, v14, 3, 2
    v_xor_b32 v14, v14, v11
    s_lshl_b32 s12, s3, 10
    s_add_u32 s12, s12, {L_PA}
    v_lshl_add_u32 v14, v14, 4, s12
    """)
    ACC = 96
    for i in range(32):
        a(f"v_mov_b32 v{ACC+i}, 0")
    a(f"""
    v_mov_b32 v10, {L_FLAG+48}
    v_mov_b32 v11, 1
    """)
    stamp(a, 10)
    a("s_waitcnt lgkmcnt(0)\ns_barrier")
    stamp(a, 11)
    conv_loop(a, ACC, 16, 20, epi_data())
    stamp(a, 1)
    a(f"""
    s_setprio 0
    s_add_u32 s14, s3, 4
    s_branch L_EPI
    """)
    a.label("L_AUX")
    a.reset()
    stamp(a, 10)
    a("s_waitcnt lgkmcnt(0)\ns_barrier")
    for f in epi_data():
        a(f)
    a("s_sub_u32 s14, s3, 4")
    lds_wait_flag(a, "T0", 48, 1, 10, 11, sleep=4)
    a(f"""
    s_lshl_b32 s13, s14, 2
    s_add_u32 s13, s13, {L_FLAG+48}
    """)
    lds_wait_flag(a, "T1", None, 4, 10, 11, sleep=1, saddr="s13")
    a.label("L_EPI")
    a.reset()
    epilogue(a)
    a(f"""
    s_lshl_b32 s50, s2, 4
    s_add_u32 s50, s50, s3
    s_cmp_eq_u32 s50, 4
    s_cbranch_scc0 L_NOEP
    v_mov_b32 v8, {WS_W0}
    v_mov_b32 v9, s10
    s_mov_b64 exec, 1
    global_store_dword v8, v9, {P_WS} sc0 sc1
    s_mov_b64 exec, -1
    """)
    a.label("L_NOEP")
    a.reset()
    finish(a)
    a.label("L_MOE")
    a.reset()
    a(f"""
    v_subrev_u32 v20, 512, v0
    v_lshrrev_b32 v106, 5, v20
    v_and_b32 v22, 31, v20
    s_lshl_b32 s14, s6, 4
    v_add_u32 v106, s14, v106
    v_mul_u32_u24 v106, 3584, v106
    v_min_u32 v22, 27, v22
    v_lshl_add_u32 v106, v22, 4, v106
    s_mul_i32 s14, s5, 448
    v_add_u32 v106, s14, v106
    v_add_u32 v107, {8*3584}, v106
    v_lshrrev_b32 v108, 3, v20
    s_mul_i32 s14, s6, 56
    v_add_u32 v108, s14, v108
    v_lshlrev_b32 v108, 10, v108
    v_and_b32 v22, 7, v20
    v_lshl_add_u32 v108, v22, 4, v108
    s_lshl_b32 s14, s5, 7
    v_add_u32 v108, s14, v108
    v_add_u32 v109, {24*1024}, v108
    s_waitcnt lgkmcnt(0)
    """)
    PF = f"""
    global_load_dwordx4 v[144:147], v106, s[38:39]
    global_load_dwordx4 v[148:151], v106, s[40:41]
    global_load_dwordx4 v[152:155], v107, s[38:39]
    global_load_dwordx4 v[156:159], v107, s[40:41]
    global_load_dwordx4 v[160:163], v108, s[42:43]
    global_load_dwordx4 v[164:167], v109, s[42:43]
    """
    pmode = int(os.environ.get("PREF_MODE", "0"))
    early = pmode == 1
    if early:
        a(PF)
    kgen_common(100, 101)
    a(f"s_waitcnt vmcnt({7 if early else 1})")
    stamp(a, 7)
    if pmode == 0:
        a(PF)
    kgen_ab(100, 101)
    for (dst, sh) in ((32, "s58"), (34, "s59")):
        a(f"""
        v_lshrrev_b32 v36, {sh}, v102
        v_lshrrev_b32 v37, {sh}, v103
        v_lshrrev_b32 v38, {sh}, v104
        v_lshrrev_b32 v39, {sh}, v105
        v_lshlrev_b32 v36, 16, v36
        v_lshlrev_b32 v37, 16, v37
        v_lshlrev_b32 v38, 16, v38
        v_lshlrev_b32 v39, 16, v39
        v_mul_f32 v36, v24, v36
        v_mul_f32 v37, v24, v37
        """)
        cmul(a, dst, 38, 36, 40)
    a(f"""
    v_max3_f32 v36, |v32|, |v33|, |v34|
    v_max_f32 v36, v36, |v35|
    """)
    anchor(a, 42, 26, 27, None, 46, 47)
    anchor(a, 44, 26, 27, "0x43800000", 48, 49)
    dpp_reduce(a, "v_max_f32", [36])
    a(f"""
    v_readlane_b32 s62, v36, 63
    v_frexp_exp_i32_f32 v36, s62
    v_sub_u32 v37, 10, v36
    v_ldexp_f32 v50, v32, v37
    v_ldexp_f32 v51, v33, v37
    v_subrev_u32 v36, 13, v36
    v_ldexp_f32 v36, 1.0, v36
    s_lshl_b32 s62, s7, 2
    s_add_u32 s62, s62, {L_KS}
    v_mov_b32 v37, s62
    ds_write_b32 v37, v36
    """)
    Q = lambda k: 50 + 2 * k
    R = lambda row: 66 + 2 * (row - 8)

    def putA(row, reg):
        t = 92 + (cnt[0] % 6)
        cnt[0] += 1
        a(f"v_cvt_pk_f16_f32 v{t}, v{reg}, -v{reg+1}")
        a(f"ds_write_b32 v28, v{t} offset:{row*ROW}")

    putA(0, Q(0))
    cmul(a, R(8), Q(0), 44, R(8))
    cmul(a, Q(1), Q(0), 42, Q(1))
    beta = [(12, 8), (14, 12), (16, 14), (17, 16), (18, 17), (19, 18), (20, 19)]
    putA(8, R(8))
    putA(1, Q(1))
    for k in range(2, 8):
        row, src = beta[k - 2]
        cmul(a, R(row), R(src), 44, R(row))
        cmul(a, Q(k), Q(k - 1), 42, Q(k))
        putA(row, R(row))
        putA(k, Q(k))
    row, src = beta[6]
    cmul(a, R(row), R(src), 44, R(row))
    cmul(a, R(9), Q(2), 44, R(9))
    cmul(a, R(10), Q(4), 44, R(10))
    cmul(a, R(11), Q(6), 44, R(11))
    putA(20, R(20))
    cmul(a, R(13), R(10), 44, R(13))
    putA(9, R(9))
    putA(10, R(10))
    cmul(a, R(15), R(13), 44, R(15))
    putA(11, R(11))
    putA(13, R(13))
    putA(15, R(15))
    stamp(a, 8)
    a("s_waitcnt lgkmcnt(0)\ns_barrier")
    if pmode == 2:
        a(PF)
    a(f"""
    s_sub_u32 s7, s3, 8
    v_and_b32 v8, 15, v1
    v_lshrrev_b32 v9, 4, v1
    s_mov_b32 s12, 0x05040100
    s_mov_b32 s13, 0x07060302
    """)

    def pack(L, F):
        for j in range(8):
            for k in range(4):
                a(f"v_perm_b32 v{F+4*j+k}, v{L+4*(2*k+1)+(j>>1)}, v{L+4*(2*k)+(j>>1)}, s{12+(j&1)}")

    def keys_pre(B):
        a(f"""
        s_mov_b32 s58, 0xffff0000
        v_lshlrev_b32 v{B+24}, 5, v20
        v_add_u32 v{B+24}, {WS_RG}, v{B+24}
        v_lshlrev_b32 v{B+16}, 3, v20
        v_sub_u32 v{B+16}, 0x7ff, v{B+16}
        """)
        for k in range(1, 8):
            a(f"v_subrev_u32 v{B+16+k}, {k}, v{B+16}")

    def rg_issue(tag, B):
        a("s_barrier")
        lds_wait_flag(a, "GK" + tag, 28, 1, B, B + 1)
        a(f"""
        v_mov_b32 v{B+8}, {L_NONCE}
        ds_read_b32 v{B+8}, v{B+8}
        global_load_dwordx4 v[{B}:{B+3}], v{B+24}, {P_WS} sc0 sc1
        global_load_dwordx4 v[{B+4}:{B+7}], v{B+24}, {P_WS} offset:16 sc0 sc1
        s_waitcnt lgkmcnt(0)
        v_readfirstlane_b32 s10, v{B+8}
        s_barrier
        s_barrier
        """)

    def keys(tag, B, prio, nout):
        if prio:
            a(f"s_setprio {prio}")
        stamp(a, 9)
        a(f"""
        s_lshl_b32 s52, s7, 3
        s_add_u32 s52, s52, {L_KEYS}
        v_mov_b32 v{B+25}, s52
        s_mov_b32 s62, 0
        """)
        a.label("L_RP" + tag)
        a.reset()
        a(f"""
        s_waitcnt vmcnt({nout})
        v_xor_b32 v{B+8}, s10, v{B+1}
        v_xor_b32 v{B+9}, s10, v{B+3}
        v_xor_b32 v{B+10}, s10, v{B+5}
        v_xor_b32 v{B+11}, s10, v{B+7}
        v_or3_b32 v{B+8}, v{B+8}, v{B+9}, v{B+10}
        v_or_b32 v{B+8}, v{B+8}, v{B+11}
        v_cmp_ne_u32 vcc, 0, v{B+8}
        s_cbranch_vccz L_RO{tag}
        s_add_u32 s62, s62, 1
        s_cmp_ge_u32 s62, {SPIN_MAX}
        s_cbranch_scc1 L_RO{tag}
        s_sleep 2
        global_load_dwordx4 v[{B}:{B+3}], v{B+24}, {P_WS} sc0 sc1
        global_load_dwordx4 v[{B+4}:{B+7}], v{B+24}, {P_WS} offset:16 sc0 sc1
        s_waitcnt vmcnt(0)
        s_branch L_RP{tag}
        """)
        a.label("L_RO" + tag)
        a.reset()
        for q in range(4):
            a(f"v_lshl_or_b32 v{B+8+2*q}, v{B+2*q}, 16, v{B+16+2*q}")
            a(f"v_and_or_b32 v{B+9+2*q}, v{B+2*q}, s58, v{B+17+2*q}")
        for q in range(4):
            a(f"v_max_u32 v{B+4+q}, v{B+8+2*q}, v{B+9+2*q}")
            a(f"v_min_u32 v{B+8+2*q}, v{B+8+2*q}, v{B+9+2*q}")
        a(f"""
        v_min_u32 v{B+9}, v{B+4}, v{B+5}
        v_min_u32 v{B+13}, v{B+6}, v{B+7}
        v_max_u32 v{B+4}, v{B+4}, v{B+5}
        v_max_u32 v{B+6}, v{B+6}, v{B+7}
        v_max3_u32 v{B+8}, v{B+8}, v{B+9}, v{B+10}
        v_max3_u32 v{B+12}, v{B+12}, v{B+13}, v{B+14}
        v_min_u32 v{B+9}, v{B+4}, v{B+6}
        v_max_u32 v{B}, v{B+4}, v{B+6}
        v_max_u32 v{B+2}, v{B+4}, v{B+6}
        v_max3_u32 v{B+1}, v{B+8}, v{B+9}, v{B+12}
        """)
        dpp_reduce(a, "v_max_u32", [B + 2])
        a(f"""
        v_readlane_b32 s50, v{B+2}, 63
        v_cmp_eq_u32 vcc, s50, v{B}
        v_cndmask_b32 v{B+2}, v{B}, v{B+1}, vcc
        """)
        dpp_reduce(a, "v_max_u32", [B + 2])
        a(f"""
        v_readlane_b32 s51, v{B+2}, 63
        v_mov_b32 v{B}, s50
        v_mov_b32 v{B+1}, s51
        ds_write_b64 v{B+25}, v[{B}:{B+1}]
        """)
        lds_signal(a, 20, B + 3, B + 4)
        lds_wait_flag(a, "KK" + tag, 20, 4, B + 3, B + 4, sleep=not prio)
        a(f"""
        v_mov_b32 v{B+2}, {L_KEYS}
        ds_read_b128 v[{B+8}:{B+11}], v{B+2}
        ds_read_b128 v[{B+12}:{B+15}], v{B+2} offset:16
        s_waitcnt lgkmcnt(0)
        v_min_u32 v{B+1}, v{B+8}, v{B+10}
        v_min_u32 v{B+3}, v{B+12}, v{B+14}
        v_max_u32 v{B}, v{B+8}, v{B+10}
        v_max_u32 v{B+2}, v{B+12}, v{B+14}
        v_max3_u32 v{B+1}, v{B+1}, v{B+9}, v{B+11}
        v_max3_u32 v{B+3}, v{B+3}, v{B+13}, v{B+15}
        v_min_u32 v{B+4}, v{B}, v{B+2}
        v_max_u32 v{B}, v{B}, v{B+2}
        v_max3_u32 v{B+1}, v{B+1}, v{B+3}, v{B+4}
        v_readfirstlane_b32 s50, v{B}
        v_readfirstlane_b32 s51, v{B+1}
        s_and_b32 s8, s50, 0x7ff
        s_sub_u32 s8, 0x7ff, s8
        s_and_b32 s9, s51, 0x7ff
        s_sub_u32 s9, 0x7ff, s9
        """)

    def idx_pub(B):
        a(f"""
        v_mov_b32 v{B}, s8
        v_mov_b32 v{B+1}, s9
        v_mov_b32 v{B+2}, {L_IDX}
        ds_write_b64 v{B+2}, v[{B}:{B+1}]
        """)
        lds_signal(a, 24, B + 3, B + 4)
        stamp(a, 4)

    a(f"""
    s_cmp_ge_u32 s6, 18
    s_cbranch_scc1 L_NOMOE
    s_cmp_ge_u32 s6, 14
    s_cbranch_scc1 L_DOWN
    """)
    a(f"""
    s_mul_i32 s11, s5, 7
    s_lshr_b32 s14, s6, 1
    s_add_u32 s11, s11, s14
    s_and_b32 s15, s6, 1
    s_cmp_eq_u32 s15, 0
    s_cselect_b32 s54, s38, s40
    s_cselect_b32 s55, s39, s41
    v_lshrrev_b32 v10, 2, v8
    v_lshlrev_b32 v4, 5, v10
    v_lshl_add_u32 v4, v9, 3, v4
    s_lshl_b32 s14, s7, 7
    v_add_u32 v4, s14, v4
    v_mul_u32_u24 v4, 3584, v4
    v_and_b32 v5, 3, v1
    v_lshl_add_u32 v4, v5, 4, v4
    s_lshl_b32 s14, s11, 6
    v_add_u32 v4, s14, v4
    v_add_u32 v6, 7168, v4
    v_add_u32 v7, 14336, v4
    v_add_u32 v11, 21504, v4
    """)
    L, F, AC = 112, 64, 32
    gl = os.environ.get("GATE_LATE", "1") == "1"

    def gloads():
        for e2, ar in enumerate((4, 6, 7, 11)):
            a(f"global_load_dwordx4 v[{L+8*e2}:{L+8*e2+3}], v{ar}, s[54:55]")
            a(f"global_load_dwordx4 v[{L+8*e2+4}:{L+8*e2+7}], v{ar}, s[54:55] offset:3584")
    if not gl:
        lds_wait_flag(a, "XS", 4, 4, 12, 13)
        gloads()
    stamp(a, 1)
    keys_pre(32)
    a(f"""
    v_and_b32 v13, 31, v1
    v_lshlrev_b32 v13, 3, v13
    s_lshl_b32 s14, s7, 8
    v_add_u32 v13, s14, v13
    v_lshrrev_b32 v19, 5, v1
    v_lshl_add_u32 v22, v19, 10, v13
    v_add_u32 v22, {L_MOE}, v22
    v_and_b32 v19, 1, v1
    v_lshlrev_b32 v19, 10, v19
    v_lshl_add_u32 v19, v9, 4, v19
    v_lshl_add_u32 v19, v10, 6, v19
    s_add_u32 s14, s14, {L_MOE}
    v_add_u32 v19, s14, v19
    v_cmp_eq_u32 s[60:61], v9, v10
    s_lshl_b32 s14, s7, 10
    s_add_u32 s14, s14, {L_MP}
    v_lshl_add_u32 v24, v10, 8, s14
    v_lshl_add_u32 v24, v5, 5, v24
    v_lshlrev_b32 v23, 2, v1
    v_add_u32 v23, {L_MP}, v23
    v_lshrrev_b32 v25, 2, v1
    v_lshlrev_b32 v25, 4, v25
    s_lshl_b32 s14, s11, 8
    s_mul_i32 s59, s15, 14336
    s_add_u32 s14, s14, s59
    s_add_u32 s14, s14, {WS_HG}
    v_add_u32 v25, s14, v25
    """)
    if not gl:
        a("s_waitcnt vmcnt(0)")
        stamp(a, 2)
        pack(L, F)
    else:
        rg_issue("G", 32)
        gloads()
    keys("G", 32, 3, 8)
    a(f"""
    s_mov_b32 s52, 0
    s_mov_b32 s53, -1
    v_mov_b32 v12, s8
    v_mov_b32 v14, s9
    v_cndmask_b32 v12, v12, v14, s[52:53]
    v_lshl_add_u32 v14, v12, 10, v13
    global_load_dwordx2 v[16:17], v14, {P_X}
    v_lshlrev_b32 v15, 3, v12
    global_load_dword v18, v15, {P_WS} sc0 sc1
    """)
    idx_pub(32)
    if gl:
        a("s_waitcnt vmcnt(2)")
        stamp(a, 2)
        pack(L, F)
    a("s_waitcnt vmcnt(0)")
    stamp(a, 5)
    a(f"""
    v_and_b32 v20, 0xffff0000, v18
    v_rcp_f32 v20, v20
    v_lshlrev_b32 v21, 16, v18
    """)
    unpack(a, 26, 27, 16)
    unpack(a, 28, 29, 17)
    for k in range(4):
        a(f"v_sub_f32 v{26+k}, v{26+k}, v21")
    a("v_cvt_pk_bf16_f32 v16, v26, v27\nv_cvt_pk_bf16_f32 v17, v28, v29")
    unpack(a, 26, 27, 16)
    unpack(a, 28, 29, 17)
    for k in range(4):
        a(f"v_mul_f32 v{26+k}, v{26+k}, v20")
    a("v_cvt_pk_bf16_f32 v16, v26, v27\nv_cvt_pk_bf16_f32 v17, v28, v29")
    a(f"""
    ds_write_b64 v22, v[16:17]
    ds_read_b128 v[28:31], v19
    s_waitcnt lgkmcnt(0)
    """)
    for j in range(8):
        a(f"v_mfma_f32_16x16x32_bf16 v[{AC+4*j}:{AC+4*j+3}], v[28:31], v[{F+4*j}:{F+4*j+3}], 0")
    a("s_mov_b64 exec, s[60:61]")
    for j in range(8):
        a(f"ds_write2_b32 v24, v{AC+4*j}, v{AC+4*j+1} offset0:{j} offset1:{32+j}")
    a("s_mov_b64 exec, -1")
    lds_signal(a, 8, 12, 13)
    a(f"""
    s_cmp_eq_u32 s7, 0
    s_cbranch_scc0 L_MFIN
    """)
    lds_wait_flag(a, "G", 8, 4, 12, 13, sleep=False)
    for i in range(16):
        a(f"ds_read_b32 v{32+i}, v23 offset:{256*i}")
    a(f"""
    v_mov_b32 v58, s10
    v_mov_b32 v59, s10
    s_waitcnt lgkmcnt(0)
    """)
    for st in (1, 2, 4, 8):
        for i in range(0, 16, 2 * st):
            a(f"v_add_f32 v{32+i}, v{32+i}, v{32+i+st}")
    a(f"""
    v_cvt_pk_bf16_f32 v32, v32, v32
    s_cmp_eq_u32 s15, 0
    s_cbranch_scc0 L_NOSILU
    v_lshlrev_b32 v32, 16, v32
    v_mul_f32 v33, {NEGL2E}, v32
    v_exp_f32 v33, v33
    v_add_f32 v33, 1.0, v33
    v_rcp_f32 v33, v33
    v_mul_f32 v32, v32, v33
    v_cvt_pk_bf16_f32 v32, v32, v32
    """)
    a.label("L_NOSILU")
    a.reset()
    a(f"""
    v_and_b32 v32, 0xffff, v32
    s_nop 1
    v_mov_b32_dpp v33, v32 quad_perm:[1,1,1,1] row_mask:0xf bank_mask:0xf
    v_mov_b32_dpp v34, v32 quad_perm:[2,2,2,2] row_mask:0xf bank_mask:0xf
    v_mov_b32_dpp v35, v32 quad_perm:[3,3,3,3] row_mask:0xf bank_mask:0xf
    v_lshl_or_b32 v56, v33, 16, v32
    v_lshl_or_b32 v57, v35, 16, v34
    s_mov_b32 exec_lo, 0x11111111
    s_mov_b32 exec_hi, 0x11111111
    global_store_dwordx4 v25, v[56:59], {P_WS} sc0 sc1
    s_mov_b64 exec, -1
    """)
    stamp(a, 6)
    a.label("L_MFIN")
    a.reset()
    finish(a)
    a.label("L_DOWN")
    a.reset()
    a(f"""
    s_lshl_b32 s11, s5, 2
    s_add_u32 s11, s11, s6
    s_sub_u32 s11, s11, 14
    v_lshrrev_b32 v10, 1, v8
    v_lshlrev_b32 v4, 5, v10
    v_lshl_add_u32 v4, v9, 3, v4
    s_lshl_b32 s14, s7, 8
    v_add_u32 v4, s14, v4
    v_lshlrev_b32 v4, 10, v4
    v_and_b32 v5, 1, v1
    v_lshl_add_u32 v4, v5, 4, v4
    s_lshl_b32 s14, s11, 5
    v_add_u32 v4, s14, v4
    v_add_u32 v5, 0x1000, v4
    s_cmp_eq_u32 s7, 3
    s_cselect_b32 s15, 0, {1024*1024}
    v_add_u32 v6, s15, v4
    v_add_u32 v7, s15, v5
    s_waitcnt lgkmcnt(0)
    """)
    L0, L1, F0, AC = 32, 64, 96, 128
    keys_pre(100)
    rg_issue("D", 100)
    for e in range(8):
        a(f"global_load_dwordx4 v[{L0+4*e}:{L0+4*e+3}], v{4+(e>>2)}, s[42:43] offset:{1024*(e&3)}")
    for e in range(8):
        a(f"global_load_dwordx4 v[{L1+4*e}:{L1+4*e+3}], v{6+(e>>2)}, s[42:43] offset:{1024*(e&3)}")
    stamp(a, 1)
    keys("D", 100, 0, 16)
    idx_pub(100)
    a("s_waitcnt vmcnt(8)")
    pack(L0, F0)
    a("s_waitcnt vmcnt(0)")
    stamp(a, 2)
    pack(L1, L0)
    F1 = L0
    a(f"""
    s_lshl_b32 s14, s7, 11
    s_add_u32 s14, s14, {WS_HG}
    v_lshl_add_u32 v12, v1, 4, s14
    s_cmp_eq_u32 s7, 3
    s_cselect_b32 s15, 0, 0x2000
    v_add_u32 v13, s15, v12
    s_mov_b32 s62, 0
    """)
    a(f"""
    s_lshl_b32 s14, s7, 11
    s_add_u32 s14, s14, {L_MOE}
    v_lshrrev_b32 v24, 4, v1
    v_lshlrev_b32 v24, 6, v24
    v_and_b32 v25, 7, v1
    v_lshl_add_u32 v24, v25, 3, v24
    v_bfe_u32 v25, v1, 3, 1
    v_lshl_add_u32 v24, v25, 9, v24
    v_add_u32 v24, s14, v24
    v_add_u32 v14, 14336, v12
    v_add_u32 v15, 14336, v13
    v_and_b32 v25, 1, v1
    v_lshlrev_b32 v25, 9, v25
    v_lshl_add_u32 v25, v10, 6, v25
    v_lshl_add_u32 v25, v9, 4, v25
    v_add_u32 v25, s14, v25
    """)
    a(f"""
    v_lshrrev_b32 v26, 1, v10
    v_cmp_eq_u32 s[56:57], v9, v26
    v_and_b32 v26, 1, v10
    v_cmp_eq_u32 s[60:61], 1, v26
    s_lshl_b32 s14, s7, 10
    s_add_u32 s14, s14, {L_MP}
    v_lshl_add_u32 v160, v10, 7, s14
    v_and_b32 v26, 1, v1
    v_lshl_add_u32 v160, v26, 5, v160
    v_bfe_u32 v28, v1, 4, 1
    v_bfe_u32 v27, v1, 1, 3
    s_lshl_b32 s14, s11, 3
    v_add_u32 v26, s14, v27
    v_lshlrev_b32 v161, 4, v26
    v_lshl_add_u32 v161, v28, 12, v161
    v_add_u32 v161, {WS_TG}, v161
    v_cmp_eq_u32 vcc, 1, v28
    v_mov_b32 v30, s50
    v_mov_b32 v31, s51
    v_cndmask_b32 v30, v30, v31, vcc
    v_mov_b32 v163, s8
    v_mov_b32 v31, s9
    v_cndmask_b32 v163, v163, v31, vcc
    v_lshrrev_b32 v30, 16, v30
    v_bfe_i32 v31, v30, 15, 1
    v_not_b32 v31, v31
    v_or_b32 v31, 0x8000, v31
    v_xor_b32 v30, v30, v31
    v_lshlrev_b32 v30, 16, v30
    v_mul_f32 v30, {NEGL2E}, v30
    v_exp_f32 v30, v30
    v_add_f32 v30, 1.0, v30
    v_rcp_f32 v30, v30
    v_cvt_pk_bf16_f32 v30, v30, v30
    v_lshlrev_b32 v162, 16, v30
    v_lshlrev_b32 v163, 10, v163
    v_lshl_add_u32 v163, v26, 2, v163
    v_and_b32 v164, 31, v1
    v_lshlrev_b32 v164, 2, v164
    v_lshrrev_b32 v31, 5, v1
    v_lshl_add_u32 v164, v31, 11, v164
    v_add_u32 v164, {L_MP}, v164
    """)
    if os.environ.get("HWAIT", "1") == "1":
        lds_wait_flag(a, "HC", 48 + 28, 4, 26, 27, sleep=2)
    a("s_mov_b32 s62, 0")
    stamp(a, 3)
    a.label("L_HPOLL")
    a.reset()
    a(f"""
    global_load_dwordx4 v[64:67], v12, {P_WS} sc0 sc1
    global_load_dwordx4 v[68:71], v12, {P_WS} offset:1024 sc0 sc1
    global_load_dwordx4 v[72:75], v13, {P_WS} sc0 sc1
    global_load_dwordx4 v[76:79], v13, {P_WS} offset:1024 sc0 sc1
    global_load_dwordx4 v[80:83], v14, {P_WS} sc0 sc1
    global_load_dwordx4 v[84:87], v14, {P_WS} offset:1024 sc0 sc1
    global_load_dwordx4 v[88:91], v15, {P_WS} sc0 sc1
    global_load_dwordx4 v[92:95], v15, {P_WS} offset:1024 sc0 sc1
    s_waitcnt vmcnt(0)
    v_xor_b32 v16, s10, v67
    v_xor_b32 v17, s10, v71
    v_xor_b32 v18, s10, v75
    v_xor_b32 v19, s10, v79
    v_xor_b32 v20, s10, v83
    v_xor_b32 v21, s10, v87
    v_xor_b32 v22, s10, v91
    v_xor_b32 v23, s10, v95
    v_or3_b32 v16, v16, v17, v18
    v_or3_b32 v19, v19, v20, v21
    v_or3_b32 v16, v16, v22, v23
    v_or_b32 v16, v16, v19
    v_cmp_ne_u32 vcc, 0, v16
    s_cbranch_vccz L_HOK
    s_sleep 3
    s_add_u32 s62, s62, 1
    s_cmp_lt_u32 s62, {SPIN_MAX}
    s_cbranch_scc1 L_HPOLL
    """)
    a.label("L_HOK")
    a.reset()
    a("s_setprio 3")
    stamp(a, 10)
    T = 128
    for g in range(4):
        G, U = 64 + 4 * g, 80 + 4 * g
        for d in range(2):
            t = T + 4 * (2 * g + d)
            a(f"""
            v_lshlrev_b32 v{t}, 16, v{G+d}
            v_and_b32 v{t+1}, 0xffff0000, v{G+d}
            v_lshlrev_b32 v{t+2}, 16, v{U+d}
            v_and_b32 v{t+3}, 0xffff0000, v{U+d}
            """)
    for k in range(8):
        t = T + 4 * k
        a(f"v_pk_mul_f32 v[{t}:{t+1}], v[{t}:{t+1}], v[{t+2}:{t+3}]")
    for g in range(4):
        G = 64 + 4 * g
        for d in range(2):
            t = T + 4 * (2 * g + d)
            a(f"v_cvt_pk_bf16_f32 v{G+d}, v{t}, v{t+1}")
    a(f"""
    ds_write_b64 v24, v[64:65]
    ds_write_b64 v24, v[68:69] offset:256
    ds_read_b128 v[16:19], v25
    ds_write_b64 v24, v[72:73] offset:1024
    ds_write_b64 v24, v[76:77] offset:1280
    ds_read_b128 v[20:23], v25 offset:1024
    s_waitcnt lgkmcnt(3)
    """)
    for j in range(8):
        a(f"v_mfma_f32_16x16x32_bf16 v[{AC+4*j}:{AC+4*j+3}], v[16:19], v[{F0+4*j}:{F0+4*j+3}], 0")
    a(f"""
    s_waitcnt lgkmcnt(0)
    s_cmp_eq_u32 s7, 3
    s_cbranch_scc1 L_DSKIP
    """)
    for j in range(8):
        a(f"v_mfma_f32_16x16x32_bf16 v[{AC+4*j}:{AC+4*j+3}], v[20:23], v[{F1+4*j}:{F1+4*j+3}], v[{AC+4*j}:{AC+4*j+3}]")
    a.label("L_DSKIP")
    a.reset()
    a("s_nop 7")
    for j in range(8):
        a(f"v_cndmask_b32 v{AC+4*j}, v{AC+4*j}, v{AC+4*j+2}, s[60:61]")
        a(f"v_cndmask_b32 v{AC+4*j+1}, v{AC+4*j+1}, v{AC+4*j+3}, s[60:61]")
    a("s_mov_b64 exec, s[56:57]")
    for j in range(8):
        a(f"ds_write2_b32 v160, v{AC+4*j}, v{AC+4*j+1} offset0:{j} offset1:{16+j}")
    a("s_mov_b64 exec, -1")
    lds_signal(a, 8, 12, 13)
    a(f"""
    s_cmp_eq_u32 s7, 3
    s_cbranch_scc0 L_DFIN
    global_load_dwordx4 v[64:67], v161, {P_WS} sc0 sc1
    """)
    lds_wait_flag(a, "D", 8, 4, 12, 13, sleep=False)
    for i in range(16):
        a(f"ds_read_b32 v{32+i}, v164 offset:{128*i}")
    a("s_waitcnt lgkmcnt(0)")
    for st in (1, 2, 4, 8):
        for i in range(0, 16, 2 * st):
            a(f"v_add_f32 v{32+i}, v{32+i}, v{32+i+st}")
    a(f"""
    v_mov_b32 v33, v32
    v_mov_b32 v62, 0x3a000000
    s_mov_b32 s62, 0
    v_permlane32_swap_b32 v32, v33
    v_add_f32 v52, v32, v33
    v_mov_b32_dpp v53, v52 quad_perm:[1,1,3,3] row_mask:0xf bank_mask:0xf
    v_cvt_pk_bf16_f32 v52, v52, v53
    v_and_b32 v53, 0xffff0000, v52
    v_lshlrev_b32 v52, 16, v52
    v_mul_f32 v52, v52, v162
    v_mul_f32 v53, v53, v162
    v_cvt_pk_bf16_f32 v52, v52, v53
    v_and_b32 v53, 0xffff0000, v52
    v_lshlrev_b32 v52, 16, v52
    """)
    stamp(a, 5)
    a.label("L_TPOLL")
    a.reset()
    a(f"""
    s_waitcnt vmcnt(0)
    v_cmp_ne_u32 vcc, s10, v67
    s_cbranch_vccz L_TOK
    s_sleep 1
    s_add_u32 s62, s62, 1
    s_cmp_ge_u32 s62, {SPIN_MAX}
    s_cbranch_scc1 L_TOK
    global_load_dwordx4 v[64:67], v161, {P_WS} sc0 sc1
    s_branch L_TPOLL
    """)
    a.label("L_TOK")
    a.reset()
    stamp(a, 6)
    a(f"""
    v_lshlrev_b32 v60, 16, v65
    v_and_b32 v61, 0xffff0000, v65
    v_fma_f32 v52, v60, v62, v52
    v_fma_f32 v53, v61, v62, v53
    v_cvt_pk_bf16_f32 v52, v52, v53
    v_and_b32 v53, 0xffff0000, v52
    v_lshlrev_b32 v52, 16, v52
    v_lshlrev_b32 v60, 16, v64
    v_and_b32 v61, 0xffff0000, v64
    v_add_f32 v52, v52, v60
    v_add_f32 v53, v53, v61
    v_cvt_pk_bf16_f32 v52, v52, v53
    s_mov_b64 exec, 0x55555555
    global_store_dword v163, v52, {P_OUT} sc0 sc1
    s_mov_b64 exec, -1
    """)
    a.label("L_DFIN")
    a.reset()
    finish(a)
    a.label("L_NOMOE")
    a.reset()
    keys_pre(32)
    rg_issue("N", 32)
    keys("N", 32, 0, 0)
    idx_pub(32)
    finish(a)
    a.label("L_END")
    a("s_endpgm")


def main(out):
    a = Asm()
    a.raw(f"; @launch grid=(256,1,1) block=(768,1,1) lds={LDS_SIZE}")
    a.raw('.amdgcn_target "amdgcn-amd-amdhsa--gfx950"')
    a.raw(".text")
    gen(a)
    a.raw('.section .rodata,"a"')
    a.raw(f""".p2align 6
.amdhsa_kernel {NAME}_kernel
  .amdhsa_next_free_vgpr 168
  .amdhsa_next_free_sgpr 102
  .amdhsa_accum_offset 168
  .amdhsa_group_segment_fixed_size 0
  .amdhsa_kernarg_size 136
  .amdhsa_user_sgpr_count 2
  .amdhsa_user_sgpr_kernarg_segment_ptr 1
  .amdhsa_system_sgpr_workgroup_id_x 1
  .amdhsa_float_denorm_mode_32 3
.end_amdhsa_kernel
""")
    open(out, "w").write(a.text())
    print("nops inserted:", a.nops_inserted)


if __name__ == "__main__":
    import subprocess
    out = sys.argv[1] if len(sys.argv) > 1 else "k2.s"
    main(out)
    subprocess.check_call(["clang", "-x", "assembler", "-target", "amdgcn-amd-amdhsa", "-mcpu=gfx950", "-c", out, "-o", "pass1.o"])
    syms = subprocess.check_output(["llvm-objdump", "-t", "pass1.o"]).decode().split("\n")
    addr = {l.split()[-1]: int(l.split()[0], 16) for l in syms if ".text" in l and len(l.split()) >= 5}
    CODE_SPAN[0] = addr["L_END"] - addr[NAME + "_kernel"] - 16
    print("code bytes", CODE_SPAN[0] + 16)
    main(out)
```

```python
import sys, os
from asmlib import Asm

NAME = "parallel_sum__ssm_conv_s4__moe_arch_mod__prompt"
MB = 1 << 20
STAMP = os.environ.get("STAMP", "0") == "1"
WS_GR = 0x0
WS_RG = 0x4000
WS_HG = 0x8000
WS_TG = 0x10000
WS_C2 = 0x28000
WS_W0 = 0x30000
WS_FL = 0x20000
WS_XC = 1 * MB
WS_STAMP = 16 * MB

LOG2E = "0x3fb8aa3b"
NEGL2E = "0xbfb8aa3b"
SPIN_MAX = 1 << 18
XL = os.environ.get("XC_LOCAL", "1") == "1"
XS = "" if XL else " sc0 sc1"
CODE_SPAN = [0x1000]

ROW = 544
A_SZ = 32 * ROW
AB_CH = 2 * A_SZ
UCOPY = 4160
U_CH = 4 * UCOPY
L_PA = 0
L_K = 2 * AB_CH
K_CH = 4608
L_U = L_K + 2 * K_CH
L_MOE = L_U + 2 * U_CH
L_MP = L_MOE + 8192
L_MISC = L_MP + 4096
L_KEYS = L_MISC
L_NONCE = L_MISC + 64
L_KS = L_MISC + 80
L_FLAG = L_MISC + 96
T_OFF = L_MISC + 192
LDS_SIZE = T_OFF + 8448

P_X, P_ARE, P_AIM, P_BRE, P_BIM, P_CRE, P_CIM, P_LDT = [f"s[{16+2*i}:{17+2*i}]" for i in range(8)]
P_DSK, P_WR, P_OUT, P_DBG, P_WS = "s[32:33]", "s[36:37]", "s[44:45]", "s[46:47]", "s[48:49]"


def stamp(a, idx):
    if STAMP:
        a(f"{'s_memtime' if os.environ.get('STAMPCLK') == '1' else 's_memrealtime'} s[{64+2*idx}:{65+2*idx}]")


def stamp_init(a):
    if STAMP:
        for i in range(64, 96, 2):
            a(f"s_mov_b64 s[{i}:{i+1}], 0")
        stamp(a, 0)


def finish(a):
    if STAMP:
        a("s_waitcnt vmcnt(0)")
        stamp(a, 15)
        a(f"""
        s_lshl_b32 s98, s2, 4
        s_add_u32 s98, s98, s3
        s_lshl_b32 s98, s98, 7
        s_add_u32 s98, s98, {WS_STAMP}
        s_waitcnt lgkmcnt(0)
        s_mov_b64 exec, 1
        v_mov_b32 v0, s98
        """)
        for q in range(8):
            for k in range(4):
                a(f"v_mov_b32 v{4+k}, s{64+4*q+k}")
            a(f"global_store_dwordx4 v0, v[4:7], {P_WS} offset:{16*q}")
            a("s_nop 1")
    a("s_endpgm")


def cmul(a, R, X, Y, T):
    a(f"v_pk_mul_f32 v[{T}:{T+1}], v[{X}:{X+1}], v[{Y}:{Y+1}] op_sel:[0,0] op_sel_hi:[0,1]")
    a(f"v_pk_fma_f32 v[{R}:{R+1}], v[{X}:{X+1}], v[{Y}:{Y+1}], v[{T}:{T+1}] op_sel:[1,1,0] op_sel_hi:[1,0,1] neg_lo:[1,0,0]")


ROWSTEPS = ["quad_perm:[1,0,3,2] row_mask:0xf bank_mask:0xf",
            "quad_perm:[2,3,0,1] row_mask:0xf bank_mask:0xf",
            "row_half_mirror row_mask:0xf bank_mask:0xf",
            "row_mirror row_mask:0xf bank_mask:0xf"]


def dpp_reduce(a, op, regs):
    for s in ROWSTEPS + ["row_bcast:15 row_mask:0xa bank_mask:0xf", "row_bcast:31 row_mask:0xc bank_mask:0xf"]:
        for r in regs:
            a(f"{op}_dpp v{r}, v{r}, v{r} {s}")


def half_reduce_add(a, regs, tmps):
    for s in ROWSTEPS:
        for r in regs:
            a(f"v_add_f32_dpp v{r}, v{r}, v{r} {s}")
    for r, t in zip(regs, tmps):
        a(f"v_mov_b32 v{t}, v{r}")
    for r, t in zip(regs, tmps):
        a(f"v_permlane16_swap_b32 v{r}, v{t}")
    for r, t in zip(regs, tmps):
        a(f"v_add_f32 v{r}, v{r}, v{t}")


def anchor(a, P, vA, vB, lf, t0, t1):
    if lf is None:
        a(f"v_exp_f32 v{t0}, v{vA}")
        a(f"v_fract_f32 v{t1}, v{vB}")
    else:
        a(f"v_mul_f32 v{t0}, {lf}, v{vA}")
        a(f"v_mul_f32 v{t1}, {lf}, v{vB}")
        a(f"v_exp_f32 v{t0}, v{t0}")
        a(f"v_fract_f32 v{t1}, v{t1}")
    a(f"v_cos_f32 v{P}, v{t1}")
    a(f"v_sin_f32 v{P+1}, v{t1}")
    a(f"v_mul_f32 v{P}, v{t0}, v{P}")
    a(f"v_mul_f32 v{P+1}, v{t0}, v{P+1}")


def unpack(a, lo, hi, src):
    a(f"v_lshlrev_b32 v{lo}, 16, v{src}")
    a(f"v_and_b32 v{hi}, 0xffff0000, v{src}")


def lds_wait_flag(a, tag, off, val, vaddr, vtmp, sleep=True, saddr=None):
    a(f"""
    v_mov_b32 v{vaddr}, {saddr if saddr else L_FLAG+off}
    s_mov_b32 s62, 0
    """)
    a.label(f"LW_{tag}")
    a.reset()
    a(f"""
    ds_read_b32 v{vtmp}, v{vaddr}
    s_add_u32 s62, s62, 1
    s_waitcnt lgkmcnt(0)
    v_readfirstlane_b32 s63, v{vtmp}
    s_cmp_ge_u32 s63, {val}
    s_cbranch_scc1 LWD_{tag}
    {("s_sleep %d" % int(sleep)) if sleep else ""}
    s_cmp_lt_u32 s62, {SPIN_MAX}
    s_cbranch_scc1 LW_{tag}
    """)
    a.label(f"LWD_{tag}")
    a.reset()


def lds_signal(a, off, vaddr, vtmp):
    a(f"""
    v_mov_b32 v{vaddr}, {L_FLAG+off}
    v_mov_b32 v{vtmp}, 1
    s_mov_b64 exec, 1
    ds_add_u32 v{vaddr}, v{vtmp}
    s_mov_b64 exec, -1
    """)


def piece_hash(a, dst, d, vmul, t):
    for D, B in zip(dst, d):
        a(f"v_alignbit_b32 v{t}, v{B+1}, v{B+1}, 25")
        a(f"v_alignbit_b32 v{t+1}, v{B+2}, v{B+2}, 19")
        a(f"v_alignbit_b32 v{D}, v{B+3}, v{B+3}, 10")
        a(f"v_add3_u32 v{t}, v{t}, v{t+1}, v{B}")
        a(f"v_add_u32 v{D}, v{D}, v{t}")
        a(f"v_mul_lo_u32 v{D}, v{D}, v{vmul}")
    for s in ROWSTEPS:
        for D in dst:
            a(f"v_add_u32_dpp v{D}, v{D}, v{D} {s}")


def lbar(a, n, va=158, vb=159, sleep=False):
    a("s_waitcnt lgkmcnt(0)")
    a(f"""
    v_mov_b32 v{va}, {L_FLAG+12}
    v_mov_b32 v{vb}, 1
    s_mov_b64 exec, 1
    ds_add_u32 v{va}, v{vb}
    s_mov_b64 exec, -1
    s_mov_b32 s62, 0
    """)
    a.label(f"LB_{n}")
    a.reset()
    a(f"""
    ds_read_b32 v{vb}, v{va}
    s_add_u32 s62, s62, 1
    s_waitcnt lgkmcnt(0)
    v_readfirstlane_b32 s63, v{vb}
    s_cmp_ge_u32 s63, {8*n}
    s_cbranch_scc1 LBD_{n}
    {"s_sleep 1" if sleep else ""}
    s_cmp_lt_u32 s62, {SPIN_MAX}
    s_cbranch_scc1 LB_{n}
    """)
    a.label(f"LBD_{n}")
    a.reset()


XG = 160
XN = 164


def conv_loop(a, ACC, FB, NS, fillers):
    desc = []
    for lv in range(7, -1, -1):
        for o in range(0, lv + 1):
            if lv + o <= 7:
                desc.append((lv, o))
                if o != lv:
                    desc.append((o, lv))
    asc = [(q, ct - q) for ct in range(8) for q in range(ct + 1)]
    if os.environ.get("CV_SPREAD") == "1":
        d2 = []
        for lv in range(7, -1, -1):
            A = [(lv, o) for o in range(0, lv + 1) if lv + o <= 7]
            B = [(o, lv) for o in range(0, lv) if lv + o <= 7]
            d2 += A + B
        desc = d2
    ml = []
    loads = []
    for ri in range(4):
        pairs = asc if (ri == 3 and os.environ.get("CONV_ASC", "1") == "1") else desc
        for (q, m) in pairs:
            ml.append((ri, q, m))
            for f in ((ri, "U", q), (ri, "K", m)):
                if f not in loads:
                    loads.append(f)
    last_use = {}
    last_ct = {}
    for i, (ri, q, m) in enumerate(ml):
        last_use[(ri, "U", q)] = i
        last_use[(ri, "K", m)] = i
        last_ct[q + m] = i
    free = list(range(NS))
    slot = {}
    ready = {}
    st = {"iss": 0, "done": 0}
    li = 0
    fillers = list(fillers)

    def issue(key):
        sl = free.pop(0)
        slot[key] = sl
        reg = FB + 4 * sl
        ri, kind, n = key
        if os.environ.get("CV_NOREAD") == "1":
            pass
        elif kind == "U" and os.environ.get("CV_U128") == "1":
            a(f"ds_read_b128 v[{reg}:{reg+3}], v13 offset:{512*n+64*ri}")
            st["iss"] += 1
        elif kind == "U":
            a(f"ds_read_b64 v[{reg}:{reg+1}], v12 offset:{512*n+64*ri}")
            a(f"ds_read_b64 v[{reg+2}:{reg+3}], v12 offset:{512*n+64*ri+8}")
            st["iss"] += 2
        else:
            a(f"ds_read_b128 v[{reg}:{reg+3}], v13 offset:{512*(7-n)+64*ri}")
            st["iss"] += 1
        ready[key] = st["iss"]

    def dump(ct):
        a(f"ds_write_b128 v14, v[{ACC+4*ct}:{ACC+4*ct+3}] offset:{4096*ct}")
        a("s_mov_b64 exec, 1")
        a(f"ds_add_u32 v10, v11 offset:{4*ct}")
        a("s_mov_b64 exec, -1")
        st["iss"] += 2

    pend = []
    started = set()
    while li < len(loads) and free and st["iss"] < 13:
        issue(loads[li]); li += 1
    for i, (ri, q, m) in enumerate(ml):
        ku, kk = (ri, "U", q), (ri, "K", m)
        while ku not in ready or kk not in ready:
            issue(loads[li]); li += 1
        need = max(ready[ku], ready[kk])
        if need > st["done"]:
            a(f"s_waitcnt lgkmcnt({min(st['iss'] - need, 15)})")
            st["done"] = need
        ct = q + m
        ru, rk = FB + 4 * slot[ku], FB + 4 * slot[kk]
        cin = f"v[{ACC+4*ct}:{ACC+4*ct+3}]" if ct in started else "0"
        started.add(ct)
        a(f"v_mfma_f32_16x16x32_f16 v[{ACC+4*ct}:{ACC+4*ct+3}], v[{ru}:{ru+3}], v[{rk}:{rk+3}], {cin}")
        for k in (ku, kk):
            if last_use[k] == i:
                free.append(slot[k])
        if last_ct[ct] == i:
            pend.append((i + 4 if os.environ.get("CONV_EARLY", "1") == "1" else 10**6, ct))
        did = False
        if pend and pend[0][0] <= i:
            dump(pend.pop(0)[1]); did = True
        if not did and li < len(loads) and free and st["iss"] - st["done"] < 13:
            issue(loads[li]); li += 1; did = True
        if not did and fillers and i > 8 and os.environ.get("CONV_FILL", "1") == "1":
            a(fillers.pop(0))
    for _, ct in pend:
        dump(ct)
    for f in fillers:
        a(f)


EA = 129
ED = 138


def epi_addr():
    return [l.strip() for l in f"""
    v_bfe_u32 v138, v1, 3, 2
    v_xor_b32 v138, v138, v1
    v_lshrrev_b32 v139, 8, v4
    v_lshlrev_b32 v139, 12, v139
    v_lshl_add_u32 v129, v138, 4, v139
    v_add_u32 v129, {L_PA}, v129
    s_lshl_b32 s58, s4, 13
    s_add_u32 s58, s58, {WS_XC}
    v_lshl_add_u32 v130, v4, 2, s58
    s_lshl_b32 s58, s4, 7
    s_add_u32 s58, s58, {WS_C2}
    v_lshrrev_b32 v131, 6, v4
    v_lshl_add_u32 v131, v131, 2, s58
    v_lshrrev_b32 v138, 4, v0
    v_and_b32 v139, 15, v0
    s_lshl_b32 s58, s5, 18
    s_lshl_b32 s59, s6, 8
    s_add_u32 s58, s58, s59
    s_add_u32 s58, s58, {WS_XC}
    v_lshlrev_b32 v132, 13, v138
    v_lshl_add_u32 v132, v139, 4, v132
    v_add_u32 v132, s58, v132
    s_lshl_b32 s58, s5, 12
    s_lshl_b32 s59, s6, 2
    s_add_u32 s58, s58, s59
    s_add_u32 s58, s58, {WS_C2}
    v_lshl_add_u32 v133, v138, 7, s58
    v_mul_u32_u24 v134, {4*33*4}, v139
    v_lshl_add_u32 v134, v138, 2, v134
    v_add_u32 v134, {T_OFF}, v134
    v_lshrrev_b32 v137, 3, v0
    v_and_b32 v139, 7, v0
    v_mul_u32_u24 v135, {33*4}, v137
    v_lshl_add_u32 v135, v139, 4, v135
    s_lshl_b32 s58, s6, 6
    v_add_u32 v137, s58, v137
    v_lshlrev_b32 v136, 10, v137
    v_lshl_add_u32 v136, v139, 4, v136
    s_lshl_b32 s58, s5, 7
    v_add_u32 v136, s58, v136
    """.strip().split("\n")]


def epi_data():
    L = []
    for r in range(4):
        L += [f"v_lshlrev_b32 v{148+2*r}, 16, v{XN+r}", f"v_and_b32 v{149+2*r}, 0xffff0000, v{XN+r}"]
    for r in range(4):
        L += [f"v_mul_f32 v{140+2*r}, v{148+2*r}, v156", f"v_mul_f32 v{141+2*r}, v{149+2*r}, v157"]
    for r in range(4):
        L += [f"v_cvt_pk_bf16_f32 v{140+2*r}, v{140+2*r}, v{141+2*r}"]
    for r in range(4):
        L += [f"v_and_b32 v{141+2*r}, 0xffff0000, v{140+2*r}", f"v_lshlrev_b32 v{140+2*r}, 16, v{140+2*r}"]
    return L


def epilogue(a):
    a(f"""
    s_lshl_b32 s13, s14, 2
    s_add_u32 s13, s13, {L_FLAG+48}
    v_mov_b32 v6, s13
    v_mov_b32 v7, {L_KS}
    s_mov_b32 s62, 0
    """)
    a.label("EP_RD")
    a.reset()
    a(f"""
    ds_read_b32 v30, v6
    ds_read_b32 v31, v7 offset:{L_FLAG+24-L_KS}
    ds_read_b128 v[24:27], v7
    ds_read_b32 v5, v7 offset:{L_FLAG+32-L_KS}
    ds_read_b128 v[8:11], v129
    ds_read_b128 v[12:15], v129 offset:1024
    ds_read_b128 v[16:19], v129 offset:2048
    ds_read_b128 v[20:23], v129 offset:3072
    v_mov_b32 v28, 0x3a000000
    v_mov_b32 v29, 0x3a000000
    v_and_b32 v82, 15, v1
    v_lshl_add_u32 v82, v82, 1, 1
    """)
    for r in range(4):
        unpack(a, 48 + 2 * r, 49 + 2 * r, XG + r)
    a(f"""
    s_waitcnt lgkmcnt(4)
    v_readfirstlane_b32 s50, v30
    v_readfirstlane_b32 s51, v31
    v_readfirstlane_b32 s8, v26
    v_readfirstlane_b32 s9, v27
    v_readfirstlane_b32 s12, v5
    s_add_u32 s62, s62, 1
    s_cmp_ge_u32 s50, 4
    s_cselect_b32 s52, 1, 0
    s_cmp_ge_u32 s51, 1
    s_cselect_b32 s53, s52, 0
    s_cmp_ge_u32 s62, {SPIN_MAX}
    s_cselect_b32 s53, 1, s53
    s_cmp_eq_u32 s53, 1
    s_cbranch_scc1 EP_GO
    s_waitcnt lgkmcnt(0)
    s_branch EP_RD
    """)
    a.label("EP_GO")
    a.reset()
    stamp(a, 12)
    a("s_waitcnt lgkmcnt(2)")
    for r in range(4):
        a(f"v_add_f32 v{60+2*r}, v{8+r}, v{12+r}")
    a("s_waitcnt lgkmcnt(0)")
    for r in range(4):
        a(f"v_add_f32 v{61+2*r}, v{16+r}, v{20+r}")
    for r in range(4):
        a(f"v_pk_mul_f32 v[{60+2*r}:{61+2*r}], v[{60+2*r}:{61+2*r}], v[24:25]")
    for r in range(4):
        a(f"v_cvt_pk_bf16_f32 v{56+r}, v{60+2*r}, v{61+2*r}")
    for r in range(4):
        unpack(a, 60 + 2 * r, 61 + 2 * r, 56 + r)
    for r in range(4):
        a(f"v_pk_add_f32 v[{60+2*r}:{61+2*r}], v[{60+2*r}:{61+2*r}], v[{140+2*r}:{141+2*r}]")
    for r in range(4):
        a(f"v_cvt_pk_bf16_f32 v{56+r}, v{60+2*r}, v{61+2*r}")
    for r in range(4):
        unpack(a, 60 + 2 * r, 61 + 2 * r, 56 + r)
    for r in range(4):
        a(f"v_pk_add_f32 v[{60+2*r}:{61+2*r}], v[{60+2*r}:{61+2*r}], v[{48+2*r}:{49+2*r}]")
    for r in range(4):
        a(f"v_cvt_pk_bf16_f32 v{56+r}, v{60+2*r}, v{61+2*r}")
    for r in range(4):
        unpack(a, 60 + 2 * r, 61 + 2 * r, 56 + r)
    for r in range(4):
        a(f"v_pk_fma_f32 v[{60+2*r}:{61+2*r}], v[{148+2*r}:{149+2*r}], v[28:29], v[{60+2*r}:{61+2*r}]")
    for r in range(4):
        a(f"v_cvt_pk_bf16_f32 v{68+r}, v{60+2*r}, v{61+2*r}")
    a(f"""
    s_cmp_lg_u32 s12, 0
    s_cbranch_scc1 EP_NOX
    global_store_dwordx4 v130, v[68:71], {P_WS}
    """)
    piece_hash(a, [8], [68], 82, 9)
    a(f"""
    v_add_u32 v8, s10, v8
    s_mov_b32 exec_lo, 0x00010001
    s_mov_b32 exec_hi, 0x00010001
    global_store_dword v131, v8, {P_WS}
    s_mov_b64 exec, -1
    """)
    a.label("EP_NOX")
    a.reset()
    a(f"""
    s_lshr_b32 s50, s8, 8
    s_lshr_b32 s51, s9, 8
    s_cmp_eq_u32 s50, s14
    s_cselect_b32 s52, 1, 0
    s_cmp_eq_u32 s51, s14
    s_cselect_b32 s53, 1, 0
    s_or_b32 s54, s52, s53
    s_cmp_eq_u32 s54, 0
    s_cbranch_scc1 EP_NOSEL
    s_lshl_b32 s55, s4, 4
    s_add_u32 s55, s55, {WS_TG}
    v_mov_b32 v74, 0
    v_mov_b32 v75, s10
    """)
    for r in range(4):
        a(f"""
        v_add_u32 v7, {r}, v4
        v_cmp_eq_u32 s[50:51], s8, v7
        v_cmp_eq_u32 s[52:53], s9, v7
        v_mov_b32 v72, v{56+r}
        v_mov_b32 v73, v{XN+r}
        v_mov_b32 v76, s55
        v_mov_b32 v77, 0x1000
        s_or_b64 s[56:57], s[50:51], s[52:53]
        v_cndmask_b32 v77, 0, v77, s[52:53]
        v_add_u32 v76, v76, v77
        s_mov_b64 exec, s[56:57]
        s_cbranch_execz EPN_{r}
        global_store_dwordx4 v76, v[72:75], {P_WS} sc0 sc1
        """)
        a.label(f"EPN_{r}")
        a.reset()
        a("s_mov_b64 exec, -1\ns_nop 1")
    a.label("EP_NOSEL")
    a.reset()
    stamp(a, 13)
    a(f"""
    s_cmp_lg_u32 s12, 0
    s_cbranch_scc1 EP_SCAT
    """)
    lds_wait_flag(a, "C", 48 + 28, 4, 10, 11)
    a("s_mov_b32 s62, 0")
    a.label("EP_POLL")
    a.reset()
    a(f"""
    global_load_dwordx4 v[8:11], v132, {P_WS} sc1
    global_load_dword v12, v133, {P_WS} sc1
    s_mov_b64 exec, -1
    s_waitcnt vmcnt(0)
    """)
    piece_hash(a, [13], [8], 82, 14)
    a(f"""
    v_add_u32 v13, s10, v13
    v_cmp_ne_u32 vcc, v13, v12
    s_cbranch_vccz EP_GOT
    s_add_u32 s62, s62, 1
    s_mov_b64 exec, vcc
    s_cmp_lt_u32 s62, {SPIN_MAX}
    s_cbranch_scc1 EP_POLL
    s_mov_b64 exec, -1
    """)
    a.label("EP_GOT")
    a.reset()
    stamp(a, 14)
    for r in range(4):
        a(f"ds_write_b32 v134, v{8+r} offset:{33*4*r}")
    lbar(a, 1, 14, 15)
    a(f"""
    v_add_u32 v135, {T_OFF}, v135
    ds_read2_b32 v[8:9], v135 offset0:0 offset1:1
    ds_read2_b32 v[10:11], v135 offset0:2 offset1:3
    v_cmp_ne_u32 vcc, s8, v137
    v_cmp_ne_u32 s[50:51], s9, v137
    s_and_b64 exec, vcc, s[50:51]
    s_waitcnt lgkmcnt(0)
    global_store_dwordx4 v136, v[8:11], {P_OUT} sc0 sc1
    s_mov_b64 exec, -1
    s_branch EP_DONE
    """)
    a.label("EP_SCAT")
    a.reset()
    for r in range(4):
        a(f"""
        v_add_u32 v7, {r}, v4
        v_cmp_ne_u32 vcc, s8, v7
        v_cmp_ne_u32 s[50:51], s9, v7
        s_and_b64 exec, vcc, s[50:51]
        global_store_dword v3, v{68+r}, {P_OUT} offset:{1024*r}
        s_mov_b64 exec, -1
        """)
    a.label("EP_DONE")
    a.reset()


L_RB = L_MP
L_IDX = L_MISC + 88


def gen(a):
    K = NAME + "_kernel"
    a.raw(".globl " + K)
    a.raw(".p2align 8")
    a.raw(f".type {K},@function")
    a.label(K)
    a.reset()
    a(f"""
    s_cmp_ge_u32 s2, 256
    s_cbranch_scc1 L_END
    s_getpc_b64 s[100:101]
    """)
    stamp_init(a)
    a(f"""
    v_lshrrev_b32 v2, 6, v0
    v_and_b32 v1, 63, v0
    v_readfirstlane_b32 s3, v2
    s_cmp_lg_u32 s3, 11
    s_cbranch_scc1 L_NOPF
    v_lshlrev_b32 v12, 7, v1
    global_load_dword v14, v12, s[100:101]
    v_add_u32 v12, 0x2000, v12
    v_min_u32 v17, {CODE_SPAN[0]}, v12
    global_load_dword v15, v17, s[100:101]
    v_add_u32 v12, 0x2000, v12
    v_min_u32 v12, {CODE_SPAN[0]}, v12
    global_load_dword v16, v12, s[100:101]
    v_mov_b32 v8, 0
    v_mov_b32 v9, 0
    v_mov_b32 v10, 0
    v_mov_b32 v11, 0
    v_mov_b32 v13, {L_FLAG}
    ds_write_b128 v13, v[8:11]
    ds_write_b128 v13, v[8:11] offset:16
    ds_write_b128 v13, v[8:11] offset:32
    ds_write_b128 v13, v[8:11] offset:48
    ds_write_b128 v13, v[8:11] offset:64
    s_waitcnt lgkmcnt(0)
    """)
    a.label("L_NOPF")
    a.reset()
    a(f"""
    s_load_dwordx16 s[16:31], s[0:1], 0
    s_load_dwordx16 s[32:47], s[0:1], 64
    s_load_dwordx2 s[48:49], s[0:1], 128
    s_getreg_b32 s99, hwreg(HW_REG_XCC_ID)
    s_and_b32 s5, s2, 7
    s_lshr_b32 s6, s2, 3
    s_lshl_b32 s4, s5, 5
    s_add_u32 s4, s4, s6
    s_lshl_b32 s11, s4, 2
    s_bfe_u32 s7, s3, 0x10001
    s_and_b32 s13, s3, 1
    s_lshl_b32 s8, s4, 1
    s_add_u32 s8, s8, s7
    s_lshl_b32 s9, s8, 8
    v_lshlrev_b32 v5, 2, v1
    v_add_u32 v5, s9, v5
    s_and_b32 s99, s99, 15
    s_barrier
    s_cmp_ge_u32 s3, 8
    s_cbranch_scc1 L_MW
    s_cmp_ge_u32 s3, 4
    s_cbranch_scc1 L_BW
    """)
    a(f"""
    s_setprio 3
    v_and_b32 v6, 31, v1
    v_lshlrev_b32 v6, 4, v6
    v_lshrrev_b32 v7, 5, v1
    s_lshl_b32 s12, s2, 3
    s_lshl_b32 s14, s3, 1
    s_add_u32 s12, s12, s14
    v_add_u32 v7, s12, v7
    v_lshl_add_u32 v7, v7, 10, v6
    v_lshrrev_b32 v76, 7, v7
    v_and_b32 v76, 0xfffffff8, v76
    v_mov_b32 v134, 0
    v_mov_b32 v135, 0
    v_mov_b32 v136, 0
    v_mov_b32 v78, 0
    s_waitcnt lgkmcnt(0)
    global_load_dwordx4 v[8:11], v7, {P_X}
    global_load_dwordx4 v[12:15], v7, {P_X} offset:512
    global_load_dwordx4 v[16:19], v6, {P_WR}
    global_load_dwordx4 v[20:23], v6, {P_WR} offset:512
    s_load_dword s10, {P_WS}, {WS_W0}
    s_load_dword s15, {P_DSK}, s11
    s_branch L_PRE
    """)
    a.label("L_MW")
    a.reset()
    a(f"""
    s_setprio 3
    s_lshl_b32 s14, s4, 7
    s_add_u32 s14, s14, {WS_C2}
    v_mov_b32 v79, s14
    s_waitcnt lgkmcnt(0)
    global_load_dword v100, v5, {P_ARE}
    global_load_dword v101, v5, {P_AIM}
    global_load_dword v102, v5, {P_BRE}
    global_load_dword v103, v5, {P_BIM}
    global_load_dword v104, v5, {P_CRE}
    global_load_dword v105, v5, {P_CIM}
    global_load_dword v110, v79, {P_WS} sc1
    s_load_dword s56, {P_LDT}, s11
    """)
    stamp(a, 14)
    a("s_setprio 0\ns_branch L_MOE")
    a.label("L_BW")
    a.reset()
    a(f"""
    v_and_b32 v76, 15, v1
    v_lshrrev_b32 v77, 4, v1
    s_and_b32 s12, s3, 3
    s_lshl_b32 s14, s6, 16
    s_lshl_b32 s15, s5, 7
    s_add_u32 s14, s14, s15
    s_lshl_b32 s15, s12, 5
    s_add_u32 s14, s14, s15
    v_lshrrev_b32 v78, 2, v1
    v_lshlrev_b32 v78, 12, v78
    v_and_b32 v79, 3, v1
    v_lshl_add_u32 v78, v79, 3, v78
    v_add_u32 v78, s14, v78
    v_lshl_add_u32 v133, v76, 2, v77
    v_lshlrev_b32 v133, 2, v133
    s_lshl_b32 s14, s5, 18
    s_lshl_b32 s50, s6, 8
    s_add_u32 s14, s14, s50
    s_lshl_b32 s50, s12, 16
    s_add_u32 s14, s14, s50
    s_add_u32 s14, s14, {WS_XC}
    v_lshlrev_b32 v134, 14, v77
    v_lshl_add_u32 v134, v76, 4, v134
    v_add_u32 v134, s14, v134
    v_add_u32 v135, 0x2000, v134
    s_lshl_b32 s14, s4, 7
    s_lshl_b32 s50, s12, 5
    s_add_u32 s14, s14, s50
    s_add_u32 s14, s14, {WS_FL}
    v_lshl_add_u32 v136, v77, 3, s14
    s_waitcnt lgkmcnt(0)
    global_load_dword v80, v5, {P_ARE}
    global_load_dword v81, v5, {P_AIM}
    s_load_dword s15, {P_DSK}, s11
    s_load_dword s56, {P_LDT}, s11
    v_mov_b32 v8, 0
    v_mov_b32 v9, 0
    v_mov_b32 v10, 0
    v_mov_b32 v11, 0
    v_lshrrev_b32 v12, 5, v1
    v_mul_u32_u24 v12, {K_CH}, v12
    v_and_b32 v13, 31, v1
    v_lshl_add_u32 v12, v13, 4, v12
    v_add_u32 v12, {L_K+4096}, v12
    ds_write_b128 v12, v[8:11]
    """)
    a.label("L_PRE")
    a.reset()
    a(f"""
    v_add_u32 v4, 256, v0
    v_and_b32 v4, 511, v4
    v_lshlrev_b32 v4, 2, v4
    v_lshlrev_b32 v3, 10, v4
    v_add_u32 v3, s11, v3
    v_lshlrev_b32 v115, 3, v4
    v_lshlrev_b32 v128, 1, v4
    v_add_u32 v128, {L_U+32}, v128
    s_lshl_b32 s50, s5, 12
    s_lshl_b32 s51, s6, 2
    s_add_u32 s50, s50, s51
    s_add_u32 s50, s50, {WS_FL}
    v_lshrrev_b32 v124, 6, v4
    v_lshl_add_u32 v124, v124, 7, s50
    s_lshl_b32 s50, s4, 13
    s_add_u32 s50, s50, {WS_XC}
    v_lshl_add_u32 v126, v4, 2, s50
    v_and_b32 v24, 15, v1
    v_lshl_add_u32 v127, v24, 1, 1
    s_lshr_b32 s57, s3, 2
    s_mul_i32 s61, s57, {AB_CH}
    v_mul_u32_u24 v26, {ROW}, v24
    v_lshrrev_b32 v25, 4, v1
    v_lshl_add_u32 v26, v25, 4, v26
    s_mul_i32 s60, s7, {16*ROW}
    s_add_u32 s60, s60, s61
    s_mul_i32 s62, s13, {16*ROW}
    s_add_u32 s62, s62, s61
    s_add_u32 s62, s62, {A_SZ}
    v_add_u32 v108, s60, v26
    v_add_u32 v109, s62, v26
    s_mov_b32 s50, 0
    s_mov_b32 s51, -1
    s_mul_i32 s60, s57, {K_CH}
    s_lshl_b32 s58, s13, 8
    s_sub_u32 s60, s60, s58
    v_lshlrev_b32 v26, 4, v24
    s_cmp_eq_u32 s7, 0
    s_cbranch_scc0 L_TA1
    s_add_u32 s60, s60, {L_K+4088}
    v_and_b32 v27, 1, v25
    v_lshl_add_u32 v26, v27, 3, v26
    v_lshrrev_b32 v27, 1, v25
    v_lshl_add_u32 v26, v27, 9, v26
    v_sub_u32 v110, s60, v26
    v_mov_b32 v100, 0x05040706
    v_mov_b32 v27, 0x03020504
    v_cndmask_b32 v100, v100, v27, s[50:51]
    v_mov_b32 v101, 0x01000302
    v_mov_b32 v27, 0x01000100
    v_cndmask_b32 v101, v101, v27, s[50:51]
    s_branch L_TAD
    """)
    a.label("L_TA1")
    a.reset()
    a(f"""
    s_add_u32 s60, s60, {L_K+4080-1024}
    v_lshlrev_b32 v27, 9, v25
    v_cmp_eq_u32 vcc, 3, v25
    v_add_u32 v28, 512, v27
    v_cndmask_b32 v27, v27, v28, vcc
    v_add_u32 v26, v26, v27
    v_sub_u32 v110, s60, v26
    v_subrev_u32 v111, 512, v110
    v_mov_b32 v100, 0x05040504
    v_mov_b32 v101, 0x03020302
    v_cndmask_b32 v100, v100, v101, s[50:51]
    v_mov_b32 v102, 0x01000302
    v_mov_b32 v103, 0x01000100
    s_mov_b32 s52, 0
    s_mov_b32 s53, 0x55555555
    v_cndmask_b32 v101, v101, v102, s[52:53]
    v_cndmask_b32 v102, v102, v103, s[50:51]
    """)
    a.label("L_TAD")
    a.reset()
    stamp(a, 1)
    a(f"""
    s_cmp_ge_u32 s3, 4
    s_cbranch_scc1 L_BTASK
    s_mov_b32 s50, 0
    s_mov_b32 s51, -1
    s_mov_b32 s55, 0xffff
    v_mov_b32 v28, 0x3b000000
    v_mov_b32 v29, {L_NONCE}
    v_mov_b32 v30, {L_FLAG+4}
    v_mov_b32 v31, 1
    s_waitcnt vmcnt(2)
    """)
    stamp(a, 2)
    for k in range(8):
        unpack(a, 32 + 2 * k, 33 + 2 * k, 8 + k)
    a(f"""
    v_readlane_b32 s52, v32, 0
    v_readlane_b32 s53, v32, 32
    v_pk_add_f32 v[64:65], v[32:33], v[34:35]
    v_pk_add_f32 v[66:67], v[36:37], v[38:39]
    v_mov_b32 v24, s52
    v_mov_b32 v25, s53
    v_pk_add_f32 v[68:69], v[40:41], v[42:43]
    v_cndmask_b32 v24, v24, v25, s[50:51]
    v_pk_add_f32 v[70:71], v[44:45], v[46:47]
    v_mov_b32 v25, v24
    v_pk_add_f32 v[64:65], v[64:65], v[66:67]
    v_pk_add_f32 v[68:69], v[68:69], v[70:71]
    """)
    for k in range(8):
        a(f"v_pk_add_f32 v[{48+2*k}:{49+2*k}], v[{32+2*k}:{33+2*k}], v[24:25] neg_lo:[0,1] neg_hi:[0,1]")
    a(f"""
    v_pk_add_f32 v[64:65], v[64:65], v[68:69]
    v_pk_mul_f32 v[72:73], v[48:49], v[48:49]
    v_pk_mul_f32 v[74:75], v[50:51], v[50:51]
    v_add_f32 v64, v64, v65
    v_pk_fma_f32 v[72:73], v[52:53], v[52:53], v[72:73]
    v_pk_fma_f32 v[74:75], v[54:55], v[54:55], v[74:75]
    v_pk_fma_f32 v[72:73], v[56:57], v[56:57], v[72:73]
    v_pk_fma_f32 v[74:75], v[58:59], v[58:59], v[74:75]
    v_pk_fma_f32 v[72:73], v[60:61], v[60:61], v[72:73]
    v_pk_fma_f32 v[74:75], v[62:63], v[62:63], v[74:75]
    v_pk_add_f32 v[72:73], v[72:73], v[74:75]
    v_add_f32 v72, v72, v73
    """)
    half_reduce_add(a, [64, 72], [65, 73])
    a(f"""
    v_mul_f32 v64, v64, v28
    v_mul_f32 v72, v72, v28
    v_sub_f32 v65, v64, v24
    v_fma_f32 v72, -v65, v65, v72
    v_max_f32 v72, 0, v72
    v_cvt_pk_bf16_f32 v64, v64, v72
    v_and_b32 v72, 0xffff0000, v64
    v_lshlrev_b32 v66, 16, v64
    v_add_f32 v72, 0x3727c5ac, v72
    v_mov_b32 v67, v66
    v_cvt_pk_bf16_f32 v72, v72, v72
    v_lshlrev_b32 v72, 16, v72
    v_sqrt_f32 v72, v72
    """)
    for k in range(8):
        a(f"v_pk_add_f32 v[{48+2*k}:{49+2*k}], v[{32+2*k}:{33+2*k}], v[66:67] neg_lo:[0,1] neg_hi:[0,1]")
    a(f"""
    v_cvt_pk_bf16_f32 v72, v72, v72
    v_lshlrev_b32 v72, 16, v72
    v_rcp_f32 v68, v72
    v_and_or_b32 v78, v64, s55, v72
    s_waitcnt lgkmcnt(0)
    s_add_u32 s10, s10, 0x9e3779b1
    s_andn2_b32 s10, s10, 15
    s_or_b32 s54, s10, s99
    v_mov_b32 v79, s54
    v_mov_b32 v70, s10
    s_mov_b32 exec_lo, 1
    s_mov_b32 exec_hi, 1
    global_store_dwordx2 v76, v[78:79], {P_WS} sc0 sc1
    s_mov_b64 exec, 1
    ds_write_b32 v29, v70
    ds_add_u32 v30, v31
    s_mov_b64 exec, -1
    s_setprio 1
    """)
    stamp(a, 3)
    for k in range(8):
        a(f"v_cvt_pk_bf16_f32 v{8+k}, v{48+2*k}, v{49+2*k}")
    a("v_mov_b32 v69, v68")
    for k in range(8):
        unpack(a, 48 + 2 * k, 49 + 2 * k, 8 + k)
    for k in range(8):
        a(f"v_pk_mul_f32 v[{48+2*k}:{49+2*k}], v[{48+2*k}:{49+2*k}], v[68:69]")
    for k in range(8):
        a(f"v_cvt_pk_bf16_f32 v{8+k}, v{48+2*k}, v{49+2*k}")
    a("s_waitcnt vmcnt(1)")
    for k in range(4):
        a(f"v_mov_b32 v{70+k}, 0")
    for k in range(8):
        a(f"v_dot2c_f32_bf16 v{70+(k&3)}, v{8+k}, v{16+k}")
    a(f"""
    v_lshrrev_b32 v74, 3, v76
    v_sub_u32 v74, 0x7ff, v74
    v_lshrrev_b32 v75, 1, v76
    v_and_b32 v75, 28, v75
    v_add_u32 v75, {L_KEYS}, v75
    v_add_f32 v70, v70, v71
    v_add_f32 v72, v72, v73
    v_add_f32 v70, v70, v72
    """)
    half_reduce_add(a, [70], [71])
    a(f"""
    v_cvt_pk_bf16_f32 v70, v70, v70
    v_ashrrev_i32 v72, 31, v70
    v_or_b32 v72, 0x80008000, v72
    v_xor_b32 v70, v70, v72
    v_lshl_or_b32 v70, v70, 16, v74
    v_mov_b32 v30, {L_FLAG+20}
    s_mov_b32 exec_lo, 1
    s_mov_b32 exec_hi, 1
    ds_write_b32 v75, v70
    s_mov_b64 exec, 1
    ds_add_u32 v30, v31
    s_mov_b64 exec, -1
    s_cmp_eq_u32 s3, 0
    s_cbranch_scc0 L_LDONE
    """)
    lds_wait_flag(a, "LK", 20, 4, 30, 29, sleep=False)
    B = 8
    a(f"""
    v_mov_b32 v30, {L_KEYS}
    ds_read_b128 v[{B+8}:{B+11}], v30
    ds_read_b128 v[{B+12}:{B+15}], v30 offset:16
    s_lshl_b32 s12, s2, 4
    s_add_u32 s12, s12, {WS_RG}
    v_mov_b32 v30, s12
    v_mov_b32 v{B+3}, s10
    s_waitcnt lgkmcnt(0)
    """)
    for q in range(4):
        a(f"v_max_u32 v{B+4+q}, v{B+8+2*q}, v{B+9+2*q}")
        a(f"v_min_u32 v{B+8+2*q}, v{B+8+2*q}, v{B+9+2*q}")
    a(f"""
    v_min_u32 v{B+9}, v{B+4}, v{B+5}
    v_min_u32 v{B+13}, v{B+6}, v{B+7}
    v_max_u32 v{B+4}, v{B+4}, v{B+5}
    v_max_u32 v{B+6}, v{B+6}, v{B+7}
    v_max3_u32 v{B+8}, v{B+8}, v{B+9}, v{B+10}
    v_max3_u32 v{B+12}, v{B+12}, v{B+13}, v{B+14}
    v_min_u32 v{B+9}, v{B+4}, v{B+6}
    v_max_u32 v{B}, v{B+4}, v{B+6}
    v_max3_u32 v{B+1}, v{B+8}, v{B+9}, v{B+12}
    s_mov_b64 exec, 1
    global_store_dwordx4 v30, v[{B}:{B+3}], {P_WS} sc0 sc1
    s_mov_b64 exec, -1
    """)
    a.label("L_LDONE")
    a.reset()
    a("s_setprio 0\ns_branch L_COMMON")

    def kgen_common(pa, pb):
        a(f"""
        s_lshl_b32 s57, s7, 4
        s_lshr_b32 s56, s56, s57
        s_lshl_b32 s56, s56, 16
        v_mov_b32 v24, {LOG2E}
        v_mul_f32 v24, s56, v24
        v_exp_f32 v24, v24
        s_lshl_b32 s58, s13, 4
        s_sub_u32 s59, 16, s58
        s_lshl_b32 s60, s13, 8
        s_mul_i32 s61, s7, {AB_CH}
        s_add_u32 s60, s60, s61
        v_lshlrev_b32 v28, 2, v1
        v_add_u32 v28, s60, v28
        v_cvt_pk_bf16_f32 v24, v24, v24
        v_lshlrev_b32 v24, 16, v24
        """)

    def kgen_ab(pa, pb):
        a(f"""
        v_lshrrev_b32 v26, s58, v{pa}
        v_lshrrev_b32 v27, s58, v{pb}
        v_lshlrev_b32 v26, 16, v26
        v_lshlrev_b32 v27, 16, v27
        v_mul_f32 v26, v24, v26
        v_mul_f32 v27, v24, v27
        v_mul_f32 v26, {LOG2E}, v26
        v_mul_f32 v27, 0.15915494, v27
        """)
    def loader():
        a(f"""
    s_setprio 2
    s_waitcnt vmcnt(0)
        """)
        for k in range(2):
            for r in range(4):
                a(f"ds_bpermute_b32 v{148+4*k+r}, v133, v{140+2*r+k}")
        a(f"""
    s_waitcnt lgkmcnt(4)
    global_store_dwordx4 v134, v[148:151], {P_WS}{XS}
    s_waitcnt lgkmcnt(0)
    global_store_dwordx4 v135, v[152:155], {P_WS}{XS}
        """)
        piece_hash(a, [12, 13], [148, 152], 127, 14)
        lds_wait_flag(a, "N", 4, 1, 14, 15, sleep=False)
        a(f"""
    v_mov_b32 v14, {L_NONCE}
    ds_read_b32 v14, v14
    s_waitcnt lgkmcnt(0)
    v_add_u32 v12, v14, v12
    v_add_u32 v13, v14, v13
    s_mov_b32 exec_lo, 0x00010001
    s_mov_b32 exec_hi, 0x00010001
    global_store_dwordx2 v136, v[12:13], {P_WS}{XS}
    s_mov_b64 exec, -1
    s_setprio 0
        """)
        stamp(a, 3)


    cnt = [0]
    a.label("L_BTASK")
    a.reset()
    a(f"""
    global_load_dwordx2 v[140:141], v78, {P_X}
    global_load_dwordx2 v[142:143], v78, {P_X} offset:1024
    global_load_dwordx2 v[144:145], v78, {P_X} offset:2048
    global_load_dwordx2 v[146:147], v78, {P_X} offset:3072
    """)
    if XL:
        a(f"""
    global_load_dwordx4 v[148:151], v134, {P_WS} sc1
    global_load_dwordx4 v[152:155], v135, {P_WS} sc1
    global_load_dword v137, v136, {P_WS} sc1
    """)
    a("s_waitcnt lgkmcnt(0)")
    kgen_common(80, 81)
    LF = os.environ.get("LOADER_FIRST", "0") == "1"
    if LF:
        loader()
        a("s_waitcnt vmcnt(3)")
    else:
        a(f"s_waitcnt vmcnt({7 if XL else 4})")
    stamp(a, 2)
    kgen_ab(80, 81)

    def putB(j, reg):
        t = 92 + (cnt[0] % 6)
        cnt[0] += 1
        a(f"v_cvt_pk_f16_f32 v{t}, v{reg}, v{reg+1}")
        a(f"ds_write_b32 v28, v{t} offset:{A_SZ + j*ROW}")

    anchor(a, 42, 26, 27, "0x41000000", 46, 47)
    a(f"""
    v_mov_b32 v92, 0x3c00
    ds_write_b32 v28, v92 offset:{A_SZ}
    """)
    cnt[0] = 1
    cmul(a, 44, 42, 42, 44)
    putB(1, 42)
    prev = 44
    putB(2, 44)
    for k in range(1, 16):
        nxt = 48 + 2 * (k % 2)
        o = 52 + 2 * (k % 2)
        if k < 15:
            cmul(a, nxt, prev, 44, nxt)
        cmul(a, o, prev, 42, o)
        if k < 15:
            putB(2 * (k + 1), nxt)
        putB(2 * k + 1, o)
        prev = nxt
    LL = os.environ.get("LOADER_LATE", "0") == "1"
    if not LF and not LL:
        loader()
    a.label("L_COMMON")
    a.reset()
    stamp(a, 4)
    a("s_waitcnt lgkmcnt(0)\ns_barrier")
    stamp(a, 5)
    PP = int(os.environ.get("POLLPOS", "2"))
    POLLS = f"""
    global_load_dword v125, v124, {P_WS} sc1
    global_load_dwordx4 v[{XG}:{XG+3}], v126, {P_WS} sc1
    global_load_dwordx4 v[116:119], v115, {P_WS} sc0 sc1
    global_load_dwordx4 v[120:123], v115, {P_WS} offset:16 sc0 sc1
    """
    for s in range(8):
        a(f"ds_read_b128 v[{32+8*s}:{35+8*s}], v108 offset:{64*s}")
        a(f"ds_read_b128 v[{36+8*s}:{39+8*s}], v109 offset:{64*s}")
    for s in range(8):
        a(f"s_waitcnt lgkmcnt({14-2*s})")
        a(f"v_mfma_f32_16x16x32_f16 v[96:99], v[{32+8*s}:{35+8*s}], v[{36+8*s}:{39+8*s}], {'0' if s == 0 else 'v[96:99]'}")
    a(f"""
    v_mov_b32 v40, {L_NONCE}
    ds_read_b32 v40, v40
    v_cvt_pk_f16_f32 v32, v96, v97
    v_cvt_pk_f16_f32 v33, v98, v99
    s_cmp_eq_u32 s7, 0
    s_cbranch_scc0 L_KX1
    v_perm_b32 v34, v33, v32, v100
    v_perm_b32 v35, v33, v32, v101
    ds_write_b64 v110, v[34:35]
    s_branch L_KXD
    """)
    a.label("L_KX1")
    a.reset()
    a(f"""
    v_perm_b32 v36, v33, v32, v100
    v_perm_b32 v37, v33, v32, v101
    v_perm_b32 v38, v33, v32, v102
    v_perm_b32 v39, v33, v32, v103
    ds_write_b128 v110, v[36:39]
    v_perm_b32 v44, v33, v33, v100
    v_perm_b32 v45, v33, v33, v101
    v_perm_b32 v46, v33, v33, v102
    v_perm_b32 v47, v33, v33, v103
    s_mov_b32 exec_lo, 0
    ds_write_b128 v111, v[44:47]
    s_mov_b32 exec_lo, -1
    """)
    a.label("L_KXD")
    a.reset()
    stamp(a, 6)
    if LL:
        a("s_cmp_ge_u32 s3, 4\ns_cbranch_scc0 L_NOLD")
        loader()
        a.label("L_NOLD")
        a.reset()
    if os.environ.get("ACKWAIT", "1") == "1":
        a("s_waitcnt vmcnt(0)")
    if int(os.environ.get("PSLEEP", "0")):
        a("s_sleep %d" % int(os.environ["PSLEEP"]))
    a(POLLS)
    a(f"""
    s_cmp_eq_u32 s3, 0
    s_cbranch_scc0 L_NOSIG
    """)
    lds_signal(a, 28, 34, 35)
    a.label("L_NOSIG")
    a.reset()
    a(f"""
    s_waitcnt lgkmcnt(0)
    v_readfirstlane_b32 s10, v40
    """)
    a(f"""
    s_mov_b32 s62, 0
    s_cmp_eq_u32 s3, 5
    s_cbranch_scc0 L_NOPAD
    v_mov_b32 v32, 0
    v_mov_b32 v33, 0
    v_mov_b32 v34, 0
    v_mov_b32 v35, 0
    v_bfe_u32 v36, v1, 1, 3
    v_mul_u32_u24 v36, {UCOPY}, v36
    v_and_b32 v37, 1, v1
    v_lshl_add_u32 v36, v37, 4, v36
    v_add_u32 v36, {L_U}, v36
    s_mov_b64 exec, 0xffff
    ds_write_b128 v36, v[32:35]
    s_mov_b64 exec, -1
    """)
    a.label("L_NOPAD")
    a.reset()
    stamp(a, 7)
    if STAMP:
        a("s_mov_b64 s[96:97], 0")
    a(f"""
    s_mov_b64 s[56:57], 0
    v_lshrrev_b32 v37, 6, v4
    v_lshlrev_b32 v37, 9, v37
    s_lshl_b32 s50, s5, 6
    v_add_u32 v37, s50, v37
    s_or_b32 s54, s10, s99
    """)
    a.label("L_GPOLL")
    a.reset()
    a("s_waitcnt vmcnt(0)")
    piece_hash(a, [32], [XG], 127, 33)
    a(f"""
    v_add_u32 v32, s10, v32
    v_cmp_ne_u32 vcc, v32, v125
    v_xor_b32 v33, s10, v117
    v_xor_b32 v34, s10, v119
    v_xor_b32 v35, s10, v121
    v_xor_b32 v36, s10, v123
    v_or3_b32 v34, v33, v34, v35
    v_or_b32 v34, v34, v36
    v_cmp_lt_u32 s[50:51], 15, v34
    s_andn2_b64 vcc, vcc, s[56:57]
    s_or_b64 s[52:53], vcc, s[50:51]
    s_cbranch_scc0 L_GOK
    s_add_u32 s62, s62, 1
    s_cmp_ge_u32 s62, {SPIN_MAX}
    s_cbranch_scc1 L_GOK
    """)
    if STAMP:
        a("""
        s_cmp_lg_u64 vcc, 0
        s_addc_u32 s96, s96, 0
        s_cmp_lg_u64 s[50:51], 0
        s_addc_u32 s97, s97, 0
        """)
    a(f"""
    s_mov_b64 exec, vcc
    s_cbranch_execz L_GP2
    s_cmp_lt_u32 s62, 4
    s_cbranch_scc1 L_GP1
    global_load_dword v38, v37, {P_WS} offset:4 sc0 sc1
    s_waitcnt vmcnt(0)
    v_xor_b32 v38, s54, v38
    v_cmp_ne_u32 s[52:53], 0, v38
    v_cmp_gt_u32 s[58:59], 16, v38
    s_and_b64 s[52:53], s[52:53], s[58:59]
    s_or_b64 s[56:57], s[56:57], s[52:53]
    s_mov_b64 exec, s[52:53]
    s_cbranch_execz L_GP0
    global_load_dword v{XG}, v3, {P_X}
    global_load_dword v{XG+1}, v3, {P_X} offset:1024
    global_load_dword v{XG+2}, v3, {P_X} offset:2048
    global_load_dword v{XG+3}, v3, {P_X} offset:3072
    """)
    a.label("L_GP0")
    a.reset()
    a(f"""
    s_andn2_b64 exec, vcc, s[52:53]
    s_cbranch_execz L_GP2
    """)
    a.label("L_GP1")
    a.reset()
    a(f"""
    global_load_dword v125, v124, {P_WS} sc1
    global_load_dwordx4 v[{XG}:{XG+3}], v126, {P_WS} sc1
    """)
    a.label("L_GP2")
    a.reset()
    a(f"""
    s_mov_b64 exec, s[50:51]
    s_cbranch_execz L_GP3
    s_sleep 3
    global_load_dwordx4 v[116:119], v115, {P_WS} sc0 sc1
    global_load_dwordx4 v[120:123], v115, {P_WS} offset:16 sc0 sc1
    """)
    a.label("L_GP3")
    a.reset()
    a(f"""
    s_mov_b64 exec, -1
    s_branch L_GPOLL
    """)
    a.label("L_GOK")
    a.reset()
    stamp(a, 8)
    if STAMP:
        a("s_waitcnt lgkmcnt(0)\ns_mov_b64 s[74:75], s[96:97]")
    a(f"""
    v_bfe_u32 v35, v4, 3, 3
    v_and_b32 v36, 15, v119
    v_cmp_eq_u32 vcc, s5, v35
    v_cmp_ne_u32 s[50:51], s99, v36
    s_and_b64 vcc, vcc, s[50:51]
    s_cbranch_vccz L_UNI
    """)
    lds_signal(a, 32, 34, 35)
    a.label("L_UNI")
    a.reset()
    st = [116, 118, 120, 122]
    for r in range(4):
        a(f"v_and_b32 v{40+r}, 0xffff0000, v{st[r]}")
    for r in range(4):
        a(f"v_rcp_f32 v{40+r}, v{40+r}")
    for r in range(4):
        a(f"v_lshlrev_b32 v{44+r}, 16, v{st[r]}")
    for r in range(4):
        unpack(a, 48 + 2 * r, 49 + 2 * r, XG + r)
    for r in range(4):
        a(f"v_sub_f32 v{48+2*r}, v{48+2*r}, v{44+r}")
        a(f"v_sub_f32 v{49+2*r}, v{49+2*r}, v{44+r}")
    for r in range(4):
        a(f"v_mul_f32 v{40+r}, 0x45000000, v{40+r}")
    for r in range(4):
        a(f"v_cvt_pk_bf16_f32 v{56+r}, v{48+2*r}, v{49+2*r}")
    for r in range(4):
        unpack(a, 48 + 2 * r, 49 + 2 * r, 56 + r)
    for r in range(4):
        a(f"v_mul_f32 v{48+2*r}, v{48+2*r}, v{40+r}")
        a(f"v_mul_f32 v{49+2*r}, v{49+2*r}, v{40+r}")
    for r in range(4):
        a(f"v_cvt_pk_bf16_f32 v{XN+r}, v{48+2*r}, v{49+2*r}")
    for r in range(4):
        unpack(a, 48 + 2 * r, 49 + 2 * r, XN + r)
    a(f"""
    v_cvt_pk_f16_f32 v60, v48, v50
    v_cvt_pk_f16_f32 v61, v52, v54
    v_cvt_pk_f16_f32 v62, v49, v51
    v_cvt_pk_f16_f32 v63, v53, v55
    ds_write_b64 v128, v[60:61]
    ds_write_b64 v128, v[62:63] offset:{U_CH}
    v_subrev_u32 v9, 8, v128
    """)
    stamp(a, 9)
    a("s_waitcnt lgkmcnt(0)\ns_barrier")
    a(f"""
    ds_read_b64 v[64:65], v9
    ds_read_b64 v[66:67], v9 offset:{U_CH}
    """)
    for c in range(2):
        W0, W1, P0, P1 = 60 + 2 * c, 61 + 2 * c, 64 + 2 * c, 65 + 2 * c
        t = 68 + 8 * c
        a(f"""
        v_alignbyte_b32 v{t+1}, v{W1}, v{W0}, 2
        v_mov_b32 v{t+3}, v{W0}
        """)
    for c in range(2):
        W0, W1, P0, P1 = 60 + 2 * c, 61 + 2 * c, 64 + 2 * c, 65 + 2 * c
        t = 68 + 8 * c
        a(f"s_waitcnt lgkmcnt({1 if c == 0 else 3})")
        a(f"""
        v_alignbyte_b32 v{t}, v{W0}, v{P1}, 2
        v_mov_b32 v{t+2}, v{P1}
        v_alignbyte_b32 v{t+4}, v{P1}, v{P0}, 2
        v_alignbyte_b32 v{t+5}, v{W0}, v{P1}, 2
        ds_write_b64 v128, v[{t}:{t+1}] offset:{c*U_CH+UCOPY}
        ds_write_b64 v128, v[{t+2}:{t+3}] offset:{c*U_CH+2*UCOPY}
        ds_write_b64 v128, v[{t+4}:{t+5}] offset:{c*U_CH+3*UCOPY}
        """)
    a(f"""
    s_lshl_b32 s50, s15, 16
    s_and_b32 s51, s15, 0xffff0000
    v_mov_b32 v156, 0x3a000000
    v_mul_f32 v157, s51, v156
    v_mul_f32 v156, s50, v156
    s_cmp_ge_u32 s3, 4
    s_cbranch_scc1 L_AUX
    """)
    a(f"""
    s_setprio 2
    v_and_b32 v8, 15, v1
    v_lshrrev_b32 v9, 4, v1
    v_sub_u32 v10, 15, v8
    v_and_b32 v11, 3, v10
    v_lshrrev_b32 v10, 2, v10
    v_mul_u32_u24 v12, {UCOPY}, v11
    v_lshlrev_b32 v11, 1, v9
    v_sub_u32 v11, v11, v10
    v_add_u32 v11, 4, v11
    v_lshl_add_u32 v12, v11, 3, v12
    s_mul_i32 s12, s7, {U_CH}
    s_lshl_b32 s14, s13, 8
    s_add_u32 s12, s12, s14
    s_add_u32 s12, s12, {L_U}
    v_add_u32 v12, s12, v12
    v_lshlrev_b32 v13, 4, v9
    v_lshlrev_b32 v11, 5, v8
    v_sub_u32 v13, v13, v11
    s_mul_i32 s12, s7, {K_CH}
    s_add_u32 s12, s12, s14
    s_add_u32 s12, s12, {L_K+480}
    v_add_u32 v13, s12, v13
    v_lshl_add_u32 v14, v8, 2, v9
    v_bfe_u32 v11, v14, 3, 2
    v_xor_b32 v14, v14, v11
    s_lshl_b32 s12, s3, 10
    s_add_u32 s12, s12, {L_PA}
    v_lshl_add_u32 v14, v14, 4, s12
    """)
    ACC = 96
    a(f"""
    v_mov_b32 v10, {L_FLAG+48}
    v_mov_b32 v11, 1
    """)
    stamp(a, 10)
    a("s_waitcnt lgkmcnt(0)\ns_barrier")
    stamp(a, 11)
    conv_loop(a, ACC, 16, 20, epi_data() + epi_addr())
    stamp(a, 1)
    a(f"""
    s_setprio 0
    s_add_u32 s14, s3, 4
    s_branch L_EPI
    """)
    a.label("L_AUX")
    a.reset()
    stamp(a, 10)
    a("s_waitcnt lgkmcnt(0)\ns_barrier")
    for f in epi_data() + epi_addr():
        a(f)
    a("s_sub_u32 s14, s3, 4")
    lds_wait_flag(a, "T0", 48, 1, 10, 11, sleep=4)
    a(f"""
    s_lshl_b32 s13, s14, 2
    s_add_u32 s13, s13, {L_FLAG+48}
    """)
    lds_wait_flag(a, "T1", None, 4, 10, 11, sleep=1, saddr="s13")
    a.label("L_EPI")
    a.reset()
    epilogue(a)
    a(f"""
    s_lshl_b32 s50, s2, 4
    s_add_u32 s50, s50, s3
    s_cmp_eq_u32 s50, 4
    s_cbranch_scc0 L_NOEP
    v_mov_b32 v8, {WS_W0}
    v_mov_b32 v9, s10
    s_mov_b64 exec, 1
    global_store_dword v8, v9, {P_WS} sc0 sc1
    s_mov_b64 exec, -1
    """)
    a.label("L_NOEP")
    a.reset()
    finish(a)
    a.label("L_MOE")
    a.reset()
    a(f"""
    v_subrev_u32 v20, 512, v0
    v_lshrrev_b32 v106, 5, v20
    v_and_b32 v22, 31, v20
    s_lshl_b32 s14, s6, 4
    v_add_u32 v106, s14, v106
    v_mul_u32_u24 v106, 3584, v106
    v_min_u32 v22, 27, v22
    v_lshl_add_u32 v106, v22, 4, v106
    s_mul_i32 s14, s5, 448
    v_add_u32 v106, s14, v106
    v_add_u32 v107, {8*3584}, v106
    v_lshrrev_b32 v108, 3, v20
    s_mul_i32 s14, s6, 56
    v_add_u32 v108, s14, v108
    v_lshlrev_b32 v108, 10, v108
    v_and_b32 v22, 7, v20
    v_lshl_add_u32 v108, v22, 4, v108
    s_lshl_b32 s14, s5, 7
    v_add_u32 v108, s14, v108
    v_add_u32 v109, {24*1024}, v108
    s_waitcnt lgkmcnt(0)
    """)
    PF = f"""
    global_load_dwordx4 v[144:147], v106, s[38:39]
    global_load_dwordx4 v[148:151], v106, s[40:41]
    global_load_dwordx4 v[152:155], v107, s[38:39]
    global_load_dwordx4 v[156:159], v107, s[40:41]
    global_load_dwordx4 v[160:163], v108, s[42:43]
    global_load_dwordx4 v[164:167], v109, s[42:43]
    """
    pmode = int(os.environ.get("PREF_MODE", "0"))
    early = pmode == 1
    if early:
        a(PF)
    kgen_common(100, 101)
    a(f"s_waitcnt vmcnt({7 if early else 1})")
    stamp(a, 7)
    if pmode == 0:
        a(PF)
    kgen_ab(100, 101)
    for (dst, sh) in ((32, "s58"), (34, "s59")):
        a(f"""
        v_lshrrev_b32 v36, {sh}, v102
        v_lshrrev_b32 v37, {sh}, v103
        v_lshrrev_b32 v38, {sh}, v104
        v_lshrrev_b32 v39, {sh}, v105
        v_lshlrev_b32 v36, 16, v36
        v_lshlrev_b32 v37, 16, v37
        v_lshlrev_b32 v38, 16, v38
        v_lshlrev_b32 v39, 16, v39
        v_mul_f32 v36, v24, v36
        v_mul_f32 v37, v24, v37
        """)
        cmul(a, dst, 38, 36, 40)
    a(f"""
    v_max3_f32 v36, |v32|, |v33|, |v34|
    v_max_f32 v36, v36, |v35|
    """)
    anchor(a, 42, 26, 27, None, 46, 47)
    anchor(a, 44, 26, 27, "0x43800000", 48, 49)
    dpp_reduce(a, "v_max_f32", [36])
    a(f"""
    v_readlane_b32 s62, v36, 63
    v_frexp_exp_i32_f32 v36, s62
    v_sub_u32 v37, 2, v36
    v_ldexp_f32 v50, v32, v37
    v_ldexp_f32 v51, v33, v37
    v_subrev_u32 v36, 13, v36
    v_ldexp_f32 v36, 1.0, v36
    s_lshl_b32 s62, s7, 2
    s_add_u32 s62, s62, {L_KS}
    v_mov_b32 v37, s62
    ds_write_b32 v37, v36
    """)
    Q = lambda k: 50 + 2 * k
    CA, CB_, CC = 68, 72, 76

    def putA(rows, reg):
        t = 92 + (cnt[0] % 6)
        cnt[0] += 1
        a(f"v_cvt_pk_f16_f32 v{t}, v{reg}, -v{reg+1}")
        for row in rows:
            a(f"ds_write_b32 v28, v{t} offset:{row*ROW}")

    P1, P256 = 42, 44
    rowsA = [8, 16, 20, 24, 26, 28, 30]
    rowsC = [14, 18, 22, 25, 27, 29, 31]
    putA([0], Q(0))
    pa = Q(0)
    for k in range(1, 8):
        na = CA + 2 * (k & 1)
        cmul(a, na, pa, P256, na)
        cmul(a, Q(k), Q(k - 1), P1, Q(k))
        putA([rowsA[k - 1]], na)
        putA([k], Q(k))
        pa = na
    cmul(a, Q(8), Q(7), P1, Q(8))
    cmul(a, CB_, Q(4), P256, CB_)
    cmul(a, 80, Q(2), P256, 80)
    cmul(a, 82, Q(6), P256, 82)
    pc = Q(8)
    pb = CB_
    putA([10, 12], CB_)
    for k in range(7):
        nc = CC + 2 * (k & 1)
        cmul(a, nc, pc, P256, nc)
        if k == 0:
            putA([9], 80)
            putA([13], 82)
        if k in (0, 1):
            nb = CB_ + 2 * ((k + 1) & 1)
            cmul(a, nb, pb, P256, nb)
            pb = nb
        putA([rowsC[k]], nc)
        if k in (0, 1):
            putA([17 if k == 0 else 21], pb)
        pc = nc
    stamp(a, 8)
    a("s_waitcnt lgkmcnt(0)\ns_barrier")
    if pmode == 2:
        a(PF)
    a(f"""
    s_sub_u32 s7, s3, 8
    v_and_b32 v8, 15, v1
    v_lshrrev_b32 v9, 4, v1
    s_mov_b32 s12, 0x05040100
    s_mov_b32 s13, 0x07060302
    """)

    def pack(L, F):
        for j in range(8):
            for k in range(4):
                a(f"v_perm_b32 v{F+4*j+k}, v{L+4*(2*k+1)+(j>>1)}, v{L+4*(2*k)+(j>>1)}, s{12+(j&1)}")

    B = 32
    a(f"""
    s_cmp_eq_u32 s7, 0
    s_cbranch_scc0 L_NOKEY
    v_lshlrev_b32 v{B+24}, 4, v1
    v_add_u32 v{B+24}, {WS_RG}, v{B+24}
    v_mov_b32 v{B+20}, {L_NONCE}
    ds_read_b32 v{B+20}, v{B+20}
    s_waitcnt lgkmcnt(0)
    v_readfirstlane_b32 s10, v{B+20}
    """)
    lds_wait_flag(a, "PS", 28, 1, B, B + 1)
    a("s_mov_b32 s62, 0\ns_setprio 2")
    a.label("L_RP")
    a.reset()
    for q in range(4):
        a(f"global_load_dwordx4 v[{B+4*q}:{B+4*q+3}], v{B+24}, {P_WS} offset:{1024*q} sc0 sc1")
    a(f"""
    s_mov_b64 exec, -1
    s_waitcnt vmcnt(0)
    v_xor_b32 v{B+16}, s10, v{B+3}
    v_xor_b32 v{B+17}, s10, v{B+7}
    v_xor_b32 v{B+18}, s10, v{B+11}
    v_xor_b32 v{B+19}, s10, v{B+15}
    v_or3_b32 v{B+16}, v{B+16}, v{B+17}, v{B+18}
    v_or_b32 v{B+16}, v{B+16}, v{B+19}
    v_cmp_ne_u32 vcc, 0, v{B+16}
    s_cbranch_vccz L_RO
    s_add_u32 s62, s62, 1
    s_cmp_ge_u32 s62, {SPIN_MAX}
    s_cbranch_scc1 L_RO
    s_sleep 3
    s_mov_b64 exec, vcc
    s_branch L_RP
    """)
    a.label("L_RO")
    a.reset()
    stamp(a, 9)
    a(f"""
    v_min_u32 v{B+16}, v{B}, v{B+4}
    v_min_u32 v{B+17}, v{B+8}, v{B+12}
    v_max_u32 v{B}, v{B}, v{B+4}
    v_max_u32 v{B+8}, v{B+8}, v{B+12}
    v_max3_u32 v{B+1}, v{B+1}, v{B+5}, v{B+16}
    v_max3_u32 v{B+9}, v{B+9}, v{B+13}, v{B+17}
    v_min_u32 v{B+16}, v{B}, v{B+8}
    v_max_u32 v{B+2}, v{B}, v{B+8}
    v_max_u32 v{B}, v{B}, v{B+8}
    v_max3_u32 v{B+1}, v{B+1}, v{B+9}, v{B+16}
    """)
    dpp_reduce(a, "v_max_u32", [B + 2])
    a(f"""
    v_readlane_b32 s50, v{B+2}, 63
    v_cmp_eq_u32 vcc, s50, v{B}
    v_cndmask_b32 v{B+2}, v{B}, v{B+1}, vcc
    """)
    dpp_reduce(a, "v_max_u32", [B + 2])
    a(f"""
    v_readlane_b32 s51, v{B+2}, 63
    s_and_b32 s8, s50, 0x7ff
    s_sub_u32 s8, 0x7ff, s8
    s_and_b32 s9, s51, 0x7ff
    s_sub_u32 s9, 0x7ff, s9
    v_mov_b32 v{B}, s8
    v_mov_b32 v{B+1}, s9
    v_mov_b32 v{B+2}, s50
    v_mov_b32 v{B+3}, s51
    v_mov_b32 v{B+4}, {L_IDX}
    ds_write_b64 v{B+4}, v[{B}:{B+1}]
    ds_write_b64 v{B+4}, v[{B+2}:{B+3}] offset:{L_KEYS+32-L_IDX+65536 if False else 0}
    s_setprio 0
    """.replace(f"ds_write_b64 v{B+4}, v[{B+2}:{B+3}] offset:0", f"v_mov_b32 v{B+4}, {L_KEYS+32}\n    ds_write_b64 v{B+4}, v[{B+2}:{B+3}]"))
    lds_signal(a, 24, B + 5, B + 6)
    stamp(a, 4)
    a.label("L_NOKEY")
    a.reset()
    a(f"""
    s_cmp_ge_u32 s6, 18
    s_cbranch_scc1 L_NOMOE
    s_cmp_ge_u32 s6, 14
    s_cbranch_scc1 L_DOWN
    """)

    def get_idx():
        a(f"""
        v_mov_b32 v32, {L_KEYS+32}
        ds_read_b64 v[34:35], v32
        ds_read_b32 v36, v32 offset:{L_NONCE-L_KEYS-32}
        s_waitcnt lgkmcnt(0)
        v_readfirstlane_b32 s50, v34
        v_readfirstlane_b32 s51, v35
        v_readfirstlane_b32 s10, v36
        s_and_b32 s8, s50, 0x7ff
        s_sub_u32 s8, 0x7ff, s8
        s_and_b32 s9, s51, 0x7ff
        s_sub_u32 s9, 0x7ff, s9
        """)
    a(f"""
    s_mul_i32 s11, s5, 7
    s_lshr_b32 s14, s6, 1
    s_add_u32 s11, s11, s14
    s_and_b32 s15, s6, 1
    s_cmp_eq_u32 s15, 0
    s_cselect_b32 s54, s38, s40
    s_cselect_b32 s55, s39, s41
    v_lshrrev_b32 v10, 2, v8
    v_lshlrev_b32 v4, 5, v10
    v_lshl_add_u32 v4, v9, 3, v4
    s_lshl_b32 s14, s7, 7
    v_add_u32 v4, s14, v4
    v_mul_u32_u24 v4, 3584, v4
    v_and_b32 v5, 3, v1
    v_lshl_add_u32 v4, v5, 4, v4
    s_lshl_b32 s14, s11, 6
    v_add_u32 v4, s14, v4
    v_add_u32 v6, 7168, v4
    v_add_u32 v7, 14336, v4
    v_add_u32 v11, 21504, v4
    """)
    L, F, AC = 112, 64, 32
    a(f"""
    v_and_b32 v13, 31, v1
    v_lshlrev_b32 v13, 3, v13
    s_lshl_b32 s14, s7, 8
    v_add_u32 v13, s14, v13
    v_lshrrev_b32 v19, 5, v1
    v_lshl_add_u32 v22, v19, 10, v13
    v_add_u32 v22, {L_MOE}, v22
    v_and_b32 v19, 1, v1
    v_lshlrev_b32 v19, 10, v19
    v_lshl_add_u32 v19, v9, 4, v19
    v_lshl_add_u32 v19, v10, 6, v19
    s_add_u32 s14, s14, {L_MOE}
    v_add_u32 v19, s14, v19
    v_cmp_eq_u32 s[60:61], v9, v10
    s_lshl_b32 s14, s7, 10
    s_add_u32 s14, s14, {L_MP}
    v_lshl_add_u32 v24, v10, 8, s14
    v_lshl_add_u32 v24, v5, 5, v24
    v_lshlrev_b32 v23, 2, v1
    v_add_u32 v23, {L_MP}, v23
    v_lshrrev_b32 v25, 2, v1
    v_lshlrev_b32 v25, 4, v25
    s_lshl_b32 s14, s11, 8
    s_mul_i32 s59, s15, 14336
    s_add_u32 s14, s14, s59
    s_add_u32 s14, s14, {WS_HG}
    v_add_u32 v25, s14, v25
    s_waitcnt lgkmcnt(0)
    s_barrier
    """)
    get_idx()
    a(f"""
    s_mov_b32 s52, 0
    s_mov_b32 s53, -1
    v_mov_b32 v12, s8
    v_mov_b32 v14, s9
    v_cndmask_b32 v12, v12, v14, s[52:53]
    v_lshl_add_u32 v14, v12, 10, v13
    global_load_dwordx2 v[16:17], v14, {P_X}
    v_lshlrev_b32 v15, 3, v12
    global_load_dwordx2 v[30:31], v15, {P_WS} sc0 sc1
    s_barrier
    """)
    for e2, ar in enumerate((4, 6, 7, 11)):
        a(f"global_load_dwordx4 v[{L+8*e2}:{L+8*e2+3}], v{ar}, s[54:55]")
        a(f"global_load_dwordx4 v[{L+8*e2+4}:{L+8*e2+7}], v{ar}, s[54:55] offset:3584")
    stamp(a, 1)
    a("s_waitcnt vmcnt(8)")
    a("v_mov_b32 v18, v30")
    stamp(a, 5)
    a(f"""
    v_and_b32 v20, 0xffff0000, v18
    v_rcp_f32 v20, v20
    v_lshlrev_b32 v21, 16, v18
    """)
    unpack(a, 26, 27, 16)
    unpack(a, 28, 29, 17)
    for k in range(4):
        a(f"v_sub_f32 v{26+k}, v{26+k}, v21")
    a("v_cvt_pk_bf16_f32 v16, v26, v27\nv_cvt_pk_bf16_f32 v17, v28, v29")
    unpack(a, 26, 27, 16)
    unpack(a, 28, 29, 17)
    for k in range(4):
        a(f"v_mul_f32 v{26+k}, v{26+k}, v20")
    a("v_cvt_pk_bf16_f32 v16, v26, v27\nv_cvt_pk_bf16_f32 v17, v28, v29")
    a(f"""
    ds_write_b64 v22, v[16:17]
    ds_read_b128 v[28:31], v19
    s_waitcnt lgkmcnt(0)
    """)
    a("s_setprio 3\ns_waitcnt vmcnt(0)")
    stamp(a, 2)
    pack(L, F)
    for j in range(8):
        a(f"v_mfma_f32_16x16x32_bf16 v[{AC+4*j}:{AC+4*j+3}], v[28:31], v[{F+4*j}:{F+4*j+3}], 0")
    a("s_mov_b64 exec, s[60:61]")
    for j in range(8):
        a(f"ds_write2_b32 v24, v{AC+4*j}, v{AC+4*j+1} offset0:{j} offset1:{32+j}")
    a("s_mov_b64 exec, -1")
    lds_signal(a, 8, 12, 13)
    a(f"""
    s_cmp_eq_u32 s7, 0
    s_cbranch_scc0 L_MFIN
    """)
    lds_wait_flag(a, "G", 8, 4, 12, 13, sleep=False)
    for i in range(16):
        a(f"ds_read_b32 v{32+i}, v23 offset:{256*i}")
    a(f"""
    v_mov_b32 v58, s10
    v_mov_b32 v59, s10
    s_waitcnt lgkmcnt(0)
    """)
    for st in (1, 2, 4, 8):
        for i in range(0, 16, 2 * st):
            a(f"v_add_f32 v{32+i}, v{32+i}, v{32+i+st}")
    a(f"""
    v_cvt_pk_bf16_f32 v32, v32, v32
    s_cmp_eq_u32 s15, 0
    s_cbranch_scc0 L_NOSILU
    v_lshlrev_b32 v32, 16, v32
    v_mul_f32 v33, {NEGL2E}, v32
    v_exp_f32 v33, v33
    v_add_f32 v33, 1.0, v33
    v_rcp_f32 v33, v33
    v_mul_f32 v32, v32, v33
    v_cvt_pk_bf16_f32 v32, v32, v32
    """)
    a.label("L_NOSILU")
    a.reset()
    a(f"""
    v_and_b32 v32, 0xffff, v32
    s_nop 1
    v_mov_b32_dpp v33, v32 quad_perm:[1,1,1,1] row_mask:0xf bank_mask:0xf
    v_mov_b32_dpp v34, v32 quad_perm:[2,2,2,2] row_mask:0xf bank_mask:0xf
    v_mov_b32_dpp v35, v32 quad_perm:[3,3,3,3] row_mask:0xf bank_mask:0xf
    v_lshl_or_b32 v56, v33, 16, v32
    v_lshl_or_b32 v57, v35, 16, v34
    s_mov_b32 exec_lo, 0x11111111
    s_mov_b32 exec_hi, 0x11111111
    global_store_dwordx4 v25, v[56:59], {P_WS} sc0 sc1
    s_mov_b64 exec, -1
    """)
    stamp(a, 6)
    a.label("L_MFIN")
    a.reset()
    finish(a)
    a.label("L_DOWN")
    a.reset()
    a(f"""
    s_lshl_b32 s11, s5, 2
    s_add_u32 s11, s11, s6
    s_sub_u32 s11, s11, 14
    v_lshrrev_b32 v10, 1, v8
    v_lshlrev_b32 v4, 5, v10
    v_lshl_add_u32 v4, v9, 3, v4
    s_lshl_b32 s14, s7, 8
    v_add_u32 v4, s14, v4
    v_lshlrev_b32 v4, 10, v4
    v_and_b32 v5, 1, v1
    v_lshl_add_u32 v4, v5, 4, v4
    s_lshl_b32 s14, s11, 5
    v_add_u32 v4, s14, v4
    v_add_u32 v5, 0x1000, v4
    s_cmp_eq_u32 s7, 3
    s_cselect_b32 s15, 0, {1024*1024}
    v_add_u32 v6, s15, v4
    v_add_u32 v7, s15, v5
    s_waitcnt lgkmcnt(0)
    """)
    L0, L1, F0, AC = 32, 64, 96, 128
    a("s_waitcnt lgkmcnt(0)\ns_barrier")
    get_idx()
    a("s_barrier")
    for e in range(8):
        a(f"global_load_dwordx4 v[{L0+4*e}:{L0+4*e+3}], v{4+(e>>2)}, s[42:43] offset:{1024*(e&3)}")
    for e in range(8):
        a(f"global_load_dwordx4 v[{L1+4*e}:{L1+4*e+3}], v{6+(e>>2)}, s[42:43] offset:{1024*(e&3)}")
    stamp(a, 1)
    a("s_waitcnt vmcnt(8)")
    pack(L0, F0)
    a("s_waitcnt vmcnt(0)")
    stamp(a, 2)
    pack(L1, L0)
    F1 = L0
    a(f"""
    s_lshl_b32 s14, s7, 11
    s_add_u32 s14, s14, {WS_HG}
    v_lshl_add_u32 v12, v1, 4, s14
    s_cmp_eq_u32 s7, 3
    s_cselect_b32 s15, 0, 0x2000
    v_add_u32 v13, s15, v12
    s_mov_b32 s62, 0
    """)
    a(f"""
    s_lshl_b32 s14, s7, 11
    s_add_u32 s14, s14, {L_MOE}
    v_lshrrev_b32 v24, 4, v1
    v_lshlrev_b32 v24, 6, v24
    v_and_b32 v25, 7, v1
    v_lshl_add_u32 v24, v25, 3, v24
    v_bfe_u32 v25, v1, 3, 1
    v_lshl_add_u32 v24, v25, 9, v24
    v_add_u32 v24, s14, v24
    v_add_u32 v14, 14336, v12
    v_add_u32 v15, 14336, v13
    v_and_b32 v25, 1, v1
    v_lshlrev_b32 v25, 9, v25
    v_lshl_add_u32 v25, v10, 6, v25
    v_lshl_add_u32 v25, v9, 4, v25
    v_add_u32 v25, s14, v25
    """)
    a(f"""
    v_lshrrev_b32 v26, 1, v10
    v_cmp_eq_u32 s[56:57], v9, v26
    v_and_b32 v26, 1, v10
    v_cmp_eq_u32 s[60:61], 1, v26
    s_lshl_b32 s14, s7, 10
    s_add_u32 s14, s14, {L_MP}
    v_lshl_add_u32 v160, v10, 7, s14
    v_and_b32 v26, 1, v1
    v_lshl_add_u32 v160, v26, 5, v160
    v_bfe_u32 v28, v1, 4, 1
    v_bfe_u32 v27, v1, 1, 3
    s_lshl_b32 s14, s11, 3
    v_add_u32 v26, s14, v27
    v_lshlrev_b32 v161, 4, v26
    v_lshl_add_u32 v161, v28, 12, v161
    v_add_u32 v161, {WS_TG}, v161
    v_cmp_eq_u32 vcc, 1, v28
    v_mov_b32 v30, s50
    v_mov_b32 v31, s51
    v_cndmask_b32 v30, v30, v31, vcc
    v_mov_b32 v163, s8
    v_mov_b32 v31, s9
    v_cndmask_b32 v163, v163, v31, vcc
    v_lshrrev_b32 v30, 16, v30
    v_bfe_i32 v31, v30, 15, 1
    v_not_b32 v31, v31
    v_or_b32 v31, 0x8000, v31
    v_xor_b32 v30, v30, v31
    v_lshlrev_b32 v30, 16, v30
    v_mul_f32 v30, {NEGL2E}, v30
    v_exp_f32 v30, v30
    v_add_f32 v30, 1.0, v30
    v_rcp_f32 v30, v30
    v_cvt_pk_bf16_f32 v30, v30, v30
    v_lshlrev_b32 v162, 16, v30
    v_lshlrev_b32 v163, 10, v163
    v_lshl_add_u32 v163, v26, 2, v163
    v_and_b32 v164, 31, v1
    v_lshlrev_b32 v164, 2, v164
    v_lshrrev_b32 v31, 5, v1
    v_lshl_add_u32 v164, v31, 11, v164
    v_add_u32 v164, {L_MP}, v164
    """)
    if os.environ.get("HWAIT", "0") == "1":
        lds_wait_flag(a, "HC", 48 + 28, 4, 26, 27, sleep=2)
    a("s_mov_b32 s62, 0")
    stamp(a, 3)
    a.label("L_HPOLL")
    a.reset()
    a(f"""
    global_load_dwordx4 v[64:67], v12, {P_WS} sc0 sc1
    global_load_dwordx4 v[68:71], v12, {P_WS} offset:1024 sc0 sc1
    global_load_dwordx4 v[72:75], v13, {P_WS} sc0 sc1
    global_load_dwordx4 v[76:79], v13, {P_WS} offset:1024 sc0 sc1
    global_load_dwordx4 v[80:83], v14, {P_WS} sc0 sc1
    global_load_dwordx4 v[84:87], v14, {P_WS} offset:1024 sc0 sc1
    global_load_dwordx4 v[88:91], v15, {P_WS} sc0 sc1
    global_load_dwordx4 v[92:95], v15, {P_WS} offset:1024 sc0 sc1
    s_waitcnt vmcnt(0)
    v_xor_b32 v16, s10, v67
    v_xor_b32 v17, s10, v71
    v_xor_b32 v18, s10, v75
    v_xor_b32 v19, s10, v79
    v_xor_b32 v20, s10, v83
    v_xor_b32 v21, s10, v87
    v_xor_b32 v22, s10, v91
    v_xor_b32 v23, s10, v95
    v_or3_b32 v16, v16, v17, v18
    v_or3_b32 v19, v19, v20, v21
    v_or3_b32 v16, v16, v22, v23
    v_or_b32 v16, v16, v19
    v_cmp_ne_u32 vcc, 0, v16
    s_cbranch_vccz L_HOK
    s_sleep 3
    s_add_u32 s62, s62, 1
    s_cmp_lt_u32 s62, {SPIN_MAX}
    s_cbranch_scc1 L_HPOLL
    """)
    a.label("L_HOK")
    a.reset()
    a("s_setprio 3")
    stamp(a, 10)
    T = 128
    for g in range(4):
        G, U = 64 + 4 * g, 80 + 4 * g
        for d in range(2):
            t = T + 4 * (2 * g + d)
            a(f"""
            v_lshlrev_b32 v{t}, 16, v{G+d}
            v_and_b32 v{t+1}, 0xffff0000, v{G+d}
            v_lshlrev_b32 v{t+2}, 16, v{U+d}
            v_and_b32 v{t+3}, 0xffff0000, v{U+d}
            """)
    for k in range(8):
        t = T + 4 * k
        a(f"v_pk_mul_f32 v[{t}:{t+1}], v[{t}:{t+1}], v[{t+2}:{t+3}]")
    for g in range(4):
        G = 64 + 4 * g
        for d in range(2):
            t = T + 4 * (2 * g + d)
            a(f"v_cvt_pk_bf16_f32 v{G+d}, v{t}, v{t+1}")
    a(f"""
    ds_write_b64 v24, v[64:65]
    ds_write_b64 v24, v[68:69] offset:256
    ds_read_b128 v[16:19], v25
    ds_write_b64 v24, v[72:73] offset:1024
    ds_write_b64 v24, v[76:77] offset:1280
    ds_read_b128 v[20:23], v25 offset:1024
    s_waitcnt lgkmcnt(3)
    """)
    for j in range(8):
        a(f"v_mfma_f32_16x16x32_bf16 v[{AC+4*j}:{AC+4*j+3}], v[16:19], v[{F0+4*j}:{F0+4*j+3}], 0")
    a(f"""
    s_waitcnt lgkmcnt(0)
    s_cmp_eq_u32 s7, 3
    s_cbranch_scc1 L_DSKIP
    """)
    for j in range(8):
        a(f"v_mfma_f32_16x16x32_bf16 v[{AC+4*j}:{AC+4*j+3}], v[20:23], v[{F1+4*j}:{F1+4*j+3}], v[{AC+4*j}:{AC+4*j+3}]")
    a.label("L_DSKIP")
    a.reset()
    a("s_nop 7")
    for j in range(8):
        a(f"v_cndmask_b32 v{AC+4*j}, v{AC+4*j}, v{AC+4*j+2}, s[60:61]")
        a(f"v_cndmask_b32 v{AC+4*j+1}, v{AC+4*j+1}, v{AC+4*j+3}, s[60:61]")
    a("s_mov_b64 exec, s[56:57]")
    for j in range(8):
        a(f"ds_write2_b32 v160, v{AC+4*j}, v{AC+4*j+1} offset0:{j} offset1:{16+j}")
    a("s_mov_b64 exec, -1")
    lds_signal(a, 8, 12, 13)
    a(f"""
    s_cmp_eq_u32 s7, 3
    s_cbranch_scc0 L_DFIN
    global_load_dwordx4 v[64:67], v161, {P_WS} sc0 sc1
    """)
    lds_wait_flag(a, "D", 8, 4, 12, 13, sleep=False)
    for i in range(16):
        a(f"ds_read_b32 v{32+i}, v164 offset:{128*i}")
    a("s_waitcnt lgkmcnt(0)")
    for st in (1, 2, 4, 8):
        for i in range(0, 16, 2 * st):
            a(f"v_add_f32 v{32+i}, v{32+i}, v{32+i+st}")
    a(f"""
    v_mov_b32 v33, v32
    v_mov_b32 v62, 0x3a000000
    s_mov_b32 s62, 0
    v_permlane32_swap_b32 v32, v33
    v_add_f32 v52, v32, v33
    v_mov_b32_dpp v53, v52 quad_perm:[1,1,3,3] row_mask:0xf bank_mask:0xf
    v_cvt_pk_bf16_f32 v52, v52, v53
    v_and_b32 v53, 0xffff0000, v52
    v_lshlrev_b32 v52, 16, v52
    v_mul_f32 v52, v52, v162
    v_mul_f32 v53, v53, v162
    v_cvt_pk_bf16_f32 v52, v52, v53
    v_and_b32 v53, 0xffff0000, v52
    v_lshlrev_b32 v52, 16, v52
    """)
    stamp(a, 5)
    a.label("L_TPOLL")
    a.reset()
    a(f"""
    s_waitcnt vmcnt(0)
    v_cmp_ne_u32 vcc, s10, v67
    s_cbranch_vccz L_TOK
    s_sleep 1
    s_add_u32 s62, s62, 1
    s_cmp_ge_u32 s62, {SPIN_MAX}
    s_cbranch_scc1 L_TOK
    global_load_dwordx4 v[64:67], v161, {P_WS} sc0 sc1
    s_branch L_TPOLL
    """)
    a.label("L_TOK")
    a.reset()
    stamp(a, 6)
    a(f"""
    v_lshlrev_b32 v60, 16, v65
    v_and_b32 v61, 0xffff0000, v65
    v_fma_f32 v52, v60, v62, v52
    v_fma_f32 v53, v61, v62, v53
    v_cvt_pk_bf16_f32 v52, v52, v53
    v_and_b32 v53, 0xffff0000, v52
    v_lshlrev_b32 v52, 16, v52
    v_lshlrev_b32 v60, 16, v64
    v_and_b32 v61, 0xffff0000, v64
    v_add_f32 v52, v52, v60
    v_add_f32 v53, v53, v61
    v_cvt_pk_bf16_f32 v52, v52, v53
    s_mov_b64 exec, 0x55555555
    global_store_dword v163, v52, {P_OUT} sc0 sc1
    s_mov_b64 exec, -1
    """)
    a.label("L_DFIN")
    a.reset()
    finish(a)
    a.label("L_NOMOE")
    a.reset()
    a("s_waitcnt lgkmcnt(0)")
    finish(a)
    a.label("L_END")
    a("s_endpgm")


def main(out):
    a = Asm()
    a.raw(f"; @launch grid=(256,1,1) block=(768,1,1) lds={LDS_SIZE}")
    a.raw('.amdgcn_target "amdgcn-amd-amdhsa--gfx950"')
    a.raw(".text")
    gen(a)
    a.raw('.section .rodata,"a"')
    a.raw(f""".p2align 6
.amdhsa_kernel {NAME}_kernel
  .amdhsa_next_free_vgpr 168
  .amdhsa_next_free_sgpr 102
  .amdhsa_accum_offset 168
  .amdhsa_group_segment_fixed_size 0
  .amdhsa_kernarg_size 136
  .amdhsa_user_sgpr_count 2
  .amdhsa_user_sgpr_kernarg_segment_ptr 1
  .amdhsa_system_sgpr_workgroup_id_x 1
  .amdhsa_float_denorm_mode_32 3
.end_amdhsa_kernel
""")
    open(out, "w").write(a.text())
    print("nops inserted:", a.nops_inserted)


if __name__ == "__main__":
    import subprocess
    out = sys.argv[1] if len(sys.argv) > 1 else "k2.s"
    main(out)
    subprocess.check_call(["clang", "-x", "assembler", "-target", "amdgcn-amd-amdhsa", "-mcpu=gfx950", "-c", out, "-o", "pass1.o"])
    syms = subprocess.check_output(["llvm-objdump", "-t", "pass1.o"]).decode().split("\n")
    addr = {l.split()[-1]: int(l.split()[0], 16) for l in syms if ".text" in l and len(l.split()) >= 5}
    CODE_SPAN[0] = addr["L_END"] - addr[NAME + "_kernel"] - 16
    print("code bytes", CODE_SPAN[0] + 16)
    main(out)
```

```python
import sys, os
from asmlib import Asm

NAME = "parallel_sum__ssm_conv_s4__moe_arch_mod__prompt"
MB = 1 << 20
STAMP = os.environ.get("STAMP", "0") == "1"
WS_GR = 0x0
WS_RG = 0x4000
WS_HG = 0x8000
WS_TG = 0x10000
WS_C2 = 0x28000
WS_W0 = 0x30000
WS_FL = 0x20000
WS_XC = 1 * MB
WS_STAMP = 16 * MB

LOG2E = "0x3fb8aa3b"
NEGL2E = "0xbfb8aa3b"
SPIN_MAX = 1 << 18
XL = os.environ.get("XC_LOCAL", "1") == "1"
XS = "" if XL else " sc0 sc1"
CODE_SPAN = [0x1000]

ROW = 544
A_SZ = 32 * ROW
AB_CH = 2 * A_SZ
UCOPY = 4160
U_CH = 4 * UCOPY
L_PA = 0
L_K = 2 * AB_CH
K_CH = 4608
L_U = L_K + 2 * K_CH
L_MOE = L_U + 2 * U_CH
L_MP = L_MOE + 8192
L_MISC = L_MP + 4096
L_KEYS = L_MISC
L_NONCE = L_MISC + 64
L_KS = L_MISC + 80
L_FLAG = L_MISC + 96
T_OFF = L_MISC + 192
LDS_SIZE = T_OFF + 8448

P_X, P_ARE, P_AIM, P_BRE, P_BIM, P_CRE, P_CIM, P_LDT = [f"s[{16+2*i}:{17+2*i}]" for i in range(8)]
P_DSK, P_WR, P_OUT, P_DBG, P_WS = "s[32:33]", "s[36:37]", "s[44:45]", "s[46:47]", "s[48:49]"


def stamp(a, idx):
    if STAMP:
        a(f"{'s_memtime' if os.environ.get('STAMPCLK') == '1' else 's_memrealtime'} s[{64+2*idx}:{65+2*idx}]")


def stamp_init(a):
    if STAMP:
        for i in range(64, 96, 2):
            a(f"s_mov_b64 s[{i}:{i+1}], 0")
        stamp(a, 0)


def finish(a):
    if STAMP:
        a("s_waitcnt vmcnt(0)")
        stamp(a, 15)
        a(f"""
        s_lshl_b32 s98, s2, 4
        s_add_u32 s98, s98, s3
        s_lshl_b32 s98, s98, 7
        s_add_u32 s98, s98, {WS_STAMP}
        s_waitcnt lgkmcnt(0)
        s_mov_b64 exec, 1
        v_mov_b32 v0, s98
        """)
        for q in range(8):
            for k in range(4):
                a(f"v_mov_b32 v{4+k}, s{64+4*q+k}")
            a(f"global_store_dwordx4 v0, v[4:7], {P_WS} offset:{16*q}")
            a("s_nop 1")
    a("s_endpgm")


def cmul(a, R, X, Y, T):
    a(f"v_pk_mul_f32 v[{T}:{T+1}], v[{X}:{X+1}], v[{Y}:{Y+1}] op_sel:[0,0] op_sel_hi:[0,1]")
    a(f"v_pk_fma_f32 v[{R}:{R+1}], v[{X}:{X+1}], v[{Y}:{Y+1}], v[{T}:{T+1}] op_sel:[1,1,0] op_sel_hi:[1,0,1] neg_lo:[1,0,0]")


ROWSTEPS = ["quad_perm:[1,0,3,2] row_mask:0xf bank_mask:0xf",
            "quad_perm:[2,3,0,1] row_mask:0xf bank_mask:0xf",
            "row_half_mirror row_mask:0xf bank_mask:0xf",
            "row_mirror row_mask:0xf bank_mask:0xf"]


def dpp_reduce(a, op, regs):
    for s in ROWSTEPS + ["row_bcast:15 row_mask:0xa bank_mask:0xf", "row_bcast:31 row_mask:0xc bank_mask:0xf"]:
        for r in regs:
            a(f"{op}_dpp v{r}, v{r}, v{r} {s}")


def half_reduce_add(a, regs, tmps):
    for s in ROWSTEPS:
        for r in regs:
            a(f"v_add_f32_dpp v{r}, v{r}, v{r} {s}")
    for r, t in zip(regs, tmps):
        a(f"v_mov_b32 v{t}, v{r}")
    for r, t in zip(regs, tmps):
        a(f"v_permlane16_swap_b32 v{r}, v{t}")
    for r, t in zip(regs, tmps):
        a(f"v_add_f32 v{r}, v{r}, v{t}")


def anchor(a, P, vA, vB, lf, t0, t1):
    if lf is None:
        a(f"v_exp_f32 v{t0}, v{vA}")
        a(f"v_fract_f32 v{t1}, v{vB}")
    else:
        a(f"v_mul_f32 v{t0}, {lf}, v{vA}")
        a(f"v_mul_f32 v{t1}, {lf}, v{vB}")
        a(f"v_exp_f32 v{t0}, v{t0}")
        a(f"v_fract_f32 v{t1}, v{t1}")
    a(f"v_cos_f32 v{P}, v{t1}")
    a(f"v_sin_f32 v{P+1}, v{t1}")
    a(f"v_mul_f32 v{P}, v{t0}, v{P}")
    a(f"v_mul_f32 v{P+1}, v{t0}, v{P+1}")


def unpack(a, lo, hi, src):
    a(f"v_lshlrev_b32 v{lo}, 16, v{src}")
    a(f"v_and_b32 v{hi}, 0xffff0000, v{src}")


def lds_wait_flag(a, tag, off, val, vaddr, vtmp, sleep=True, saddr=None):
    a(f"""
    v_mov_b32 v{vaddr}, {saddr if saddr else L_FLAG+off}
    s_mov_b32 s62, 0
    """)
    a.label(f"LW_{tag}")
    a.reset()
    a(f"""
    ds_read_b32 v{vtmp}, v{vaddr}
    s_add_u32 s62, s62, 1
    s_waitcnt lgkmcnt(0)
    v_readfirstlane_b32 s63, v{vtmp}
    s_cmp_ge_u32 s63, {val}
    s_cbranch_scc1 LWD_{tag}
    {("s_sleep %d" % int(sleep)) if sleep else ""}
    s_cmp_lt_u32 s62, {SPIN_MAX}
    s_cbranch_scc1 LW_{tag}
    """)
    a.label(f"LWD_{tag}")
    a.reset()


def lds_signal(a, off, vaddr, vtmp):
    a(f"""
    v_mov_b32 v{vaddr}, {L_FLAG+off}
    v_mov_b32 v{vtmp}, 1
    s_mov_b64 exec, 1
    ds_add_u32 v{vaddr}, v{vtmp}
    s_mov_b64 exec, -1
    """)


def piece_hash(a, dst, d, vmul, t):
    for D, B in zip(dst, d):
        a(f"v_alignbit_b32 v{t}, v{B+1}, v{B+1}, 25")
        a(f"v_alignbit_b32 v{t+1}, v{B+2}, v{B+2}, 19")
        a(f"v_alignbit_b32 v{D}, v{B+3}, v{B+3}, 10")
        a(f"v_add3_u32 v{t}, v{t}, v{t+1}, v{B}")
        a(f"v_add_u32 v{D}, v{D}, v{t}")
        a(f"v_mul_lo_u32 v{D}, v{D}, v{vmul}")
    for s in ROWSTEPS:
        for D in dst:
            a(f"v_add_u32_dpp v{D}, v{D}, v{D} {s}")


def lbar(a, n, va=158, vb=159, sleep=False):
    a("s_waitcnt lgkmcnt(0)")
    a(f"""
    v_mov_b32 v{va}, {L_FLAG+12}
    v_mov_b32 v{vb}, 1
    s_mov_b64 exec, 1
    ds_add_u32 v{va}, v{vb}
    s_mov_b64 exec, -1
    s_mov_b32 s62, 0
    """)
    a.label(f"LB_{n}")
    a.reset()
    a(f"""
    ds_read_b32 v{vb}, v{va}
    s_add_u32 s62, s62, 1
    s_waitcnt lgkmcnt(0)
    v_readfirstlane_b32 s63, v{vb}
    s_cmp_ge_u32 s63, {8*n}
    s_cbranch_scc1 LBD_{n}
    {"s_sleep 1" if sleep else ""}
    s_cmp_lt_u32 s62, {SPIN_MAX}
    s_cbranch_scc1 LB_{n}
    """)
    a.label(f"LBD_{n}")
    a.reset()


XG = 160
XN = 164


def conv_loop(a, ACC, FB, NS, fillers):
    desc = []
    for lv in range(7, -1, -1):
        for o in range(0, lv + 1):
            if lv + o <= 7:
                desc.append((lv, o))
                if o != lv:
                    desc.append((o, lv))
    asc = [(q, ct - q) for ct in range(8) for q in range(ct + 1)]
    if os.environ.get("CV_SPREAD") == "1":
        d2 = []
        for lv in range(7, -1, -1):
            A = [(lv, o) for o in range(0, lv + 1) if lv + o <= 7]
            B = [(o, lv) for o in range(0, lv) if lv + o <= 7]
            d2 += A + B
        desc = d2
    ml = []
    loads = []
    for ri in range(4):
        pairs = asc if (ri == 3 and os.environ.get("CONV_ASC", "1") == "1") else desc
        for (q, m) in pairs:
            ml.append((ri, q, m))
            for f in ((ri, "U", q), (ri, "K", m)):
                if f not in loads:
                    loads.append(f)
    last_use = {}
    last_ct = {}
    for i, (ri, q, m) in enumerate(ml):
        last_use[(ri, "U", q)] = i
        last_use[(ri, "K", m)] = i
        last_ct[q + m] = i
    free = list(range(NS))
    slot = {}
    ready = {}
    st = {"iss": 0, "done": 0}
    li = 0
    fillers = list(fillers)

    def issue(key):
        sl = free.pop(0)
        slot[key] = sl
        reg = FB + 4 * sl
        ri, kind, n = key
        if os.environ.get("CV_NOREAD") == "1":
            pass
        elif kind == "U" and os.environ.get("CV_U128") == "1":
            a(f"ds_read_b128 v[{reg}:{reg+3}], v13 offset:{512*n+64*ri}")
            st["iss"] += 1
        elif kind == "U":
            a(f"ds_read_b64 v[{reg}:{reg+1}], v12 offset:{512*n+64*ri}")
            a(f"ds_read_b64 v[{reg+2}:{reg+3}], v12 offset:{512*n+64*ri+8}")
            st["iss"] += 2
        else:
            a(f"ds_read_b128 v[{reg}:{reg+3}], v13 offset:{512*(7-n)+64*ri}")
            st["iss"] += 1
        ready[key] = st["iss"]

    def dump(ct):
        a(f"ds_write_b128 v14, v[{ACC+4*ct}:{ACC+4*ct+3}] offset:{4096*ct}")
        a("s_mov_b64 exec, 1")
        a(f"ds_add_u32 v10, v11 offset:{4*ct}")
        a("s_mov_b64 exec, -1")
        st["iss"] += 2

    pend = []
    started = set()
    while li < len(loads) and free and st["iss"] < 13:
        issue(loads[li]); li += 1
    for i, (ri, q, m) in enumerate(ml):
        ku, kk = (ri, "U", q), (ri, "K", m)
        while ku not in ready or kk not in ready:
            issue(loads[li]); li += 1
        need = max(ready[ku], ready[kk])
        if need > st["done"]:
            a(f"s_waitcnt lgkmcnt({min(st['iss'] - need, 15)})")
            st["done"] = need
        ct = q + m
        ru, rk = FB + 4 * slot[ku], FB + 4 * slot[kk]
        cin = f"v[{ACC+4*ct}:{ACC+4*ct+3}]" if ct in started else "0"
        started.add(ct)
        a(f"v_mfma_f32_16x16x32_f16 v[{ACC+4*ct}:{ACC+4*ct+3}], v[{ru}:{ru+3}], v[{rk}:{rk+3}], {cin}")
        for k in (ku, kk):
            if last_use[k] == i:
                free.append(slot[k])
        if last_ct[ct] == i:
            pend.append((i + 4 if os.environ.get("CONV_EARLY", "1") == "1" else 10**6, ct))
        did = False
        if pend and pend[0][0] <= i:
            dump(pend.pop(0)[1]); did = True
        if not did and li < len(loads) and free and st["iss"] - st["done"] < 13:
            issue(loads[li]); li += 1; did = True
        if not did and fillers and i > 8 and os.environ.get("CONV_FILL", "1") == "1":
            a(fillers.pop(0))
    for _, ct in pend:
        dump(ct)
    for f in fillers:
        a(f)


EA = 129
ED = 138


def epi_addr():
    return [l.strip() for l in f"""
    v_bfe_u32 v138, v1, 3, 2
    v_xor_b32 v138, v138, v1
    v_lshrrev_b32 v139, 8, v4
    v_lshlrev_b32 v139, 12, v139
    v_lshl_add_u32 v129, v138, 4, v139
    v_add_u32 v129, {L_PA}, v129
    s_lshl_b32 s58, s4, 13
    s_add_u32 s58, s58, {WS_XC}
    v_lshl_add_u32 v130, v4, 2, s58
    s_lshl_b32 s58, s4, 7
    s_add_u32 s58, s58, {WS_C2}
    v_lshrrev_b32 v131, 6, v4
    v_lshl_add_u32 v131, v131, 2, s58
    v_lshrrev_b32 v138, 4, v0
    v_and_b32 v139, 15, v0
    s_lshl_b32 s58, s5, 18
    s_lshl_b32 s59, s6, 8
    s_add_u32 s58, s58, s59
    s_add_u32 s58, s58, {WS_XC}
    v_lshlrev_b32 v132, 13, v138
    v_lshl_add_u32 v132, v139, 4, v132
    v_add_u32 v132, s58, v132
    s_lshl_b32 s58, s5, 12
    s_lshl_b32 s59, s6, 2
    s_add_u32 s58, s58, s59
    s_add_u32 s58, s58, {WS_C2}
    v_lshl_add_u32 v133, v138, 7, s58
    v_mul_u32_u24 v134, {4*33*4}, v139
    v_lshl_add_u32 v134, v138, 2, v134
    v_add_u32 v134, {T_OFF}, v134
    v_lshrrev_b32 v137, 3, v0
    v_and_b32 v139, 7, v0
    v_mul_u32_u24 v135, {33*4}, v137
    v_lshl_add_u32 v135, v139, 4, v135
    s_lshl_b32 s58, s6, 6
    v_add_u32 v137, s58, v137
    v_lshlrev_b32 v136, 10, v137
    v_lshl_add_u32 v136, v139, 4, v136
    s_lshl_b32 s58, s5, 7
    v_add_u32 v136, s58, v136
    """.strip().split("\n")]


def epi_data():
    L = []
    for r in range(4):
        L += [f"v_lshlrev_b32 v{148+2*r}, 16, v{XN+r}", f"v_and_b32 v{149+2*r}, 0xffff0000, v{XN+r}"]
    for r in range(4):
        L += [f"v_mul_f32 v{140+2*r}, v{148+2*r}, v156", f"v_mul_f32 v{141+2*r}, v{149+2*r}, v157"]
    for r in range(4):
        L += [f"v_cvt_pk_bf16_f32 v{140+2*r}, v{140+2*r}, v{141+2*r}"]
    for r in range(4):
        L += [f"v_and_b32 v{141+2*r}, 0xffff0000, v{140+2*r}", f"v_lshlrev_b32 v{140+2*r}, 16, v{140+2*r}"]
    return L


def epilogue(a):
    a(f"""
    s_lshl_b32 s13, s14, 2
    s_add_u32 s13, s13, {L_FLAG+48}
    v_mov_b32 v6, s13
    v_mov_b32 v7, {L_KS}
    s_mov_b32 s62, 0
    """)
    a.label("EP_RD")
    a.reset()
    a(f"""
    ds_read_b32 v30, v6
    ds_read_b32 v31, v7 offset:{L_FLAG+24-L_KS}
    ds_read_b128 v[24:27], v7
    ds_read_b32 v5, v7 offset:{L_FLAG+32-L_KS}
    ds_read_b128 v[8:11], v129
    ds_read_b128 v[12:15], v129 offset:1024
    ds_read_b128 v[16:19], v129 offset:2048
    ds_read_b128 v[20:23], v129 offset:3072
    v_mov_b32 v28, 0x3a000000
    v_mov_b32 v29, 0x3a000000
    v_and_b32 v82, 15, v1
    v_lshl_add_u32 v82, v82, 1, 1
    """)
    for r in range(4):
        unpack(a, 48 + 2 * r, 49 + 2 * r, XG + r)
    a(f"""
    s_waitcnt lgkmcnt(4)
    v_readfirstlane_b32 s50, v30
    v_readfirstlane_b32 s51, v31
    v_readfirstlane_b32 s8, v26
    v_readfirstlane_b32 s9, v27
    v_readfirstlane_b32 s12, v5
    s_add_u32 s62, s62, 1
    s_cmp_ge_u32 s50, 4
    s_cselect_b32 s52, 1, 0
    s_cmp_ge_u32 s51, 1
    s_cselect_b32 s53, s52, 0
    s_cmp_ge_u32 s62, {SPIN_MAX}
    s_cselect_b32 s53, 1, s53
    s_cmp_eq_u32 s53, 1
    s_cbranch_scc1 EP_GO
    s_waitcnt lgkmcnt(0)
    s_branch EP_RD
    """)
    a.label("EP_GO")
    a.reset()
    stamp(a, 12)
    a("s_waitcnt lgkmcnt(2)")
    for r in range(4):
        a(f"v_add_f32 v{60+2*r}, v{8+r}, v{12+r}")
    a("s_waitcnt lgkmcnt(0)")
    for r in range(4):
        a(f"v_add_f32 v{61+2*r}, v{16+r}, v{20+r}")
    for r in range(4):
        a(f"v_pk_mul_f32 v[{60+2*r}:{61+2*r}], v[{60+2*r}:{61+2*r}], v[24:25]")
    for r in range(4):
        a(f"v_cvt_pk_bf16_f32 v{56+r}, v{60+2*r}, v{61+2*r}")
    for r in range(4):
        unpack(a, 60 + 2 * r, 61 + 2 * r, 56 + r)
    for r in range(4):
        a(f"v_pk_add_f32 v[{60+2*r}:{61+2*r}], v[{60+2*r}:{61+2*r}], v[{140+2*r}:{141+2*r}]")
    for r in range(4):
        a(f"v_cvt_pk_bf16_f32 v{56+r}, v{60+2*r}, v{61+2*r}")
    for r in range(4):
        unpack(a, 60 + 2 * r, 61 + 2 * r, 56 + r)
    for r in range(4):
        a(f"v_pk_add_f32 v[{60+2*r}:{61+2*r}], v[{60+2*r}:{61+2*r}], v[{48+2*r}:{49+2*r}]")
    for r in range(4):
        a(f"v_cvt_pk_bf16_f32 v{56+r}, v{60+2*r}, v{61+2*r}")
    for r in range(4):
        unpack(a, 60 + 2 * r, 61 + 2 * r, 56 + r)
    for r in range(4):
        a(f"v_pk_fma_f32 v[{60+2*r}:{61+2*r}], v[{148+2*r}:{149+2*r}], v[28:29], v[{60+2*r}:{61+2*r}]")
    for r in range(4):
        a(f"v_cvt_pk_bf16_f32 v{68+r}, v{60+2*r}, v{61+2*r}")
    a(f"""
    s_cmp_lg_u32 s12, 0
    s_cbranch_scc1 EP_NOX
    global_store_dwordx4 v130, v[68:71], {P_WS}
    """)
    piece_hash(a, [8], [68], 82, 9)
    a(f"""
    v_add_u32 v8, s10, v8
    s_mov_b32 exec_lo, 0x00010001
    s_mov_b32 exec_hi, 0x00010001
    global_store_dword v131, v8, {P_WS}
    s_mov_b64 exec, -1
    """)
    a.label("EP_NOX")
    a.reset()
    a(f"""
    s_lshr_b32 s50, s8, 8
    s_lshr_b32 s51, s9, 8
    s_cmp_eq_u32 s50, s14
    s_cselect_b32 s52, 1, 0
    s_cmp_eq_u32 s51, s14
    s_cselect_b32 s53, 1, 0
    s_or_b32 s54, s52, s53
    s_cmp_eq_u32 s54, 0
    s_cbranch_scc1 EP_NOSEL
    s_lshl_b32 s55, s4, 4
    s_add_u32 s55, s55, {WS_TG}
    v_mov_b32 v74, 0
    v_mov_b32 v75, s10
    """)
    for r in range(4):
        a(f"""
        v_add_u32 v7, {r}, v4
        v_cmp_eq_u32 s[50:51], s8, v7
        v_cmp_eq_u32 s[52:53], s9, v7
        v_mov_b32 v72, v{56+r}
        v_mov_b32 v73, v{XN+r}
        v_mov_b32 v76, s55
        v_mov_b32 v77, 0x1000
        s_or_b64 s[56:57], s[50:51], s[52:53]
        v_cndmask_b32 v77, 0, v77, s[52:53]
        v_add_u32 v76, v76, v77
        s_mov_b64 exec, s[56:57]
        s_cbranch_execz EPN_{r}
        global_store_dwordx4 v76, v[72:75], {P_WS} sc0 sc1
        """)
        a.label(f"EPN_{r}")
        a.reset()
        a("s_mov_b64 exec, -1\ns_nop 1")
    a.label("EP_NOSEL")
    a.reset()
    stamp(a, 13)
    a(f"""
    s_cmp_lg_u32 s12, 0
    s_cbranch_scc1 EP_SCAT
    """)
    lds_wait_flag(a, "C", 48 + 28, 4, 10, 11)
    a("s_mov_b32 s62, 0")
    a.label("EP_POLL")
    a.reset()
    a(f"""
    global_load_dwordx4 v[8:11], v132, {P_WS} sc1
    global_load_dword v12, v133, {P_WS} sc1
    s_mov_b64 exec, -1
    s_waitcnt vmcnt(0)
    """)
    piece_hash(a, [13], [8], 82, 14)
    a(f"""
    v_add_u32 v13, s10, v13
    v_cmp_ne_u32 vcc, v13, v12
    s_cbranch_vccz EP_GOT
    s_add_u32 s62, s62, 1
    s_mov_b64 exec, vcc
    s_cmp_lt_u32 s62, {SPIN_MAX}
    s_cbranch_scc1 EP_POLL
    s_mov_b64 exec, -1
    """)
    a.label("EP_GOT")
    a.reset()
    stamp(a, 14)
    for r in range(4):
        a(f"ds_write_b32 v134, v{8+r} offset:{33*4*r}")
    lbar(a, 1, 14, 15)
    a(f"""
    v_add_u32 v135, {T_OFF}, v135
    ds_read2_b32 v[8:9], v135 offset0:0 offset1:1
    ds_read2_b32 v[10:11], v135 offset0:2 offset1:3
    v_cmp_ne_u32 vcc, s8, v137
    v_cmp_ne_u32 s[50:51], s9, v137
    s_and_b64 exec, vcc, s[50:51]
    s_waitcnt lgkmcnt(0)
    global_store_dwordx4 v136, v[8:11], {P_OUT} sc0 sc1
    s_mov_b64 exec, -1
    s_branch EP_DONE
    """)
    a.label("EP_SCAT")
    a.reset()
    for r in range(4):
        a(f"""
        v_add_u32 v7, {r}, v4
        v_cmp_ne_u32 vcc, s8, v7
        v_cmp_ne_u32 s[50:51], s9, v7
        s_and_b64 exec, vcc, s[50:51]
        global_store_dword v3, v{68+r}, {P_OUT} offset:{1024*r}
        s_mov_b64 exec, -1
        """)
    a.label("EP_DONE")
    a.reset()


L_RB = L_MP
L_IDX = L_MISC + 88


def gen(a):
    K = NAME + "_kernel"
    a.raw(".globl " + K)
    a.raw(".p2align 8")
    a.raw(f".type {K},@function")
    a.label(K)
    a.reset()
    a(f"""
    s_cmp_ge_u32 s2, 256
    s_cbranch_scc1 L_END
    s_getpc_b64 s[100:101]
    """)
    stamp_init(a)
    a(f"""
    v_lshrrev_b32 v2, 6, v0
    v_and_b32 v1, 63, v0
    v_readfirstlane_b32 s3, v2
    s_cmp_lg_u32 s3, 11
    s_cbranch_scc1 L_NOPF
    v_lshlrev_b32 v12, 7, v1
    global_load_dword v14, v12, s[100:101]
    v_add_u32 v12, 0x2000, v12
    v_min_u32 v17, {CODE_SPAN[0]}, v12
    global_load_dword v15, v17, s[100:101]
    v_add_u32 v12, 0x2000, v12
    v_min_u32 v12, {CODE_SPAN[0]}, v12
    global_load_dword v16, v12, s[100:101]
    v_mov_b32 v8, 0
    v_mov_b32 v9, 0
    v_mov_b32 v10, 0
    v_mov_b32 v11, 0
    v_mov_b32 v13, {L_FLAG}
    ds_write_b128 v13, v[8:11]
    ds_write_b128 v13, v[8:11] offset:16
    ds_write_b128 v13, v[8:11] offset:32
    ds_write_b128 v13, v[8:11] offset:48
    ds_write_b128 v13, v[8:11] offset:64
    s_waitcnt lgkmcnt(0)
    """)
    a.label("L_NOPF")
    a.reset()
    a(f"""
    s_load_dwordx16 s[16:31], s[0:1], 0
    s_load_dwordx16 s[32:47], s[0:1], 64
    s_load_dwordx2 s[48:49], s[0:1], 128
    s_getreg_b32 s99, hwreg(HW_REG_XCC_ID)
    s_and_b32 s5, s2, 7
    s_lshr_b32 s6, s2, 3
    s_lshl_b32 s4, s5, 5
    s_add_u32 s4, s4, s6
    s_lshl_b32 s11, s4, 2
    s_bfe_u32 s7, s3, 0x10001
    s_and_b32 s13, s3, 1
    s_lshl_b32 s8, s4, 1
    s_add_u32 s8, s8, s7
    s_lshl_b32 s9, s8, 8
    v_lshlrev_b32 v5, 2, v1
    v_add_u32 v5, s9, v5
    s_and_b32 s99, s99, 15
    s_barrier
    s_cmp_ge_u32 s3, 8
    s_cbranch_scc1 L_MW
    s_cmp_ge_u32 s3, 4
    s_cbranch_scc1 L_BW
    """)
    a(f"""
    s_setprio 3
    v_and_b32 v6, 31, v1
    v_lshlrev_b32 v6, 4, v6
    v_lshrrev_b32 v7, 5, v1
    s_lshl_b32 s12, s2, 3
    s_lshl_b32 s14, s3, 1
    s_add_u32 s12, s12, s14
    v_add_u32 v7, s12, v7
    v_lshl_add_u32 v7, v7, 10, v6
    v_lshrrev_b32 v76, 7, v7
    v_and_b32 v76, 0xfffffff8, v76
    v_mov_b32 v134, 0
    v_mov_b32 v135, 0
    v_mov_b32 v136, 0
    v_mov_b32 v78, 0
    s_waitcnt lgkmcnt(0)
    global_load_dwordx4 v[8:11], v7, {P_X}
    global_load_dwordx4 v[12:15], v7, {P_X} offset:512
    global_load_dwordx4 v[16:19], v6, {P_WR}
    global_load_dwordx4 v[20:23], v6, {P_WR} offset:512
    s_load_dword s10, {P_WS}, {WS_W0}
    s_load_dword s15, {P_DSK}, s11
    s_branch L_PRE
    """)
    a.label("L_MW")
    a.reset()
    a(f"""
    s_setprio 3
    s_lshl_b32 s14, s4, 7
    s_add_u32 s14, s14, {WS_C2}
    v_mov_b32 v79, s14
    s_waitcnt lgkmcnt(0)
    global_load_dword v100, v5, {P_ARE}
    global_load_dword v101, v5, {P_AIM}
    global_load_dword v102, v5, {P_BRE}
    global_load_dword v103, v5, {P_BIM}
    global_load_dword v104, v5, {P_CRE}
    global_load_dword v105, v5, {P_CIM}
    global_load_dword v110, v79, {P_WS} sc1
    s_load_dword s56, {P_LDT}, s11
    """)
    stamp(a, 14)
    a("s_setprio 0\ns_branch L_MOE")
    a.label("L_BW")
    a.reset()
    a(f"""
    v_and_b32 v76, 15, v1
    v_lshrrev_b32 v77, 4, v1
    s_and_b32 s12, s3, 3
    s_lshl_b32 s14, s6, 16
    s_lshl_b32 s15, s5, 7
    s_add_u32 s14, s14, s15
    s_lshl_b32 s15, s12, 5
    s_add_u32 s14, s14, s15
    v_lshrrev_b32 v78, 2, v1
    v_lshlrev_b32 v78, 12, v78
    v_and_b32 v79, 3, v1
    v_lshl_add_u32 v78, v79, 3, v78
    v_add_u32 v78, s14, v78
    v_lshl_add_u32 v133, v76, 2, v77
    v_lshlrev_b32 v133, 2, v133
    s_lshl_b32 s14, s5, 18
    s_lshl_b32 s50, s6, 8
    s_add_u32 s14, s14, s50
    s_lshl_b32 s50, s12, 16
    s_add_u32 s14, s14, s50
    s_add_u32 s14, s14, {WS_XC}
    v_lshlrev_b32 v134, 14, v77
    v_lshl_add_u32 v134, v76, 4, v134
    v_add_u32 v134, s14, v134
    v_add_u32 v135, 0x2000, v134
    s_lshl_b32 s14, s4, 7
    s_lshl_b32 s50, s12, 5
    s_add_u32 s14, s14, s50
    s_add_u32 s14, s14, {WS_FL}
    v_lshl_add_u32 v136, v77, 3, s14
    s_waitcnt lgkmcnt(0)
    """)
    TE = int(os.environ.get("TILE_EARLY", "0"))

    def tile_loads():
        if XL and TE == 3:
            a(f"""
    global_load_dwordx4 v[148:151], v134, {P_WS} sc1
    global_load_dwordx4 v[152:155], v135, {P_WS} sc1
    global_load_dword v137, v136, {P_WS} sc1
    """)
        a(f"""
    global_load_dwordx2 v[140:141], v78, {P_X}
    global_load_dwordx2 v[142:143], v78, {P_X} offset:1024
    global_load_dwordx2 v[144:145], v78, {P_X} offset:2048
    global_load_dwordx2 v[146:147], v78, {P_X} offset:3072
    """)
        if XL and TE != 3:
            a(f"""
    global_load_dwordx4 v[148:151], v134, {P_WS} sc1
    global_load_dwordx4 v[152:155], v135, {P_WS} sc1
    global_load_dword v137, v136, {P_WS} sc1
    """)
    a(f"""
    global_load_dword v80, v5, {P_ARE}
    global_load_dword v81, v5, {P_AIM}
    """)
    if TE:
        tile_loads()
    a(f"""
    s_load_dword s15, {P_DSK}, s11
    s_load_dword s56, {P_LDT}, s11
    v_mov_b32 v8, 0
    v_mov_b32 v9, 0
    v_mov_b32 v10, 0
    v_mov_b32 v11, 0
    v_lshrrev_b32 v12, 5, v1
    v_mul_u32_u24 v12, {K_CH}, v12
    v_and_b32 v13, 31, v1
    v_lshl_add_u32 v12, v13, 4, v12
    v_add_u32 v12, {L_K+4096}, v12
    ds_write_b128 v12, v[8:11]
    """)
    a.label("L_PRE")
    a.reset()
    a(f"""
    v_add_u32 v4, 256, v0
    v_and_b32 v4, 511, v4
    v_lshlrev_b32 v4, 2, v4
    v_lshlrev_b32 v3, 10, v4
    v_add_u32 v3, s11, v3
    v_lshlrev_b32 v115, 3, v4
    v_lshlrev_b32 v128, 1, v4
    v_add_u32 v128, {L_U+32}, v128
    s_lshl_b32 s50, s5, 12
    s_lshl_b32 s51, s6, 2
    s_add_u32 s50, s50, s51
    s_add_u32 s50, s50, {WS_FL}
    v_lshrrev_b32 v124, 6, v4
    v_lshl_add_u32 v124, v124, 7, s50
    s_lshl_b32 s50, s4, 13
    s_add_u32 s50, s50, {WS_XC}
    v_lshl_add_u32 v126, v4, 2, s50
    v_and_b32 v24, 15, v1
    v_lshl_add_u32 v127, v24, 1, 1
    s_lshr_b32 s57, s3, 2
    s_mul_i32 s61, s57, {AB_CH}
    v_mul_u32_u24 v26, {ROW}, v24
    v_lshrrev_b32 v25, 4, v1
    v_lshl_add_u32 v26, v25, 4, v26
    s_mul_i32 s60, s7, {16*ROW}
    s_add_u32 s60, s60, s61
    s_mul_i32 s62, s13, {16*ROW}
    s_add_u32 s62, s62, s61
    s_add_u32 s62, s62, {A_SZ}
    v_add_u32 v108, s60, v26
    v_add_u32 v109, s62, v26
    s_mov_b32 s50, 0
    s_mov_b32 s51, -1
    s_mul_i32 s60, s57, {K_CH}
    s_lshl_b32 s58, s13, 8
    s_sub_u32 s60, s60, s58
    v_lshlrev_b32 v26, 4, v24
    s_cmp_eq_u32 s7, 0
    s_cbranch_scc0 L_TA1
    s_add_u32 s60, s60, {L_K+4088}
    v_and_b32 v27, 1, v25
    v_lshl_add_u32 v26, v27, 3, v26
    v_lshrrev_b32 v27, 1, v25
    v_lshl_add_u32 v26, v27, 9, v26
    v_sub_u32 v110, s60, v26
    v_mov_b32 v100, 0x05040706
    v_mov_b32 v27, 0x03020504
    v_cndmask_b32 v100, v100, v27, s[50:51]
    v_mov_b32 v101, 0x01000302
    v_mov_b32 v27, 0x01000100
    v_cndmask_b32 v101, v101, v27, s[50:51]
    s_branch L_TAD
    """)
    a.label("L_TA1")
    a.reset()
    a(f"""
    s_add_u32 s60, s60, {L_K+4080-1024}
    v_lshlrev_b32 v27, 9, v25
    v_cmp_eq_u32 vcc, 3, v25
    v_add_u32 v28, 512, v27
    v_cndmask_b32 v27, v27, v28, vcc
    v_add_u32 v26, v26, v27
    v_sub_u32 v110, s60, v26
    v_subrev_u32 v111, 512, v110
    v_mov_b32 v100, 0x05040504
    v_mov_b32 v101, 0x03020302
    v_cndmask_b32 v100, v100, v101, s[50:51]
    v_mov_b32 v102, 0x01000302
    v_mov_b32 v103, 0x01000100
    s_mov_b32 s52, 0
    s_mov_b32 s53, 0x55555555
    v_cndmask_b32 v101, v101, v102, s[52:53]
    v_cndmask_b32 v102, v102, v103, s[50:51]
    """)
    a.label("L_TAD")
    a.reset()
    stamp(a, 1)
    a(f"""
    s_cmp_ge_u32 s3, 4
    s_cbranch_scc1 L_BTASK
    s_mov_b32 s50, 0
    s_mov_b32 s51, -1
    s_mov_b32 s55, 0xffff
    v_mov_b32 v28, 0x3b000000
    v_mov_b32 v29, {L_NONCE}
    v_mov_b32 v30, {L_FLAG+4}
    v_mov_b32 v31, 1
    s_waitcnt vmcnt(2)
    """)
    stamp(a, 2)
    for k in range(8):
        unpack(a, 32 + 2 * k, 33 + 2 * k, 8 + k)
    a(f"""
    v_readlane_b32 s52, v32, 0
    v_readlane_b32 s53, v32, 32
    v_pk_add_f32 v[64:65], v[32:33], v[34:35]
    v_pk_add_f32 v[66:67], v[36:37], v[38:39]
    v_mov_b32 v24, s52
    v_mov_b32 v25, s53
    v_pk_add_f32 v[68:69], v[40:41], v[42:43]
    v_cndmask_b32 v24, v24, v25, s[50:51]
    v_pk_add_f32 v[70:71], v[44:45], v[46:47]
    v_mov_b32 v25, v24
    v_pk_add_f32 v[64:65], v[64:65], v[66:67]
    v_pk_add_f32 v[68:69], v[68:69], v[70:71]
    """)
    for k in range(8):
        a(f"v_pk_add_f32 v[{48+2*k}:{49+2*k}], v[{32+2*k}:{33+2*k}], v[24:25] neg_lo:[0,1] neg_hi:[0,1]")
    a(f"""
    v_pk_add_f32 v[64:65], v[64:65], v[68:69]
    v_pk_mul_f32 v[72:73], v[48:49], v[48:49]
    v_pk_mul_f32 v[74:75], v[50:51], v[50:51]
    v_add_f32 v64, v64, v65
    v_pk_fma_f32 v[72:73], v[52:53], v[52:53], v[72:73]
    v_pk_fma_f32 v[74:75], v[54:55], v[54:55], v[74:75]
    v_pk_fma_f32 v[72:73], v[56:57], v[56:57], v[72:73]
    v_pk_fma_f32 v[74:75], v[58:59], v[58:59], v[74:75]
    v_pk_fma_f32 v[72:73], v[60:61], v[60:61], v[72:73]
    v_pk_fma_f32 v[74:75], v[62:63], v[62:63], v[74:75]
    v_pk_add_f32 v[72:73], v[72:73], v[74:75]
    v_add_f32 v72, v72, v73
    """)
    half_reduce_add(a, [64, 72], [65, 73])
    a(f"""
    v_mul_f32 v64, v64, v28
    v_mul_f32 v72, v72, v28
    v_sub_f32 v65, v64, v24
    v_fma_f32 v72, -v65, v65, v72
    v_max_f32 v72, 0, v72
    v_cvt_pk_bf16_f32 v64, v64, v72
    v_and_b32 v72, 0xffff0000, v64
    v_lshlrev_b32 v66, 16, v64
    v_add_f32 v72, 0x3727c5ac, v72
    v_mov_b32 v67, v66
    v_cvt_pk_bf16_f32 v72, v72, v72
    v_lshlrev_b32 v72, 16, v72
    v_sqrt_f32 v72, v72
    """)
    for k in range(8):
        a(f"v_pk_add_f32 v[{48+2*k}:{49+2*k}], v[{32+2*k}:{33+2*k}], v[66:67] neg_lo:[0,1] neg_hi:[0,1]")
    a(f"""
    v_cvt_pk_bf16_f32 v72, v72, v72
    v_lshlrev_b32 v72, 16, v72
    v_rcp_f32 v68, v72
    v_and_or_b32 v78, v64, s55, v72
    s_waitcnt lgkmcnt(0)
    s_add_u32 s10, s10, 0x9e3779b1
    s_andn2_b32 s10, s10, 15
    s_or_b32 s54, s10, s99
    v_mov_b32 v79, s54
    v_mov_b32 v70, s10
    s_mov_b32 exec_lo, 1
    s_mov_b32 exec_hi, 1
    global_store_dwordx2 v76, v[78:79], {P_WS} sc0 sc1
    s_mov_b64 exec, 1
    ds_write_b32 v29, v70
    ds_add_u32 v30, v31
    s_mov_b64 exec, -1
    s_setprio 1
    """)
    stamp(a, 3)
    for k in range(8):
        a(f"v_cvt_pk_bf16_f32 v{8+k}, v{48+2*k}, v{49+2*k}")
    a("v_mov_b32 v69, v68")
    for k in range(8):
        unpack(a, 48 + 2 * k, 49 + 2 * k, 8 + k)
    for k in range(8):
        a(f"v_pk_mul_f32 v[{48+2*k}:{49+2*k}], v[{48+2*k}:{49+2*k}], v[68:69]")
    for k in range(8):
        a(f"v_cvt_pk_bf16_f32 v{8+k}, v{48+2*k}, v{49+2*k}")
    a("s_waitcnt vmcnt(1)")
    for k in range(4):
        a(f"v_mov_b32 v{70+k}, 0")
    for k in range(8):
        a(f"v_dot2c_f32_bf16 v{70+(k&3)}, v{8+k}, v{16+k}")
    a(f"""
    v_lshrrev_b32 v74, 3, v76
    v_sub_u32 v74, 0x7ff, v74
    v_lshrrev_b32 v75, 1, v76
    v_and_b32 v75, 28, v75
    v_add_u32 v75, {L_KEYS}, v75
    v_add_f32 v70, v70, v71
    v_add_f32 v72, v72, v73
    v_add_f32 v70, v70, v72
    """)
    half_reduce_add(a, [70], [71])
    a(f"""
    v_cvt_pk_bf16_f32 v70, v70, v70
    v_ashrrev_i32 v72, 31, v70
    v_or_b32 v72, 0x80008000, v72
    v_xor_b32 v70, v70, v72
    v_lshl_or_b32 v70, v70, 16, v74
    v_mov_b32 v30, {L_FLAG+20}
    s_mov_b32 exec_lo, 1
    s_mov_b32 exec_hi, 1
    ds_write_b32 v75, v70
    s_mov_b64 exec, 1
    ds_add_u32 v30, v31
    s_mov_b64 exec, -1
    s_cmp_eq_u32 s3, 0
    s_cbranch_scc0 L_LDONE
    """)
    lds_wait_flag(a, "LK", 20, 4, 30, 29, sleep=False)
    B = 8
    a(f"""
    v_mov_b32 v30, {L_KEYS}
    ds_read_b128 v[{B+8}:{B+11}], v30
    ds_read_b128 v[{B+12}:{B+15}], v30 offset:16
    s_lshl_b32 s12, s2, 4
    s_add_u32 s12, s12, {WS_RG}
    v_mov_b32 v30, s12
    v_mov_b32 v{B+3}, s10
    s_waitcnt lgkmcnt(0)
    """)
    for q in range(4):
        a(f"v_max_u32 v{B+4+q}, v{B+8+2*q}, v{B+9+2*q}")
        a(f"v_min_u32 v{B+8+2*q}, v{B+8+2*q}, v{B+9+2*q}")
    a(f"""
    v_min_u32 v{B+9}, v{B+4}, v{B+5}
    v_min_u32 v{B+13}, v{B+6}, v{B+7}
    v_max_u32 v{B+4}, v{B+4}, v{B+5}
    v_max_u32 v{B+6}, v{B+6}, v{B+7}
    v_max3_u32 v{B+8}, v{B+8}, v{B+9}, v{B+10}
    v_max3_u32 v{B+12}, v{B+12}, v{B+13}, v{B+14}
    v_min_u32 v{B+9}, v{B+4}, v{B+6}
    v_max_u32 v{B}, v{B+4}, v{B+6}
    v_max3_u32 v{B+1}, v{B+8}, v{B+9}, v{B+12}
    s_mov_b64 exec, 1
    global_store_dwordx4 v30, v[{B}:{B+3}], {P_WS} sc0 sc1
    s_mov_b64 exec, -1
    """)
    a.label("L_LDONE")
    a.reset()
    a("s_setprio 0\ns_branch L_COMMON")

    def kgen_common(pa, pb):
        a(f"""
        s_lshl_b32 s57, s7, 4
        s_lshr_b32 s56, s56, s57
        s_lshl_b32 s56, s56, 16
        v_mov_b32 v24, {LOG2E}
        v_mul_f32 v24, s56, v24
        v_exp_f32 v24, v24
        s_lshl_b32 s58, s13, 4
        s_sub_u32 s59, 16, s58
        s_lshl_b32 s60, s13, 8
        s_mul_i32 s61, s7, {AB_CH}
        s_add_u32 s60, s60, s61
        v_lshlrev_b32 v28, 2, v1
        v_add_u32 v28, s60, v28
        v_cvt_pk_bf16_f32 v24, v24, v24
        v_lshlrev_b32 v24, 16, v24
        """)

    def kgen_ab(pa, pb):
        a(f"""
        v_lshrrev_b32 v26, s58, v{pa}
        v_lshrrev_b32 v27, s58, v{pb}
        v_lshlrev_b32 v26, 16, v26
        v_lshlrev_b32 v27, 16, v27
        v_mul_f32 v26, v24, v26
        v_mul_f32 v27, v24, v27
        v_mul_f32 v26, {LOG2E}, v26
        v_mul_f32 v27, 0.15915494, v27
        """)
    def loader():
        a(f"""
    s_setprio 2
    s_waitcnt vmcnt(0)
        """)
        for k in range(2):
            for r in range(4):
                a(f"ds_bpermute_b32 v{148+4*k+r}, v133, v{140+2*r+k}")
        a(f"""
    s_waitcnt lgkmcnt(4)
    global_store_dwordx4 v134, v[148:151], {P_WS}{XS}
    s_waitcnt lgkmcnt(0)
    global_store_dwordx4 v135, v[152:155], {P_WS}{XS}
        """)
        piece_hash(a, [12, 13], [148, 152], 127, 14)
        lds_wait_flag(a, "N", 4, 1, 14, 15, sleep=False)
        a(f"""
    v_mov_b32 v14, {L_NONCE}
    ds_read_b32 v14, v14
    s_waitcnt lgkmcnt(0)
    v_add_u32 v12, v14, v12
    v_add_u32 v13, v14, v13
    s_mov_b32 exec_lo, 0x00010001
    s_mov_b32 exec_hi, 0x00010001
    global_store_dwordx2 v136, v[12:13], {P_WS}{XS}
    s_mov_b64 exec, -1
    s_setprio 0
        """)
        stamp(a, 3)


    cnt = [0]
    a.label("L_BTASK")
    a.reset()
    if TE == 0:
        tile_loads()
    a("s_waitcnt lgkmcnt(0)")
    kgen_common(80, 81)
    LF = os.environ.get("LOADER_FIRST", "0") == "1"
    if LF:
        loader()
        a("s_waitcnt vmcnt(3)")
    else:
        a(f"s_waitcnt vmcnt({7 if XL else 4})")
    stamp(a, 2)
    kgen_ab(80, 81)

    def putB(j, reg):
        t = 92 + (cnt[0] % 6)
        cnt[0] += 1
        a(f"v_cvt_pk_f16_f32 v{t}, v{reg}, v{reg+1}")
        a(f"ds_write_b32 v28, v{t} offset:{A_SZ + j*ROW}")

    anchor(a, 42, 26, 27, "0x41000000", 46, 47)
    a(f"""
    v_mov_b32 v92, 0x3c00
    ds_write_b32 v28, v92 offset:{A_SZ}
    """)
    cnt[0] = 1
    cmul(a, 44, 42, 42, 44)
    putB(1, 42)
    prev = 44
    putB(2, 44)
    for k in range(1, 16):
        nxt = 48 + 2 * (k % 2)
        o = 52 + 2 * (k % 2)
        if k < 15:
            cmul(a, nxt, prev, 44, nxt)
        cmul(a, o, prev, 42, o)
        if k < 15:
            putB(2 * (k + 1), nxt)
        putB(2 * k + 1, o)
        prev = nxt
    LL = os.environ.get("LOADER_LATE", "0") == "1"
    if not LF and not LL:
        loader()
    a.label("L_COMMON")
    a.reset()
    stamp(a, 4)
    a("s_waitcnt lgkmcnt(0)\ns_barrier")
    stamp(a, 5)
    PP = int(os.environ.get("POLLPOS", "2"))
    POLLS = f"""
    global_load_dword v125, v124, {P_WS} sc1
    global_load_dwordx4 v[{XG}:{XG+3}], v126, {P_WS} sc1
    global_load_dwordx4 v[116:119], v115, {P_WS} sc0 sc1
    global_load_dwordx4 v[120:123], v115, {P_WS} offset:16 sc0 sc1
    """
    for s in range(8):
        a(f"ds_read_b128 v[{32+8*s}:{35+8*s}], v108 offset:{64*s}")
        a(f"ds_read_b128 v[{36+8*s}:{39+8*s}], v109 offset:{64*s}")
    for s in range(8):
        a(f"s_waitcnt lgkmcnt({14-2*s})")
        a(f"v_mfma_f32_16x16x32_f16 v[96:99], v[{32+8*s}:{35+8*s}], v[{36+8*s}:{39+8*s}], {'0' if s == 0 else 'v[96:99]'}")
    a(f"""
    v_mov_b32 v40, {L_NONCE}
    ds_read_b32 v40, v40
    v_cvt_pk_f16_f32 v32, v96, v97
    v_cvt_pk_f16_f32 v33, v98, v99
    s_cmp_eq_u32 s7, 0
    s_cbranch_scc0 L_KX1
    v_perm_b32 v34, v33, v32, v100
    v_perm_b32 v35, v33, v32, v101
    ds_write_b64 v110, v[34:35]
    s_branch L_KXD
    """)
    a.label("L_KX1")
    a.reset()
    a(f"""
    v_perm_b32 v36, v33, v32, v100
    v_perm_b32 v37, v33, v32, v101
    v_perm_b32 v38, v33, v32, v102
    v_perm_b32 v39, v33, v32, v103
    ds_write_b128 v110, v[36:39]
    v_perm_b32 v44, v33, v33, v100
    v_perm_b32 v45, v33, v33, v101
    v_perm_b32 v46, v33, v33, v102
    v_perm_b32 v47, v33, v33, v103
    s_mov_b32 exec_lo, 0
    ds_write_b128 v111, v[44:47]
    s_mov_b32 exec_lo, -1
    """)
    a.label("L_KXD")
    a.reset()
    stamp(a, 6)
    if LL:
        a("s_cmp_ge_u32 s3, 4\ns_cbranch_scc0 L_NOLD")
        loader()
        a.label("L_NOLD")
        a.reset()
    if os.environ.get("ACKWAIT", "1") == "1":
        a("s_waitcnt vmcnt(0)")
    if int(os.environ.get("PSLEEP", "0")):
        a("s_sleep %d" % int(os.environ["PSLEEP"]))
    a(POLLS)
    a(f"""
    s_waitcnt lgkmcnt(0)
    v_readfirstlane_b32 s10, v40
    """)
    a(f"""
    s_mov_b32 s62, 0
    s_cmp_eq_u32 s3, 5
    s_cbranch_scc0 L_NOPAD
    v_mov_b32 v32, 0
    v_mov_b32 v33, 0
    v_mov_b32 v34, 0
    v_mov_b32 v35, 0
    v_bfe_u32 v36, v1, 1, 3
    v_mul_u32_u24 v36, {UCOPY}, v36
    v_and_b32 v37, 1, v1
    v_lshl_add_u32 v36, v37, 4, v36
    v_add_u32 v36, {L_U}, v36
    s_mov_b64 exec, 0xffff
    ds_write_b128 v36, v[32:35]
    s_mov_b64 exec, -1
    """)
    a.label("L_NOPAD")
    a.reset()
    stamp(a, 7)
    if STAMP:
        a("s_mov_b64 s[96:97], 0")
    a(f"""
    s_mov_b64 s[56:57], 0
    v_lshrrev_b32 v37, 6, v4
    v_lshlrev_b32 v37, 9, v37
    s_lshl_b32 s50, s5, 6
    v_add_u32 v37, s50, v37
    s_or_b32 s54, s10, s99
    """)
    a.label("L_GPOLL")
    a.reset()
    a("s_waitcnt vmcnt(0)")
    piece_hash(a, [32], [XG], 127, 33)
    a(f"""
    v_add_u32 v32, s10, v32
    v_cmp_ne_u32 vcc, v32, v125
    v_xor_b32 v33, s10, v117
    v_xor_b32 v34, s10, v119
    v_xor_b32 v35, s10, v121
    v_xor_b32 v36, s10, v123
    v_or3_b32 v34, v33, v34, v35
    v_or_b32 v34, v34, v36
    v_cmp_lt_u32 s[50:51], 15, v34
    s_andn2_b64 vcc, vcc, s[56:57]
    s_or_b64 s[52:53], vcc, s[50:51]
    s_cbranch_scc0 L_GOK
    s_add_u32 s62, s62, 1
    s_cmp_ge_u32 s62, {SPIN_MAX}
    s_cbranch_scc1 L_GOK
    """)
    if STAMP:
        a("""
        s_cmp_lg_u64 vcc, 0
        s_addc_u32 s96, s96, 0
        s_cmp_lg_u64 s[50:51], 0
        s_addc_u32 s97, s97, 0
        """)
    a(f"""
    s_mov_b64 exec, vcc
    s_cbranch_execz L_GP2
    s_cmp_lt_u32 s62, 4
    s_cbranch_scc1 L_GP1
    global_load_dword v38, v37, {P_WS} offset:4 sc0 sc1
    s_waitcnt vmcnt(0)
    v_xor_b32 v38, s54, v38
    v_cmp_ne_u32 s[52:53], 0, v38
    v_cmp_gt_u32 s[58:59], 16, v38
    s_and_b64 s[52:53], s[52:53], s[58:59]
    s_or_b64 s[56:57], s[56:57], s[52:53]
    s_mov_b64 exec, s[52:53]
    s_cbranch_execz L_GP0
    global_load_dword v{XG}, v3, {P_X}
    global_load_dword v{XG+1}, v3, {P_X} offset:1024
    global_load_dword v{XG+2}, v3, {P_X} offset:2048
    global_load_dword v{XG+3}, v3, {P_X} offset:3072
    """)
    a.label("L_GP0")
    a.reset()
    a(f"""
    s_andn2_b64 exec, vcc, s[52:53]
    s_cbranch_execz L_GP2
    """)
    a.label("L_GP1")
    a.reset()
    a(f"""
    global_load_dword v125, v124, {P_WS} sc1
    global_load_dwordx4 v[{XG}:{XG+3}], v126, {P_WS} sc1
    """)
    a.label("L_GP2")
    a.reset()
    a(f"""
    s_mov_b64 exec, s[50:51]
    s_cbranch_execz L_GP3
    s_sleep 3
    global_load_dwordx4 v[116:119], v115, {P_WS} sc0 sc1
    global_load_dwordx4 v[120:123], v115, {P_WS} offset:16 sc0 sc1
    """)
    a.label("L_GP3")
    a.reset()
    a(f"""
    s_mov_b64 exec, -1
    s_branch L_GPOLL
    """)
    a.label("L_GOK")
    a.reset()
    stamp(a, 8)
    if STAMP:
        a("s_waitcnt lgkmcnt(0)\ns_mov_b64 s[74:75], s[96:97]")
    lds_signal(a, 16, 34, 35)
    a(f"""
    v_bfe_u32 v35, v4, 3, 3
    v_and_b32 v36, 15, v119
    v_cmp_eq_u32 vcc, s5, v35
    v_cmp_ne_u32 s[50:51], s99, v36
    s_and_b64 vcc, vcc, s[50:51]
    s_cbranch_vccz L_UNI
    """)
    lds_signal(a, 32, 34, 35)
    a.label("L_UNI")
    a.reset()
    st = [116, 118, 120, 122]
    for r in range(4):
        a(f"v_and_b32 v{40+r}, 0xffff0000, v{st[r]}")
    for r in range(4):
        a(f"v_rcp_f32 v{40+r}, v{40+r}")
    for r in range(4):
        a(f"v_lshlrev_b32 v{44+r}, 16, v{st[r]}")
    for r in range(4):
        unpack(a, 48 + 2 * r, 49 + 2 * r, XG + r)
    for r in range(4):
        a(f"v_sub_f32 v{48+2*r}, v{48+2*r}, v{44+r}")
        a(f"v_sub_f32 v{49+2*r}, v{49+2*r}, v{44+r}")
    for r in range(4):
        a(f"v_mul_f32 v{40+r}, 0x45000000, v{40+r}")
    for r in range(4):
        a(f"v_cvt_pk_bf16_f32 v{56+r}, v{48+2*r}, v{49+2*r}")
    for r in range(4):
        unpack(a, 48 + 2 * r, 49 + 2 * r, 56 + r)
    for r in range(4):
        a(f"v_mul_f32 v{48+2*r}, v{48+2*r}, v{40+r}")
        a(f"v_mul_f32 v{49+2*r}, v{49+2*r}, v{40+r}")
    for r in range(4):
        a(f"v_cvt_pk_bf16_f32 v{XN+r}, v{48+2*r}, v{49+2*r}")
    for r in range(4):
        unpack(a, 48 + 2 * r, 49 + 2 * r, XN + r)
    a(f"""
    v_cvt_pk_f16_f32 v60, v48, v50
    v_cvt_pk_f16_f32 v61, v52, v54
    v_cvt_pk_f16_f32 v62, v49, v51
    v_cvt_pk_f16_f32 v63, v53, v55
    ds_write_b64 v128, v[60:61]
    ds_write_b64 v128, v[62:63] offset:{U_CH}
    v_subrev_u32 v9, 8, v128
    """)
    stamp(a, 9)
    a("s_waitcnt lgkmcnt(0)\ns_barrier")
    a(f"""
    ds_read_b64 v[64:65], v9
    ds_read_b64 v[66:67], v9 offset:{U_CH}
    """)
    for c in range(2):
        W0, W1, P0, P1 = 60 + 2 * c, 61 + 2 * c, 64 + 2 * c, 65 + 2 * c
        t = 68 + 8 * c
        a(f"""
        v_alignbyte_b32 v{t+1}, v{W1}, v{W0}, 2
        v_mov_b32 v{t+3}, v{W0}
        """)
    for c in range(2):
        W0, W1, P0, P1 = 60 + 2 * c, 61 + 2 * c, 64 + 2 * c, 65 + 2 * c
        t = 68 + 8 * c
        a(f"s_waitcnt lgkmcnt({1 if c == 0 else 3})")
        a(f"""
        v_alignbyte_b32 v{t}, v{W0}, v{P1}, 2
        v_mov_b32 v{t+2}, v{P1}
        v_alignbyte_b32 v{t+4}, v{P1}, v{P0}, 2
        v_alignbyte_b32 v{t+5}, v{W0}, v{P1}, 2
        ds_write_b64 v128, v[{t}:{t+1}] offset:{c*U_CH+UCOPY}
        ds_write_b64 v128, v[{t+2}:{t+3}] offset:{c*U_CH+2*UCOPY}
        ds_write_b64 v128, v[{t+4}:{t+5}] offset:{c*U_CH+3*UCOPY}
        """)
    a(f"""
    s_lshl_b32 s50, s15, 16
    s_and_b32 s51, s15, 0xffff0000
    v_mov_b32 v156, 0x3a000000
    v_mul_f32 v157, s51, v156
    v_mul_f32 v156, s50, v156
    s_cmp_ge_u32 s3, 4
    s_cbranch_scc1 L_AUX
    """)
    a(f"""
    s_setprio 2
    v_and_b32 v8, 15, v1
    v_lshrrev_b32 v9, 4, v1
    v_sub_u32 v10, 15, v8
    v_and_b32 v11, 3, v10
    v_lshrrev_b32 v10, 2, v10
    v_mul_u32_u24 v12, {UCOPY}, v11
    v_lshlrev_b32 v11, 1, v9
    v_sub_u32 v11, v11, v10
    v_add_u32 v11, 4, v11
    v_lshl_add_u32 v12, v11, 3, v12
    s_mul_i32 s12, s7, {U_CH}
    s_lshl_b32 s14, s13, 8
    s_add_u32 s12, s12, s14
    s_add_u32 s12, s12, {L_U}
    v_add_u32 v12, s12, v12
    v_lshlrev_b32 v13, 4, v9
    v_lshlrev_b32 v11, 5, v8
    v_sub_u32 v13, v13, v11
    s_mul_i32 s12, s7, {K_CH}
    s_add_u32 s12, s12, s14
    s_add_u32 s12, s12, {L_K+480}
    v_add_u32 v13, s12, v13
    v_lshl_add_u32 v14, v8, 2, v9
    v_bfe_u32 v11, v14, 3, 2
    v_xor_b32 v14, v14, v11
    s_lshl_b32 s12, s3, 10
    s_add_u32 s12, s12, {L_PA}
    v_lshl_add_u32 v14, v14, 4, s12
    """)
    ACC = 96
    a(f"""
    v_mov_b32 v10, {L_FLAG+48}
    v_mov_b32 v11, 1
    """)
    stamp(a, 10)
    a("s_waitcnt lgkmcnt(0)\ns_barrier")
    stamp(a, 11)
    conv_loop(a, ACC, 16, 20, epi_data() + epi_addr())
    stamp(a, 1)
    a(f"""
    s_setprio 0
    s_add_u32 s14, s3, 4
    s_branch L_EPI
    """)
    a.label("L_AUX")
    a.reset()
    stamp(a, 10)
    a("s_waitcnt lgkmcnt(0)\ns_barrier")
    for f in epi_data() + epi_addr():
        a(f)
    a("s_sub_u32 s14, s3, 4")
    lds_wait_flag(a, "T0", 48, 1, 10, 11, sleep=4)
    a(f"""
    s_lshl_b32 s13, s14, 2
    s_add_u32 s13, s13, {L_FLAG+48}
    """)
    lds_wait_flag(a, "T1", None, 4, 10, 11, sleep=1, saddr="s13")
    a.label("L_EPI")
    a.reset()
    epilogue(a)
    a(f"""
    s_lshl_b32 s50, s2, 4
    s_add_u32 s50, s50, s3
    s_cmp_eq_u32 s50, 4
    s_cbranch_scc0 L_NOEP
    v_mov_b32 v8, {WS_W0}
    v_mov_b32 v9, s10
    s_mov_b64 exec, 1
    global_store_dword v8, v9, {P_WS} sc0 sc1
    s_mov_b64 exec, -1
    """)
    a.label("L_NOEP")
    a.reset()
    finish(a)
    a.label("L_MOE")
    a.reset()
    a(f"""
    v_subrev_u32 v20, 512, v0
    v_lshrrev_b32 v106, 5, v20
    v_and_b32 v22, 31, v20
    s_lshl_b32 s14, s6, 4
    v_add_u32 v106, s14, v106
    v_mul_u32_u24 v106, 3584, v106
    v_min_u32 v22, 27, v22
    v_lshl_add_u32 v106, v22, 4, v106
    s_mul_i32 s14, s5, 448
    v_add_u32 v106, s14, v106
    v_add_u32 v107, {8*3584}, v106
    v_lshrrev_b32 v108, 3, v20
    s_mul_i32 s14, s6, 56
    v_add_u32 v108, s14, v108
    v_lshlrev_b32 v108, 10, v108
    v_and_b32 v22, 7, v20
    v_lshl_add_u32 v108, v22, 4, v108
    s_lshl_b32 s14, s5, 7
    v_add_u32 v108, s14, v108
    v_add_u32 v109, {24*1024}, v108
    s_waitcnt lgkmcnt(0)
    """)
    PF = f"""
    global_load_dwordx4 v[144:147], v106, s[38:39]
    global_load_dwordx4 v[148:151], v106, s[40:41]
    global_load_dwordx4 v[152:155], v107, s[38:39]
    global_load_dwordx4 v[156:159], v107, s[40:41]
    """
    PFD = f"""
    global_load_dwordx4 v[160:163], v108, s[42:43]
    global_load_dwordx4 v[164:167], v109, s[42:43]
    """
    DL = os.environ.get("DPF_LATE", "1") == "1"
    if not DL:
        PF = PF + PFD
    pmode = int(os.environ.get("PREF_MODE", "0"))
    early = pmode == 1
    if early:
        a(PF)
    kgen_common(100, 101)
    a(f"s_waitcnt vmcnt({(5 if DL else 7) if early else 1})")
    stamp(a, 7)
    if pmode == 0:
        a(PF)
    kgen_ab(100, 101)
    for (dst, sh) in ((32, "s58"), (34, "s59")):
        a(f"""
        v_lshrrev_b32 v36, {sh}, v102
        v_lshrrev_b32 v37, {sh}, v103
        v_lshrrev_b32 v38, {sh}, v104
        v_lshrrev_b32 v39, {sh}, v105
        v_lshlrev_b32 v36, 16, v36
        v_lshlrev_b32 v37, 16, v37
        v_lshlrev_b32 v38, 16, v38
        v_lshlrev_b32 v39, 16, v39
        v_mul_f32 v36, v24, v36
        v_mul_f32 v37, v24, v37
        """)
        cmul(a, dst, 38, 36, 40)
    a(f"""
    v_max3_f32 v36, |v32|, |v33|, |v34|
    v_max_f32 v36, v36, |v35|
    """)
    anchor(a, 42, 26, 27, None, 46, 47)
    anchor(a, 44, 26, 27, "0x43800000", 48, 49)
    dpp_reduce(a, "v_max_f32", [36])
    a(f"""
    v_readlane_b32 s62, v36, 63
    v_frexp_exp_i32_f32 v36, s62
    v_sub_u32 v37, 2, v36
    v_ldexp_f32 v50, v32, v37
    v_ldexp_f32 v51, v33, v37
    v_subrev_u32 v36, 13, v36
    v_ldexp_f32 v36, 1.0, v36
    s_lshl_b32 s62, s7, 2
    s_add_u32 s62, s62, {L_KS}
    v_mov_b32 v37, s62
    ds_write_b32 v37, v36
    """)
    Q = lambda k: 50 + 2 * k
    CA, CB_, CC = 68, 72, 76

    def putA(rows, reg):
        t = 92 + (cnt[0] % 6)
        cnt[0] += 1
        a(f"v_cvt_pk_f16_f32 v{t}, v{reg}, -v{reg+1}")
        for row in rows:
            a(f"ds_write_b32 v28, v{t} offset:{row*ROW}")

    P1, P256 = 42, 44
    rowsA = [8, 16, 20, 24, 26, 28, 30]
    rowsC = [14, 18, 22, 25, 27, 29, 31]
    putA([0], Q(0))
    pa = Q(0)
    for k in range(1, 8):
        na = CA + 2 * (k & 1)
        cmul(a, na, pa, P256, na)
        cmul(a, Q(k), Q(k - 1), P1, Q(k))
        putA([rowsA[k - 1]], na)
        putA([k], Q(k))
        pa = na
    cmul(a, Q(8), Q(7), P1, Q(8))
    cmul(a, CB_, Q(4), P256, CB_)
    cmul(a, 80, Q(2), P256, 80)
    cmul(a, 82, Q(6), P256, 82)
    pc = Q(8)
    pb = CB_
    putA([10, 12], CB_)
    for k in range(7):
        nc = CC + 2 * (k & 1)
        cmul(a, nc, pc, P256, nc)
        if k == 0:
            putA([9], 80)
            putA([13], 82)
        if k in (0, 1):
            nb = CB_ + 2 * ((k + 1) & 1)
            cmul(a, nb, pb, P256, nb)
            pb = nb
        putA([rowsC[k]], nc)
        if k in (0, 1):
            putA([17 if k == 0 else 21], pb)
        pc = nc
    stamp(a, 8)
    a("s_waitcnt lgkmcnt(0)\ns_barrier")
    if pmode == 2:
        a(PF)
    a(f"""
    s_sub_u32 s7, s3, 8
    v_and_b32 v8, 15, v1
    v_lshrrev_b32 v9, 4, v1
    s_mov_b32 s12, 0x05040100
    s_mov_b32 s13, 0x07060302
    """)

    def pack(L, F):
        for j in range(8):
            for k in range(4):
                a(f"v_perm_b32 v{F+4*j+k}, v{L+4*(2*k+1)+(j>>1)}, v{L+4*(2*k)+(j>>1)}, s{12+(j&1)}")

    a(f"""
    v_mov_b32 v4, 0
    v_mov_b32 v6, 0
    v_mov_b32 v7, 0
    v_mov_b32 v11, 0
    v_mov_b32 v13, 0
    v_mov_b32 v25, 0
    s_mov_b64 s[54:55], s[38:39]
    """)
    B = 32
    DG = int(os.environ.get("DPF_GOK", "8"))
    DL_ = False
    a(f"""
    v_lshlrev_b32 v{B+24}, 4, v1
    v_add_u32 v{B+24}, {WS_RG}, v{B+24}
    v_mov_b32 v{B+20}, {L_NONCE}
    ds_read_b32 v{B+20}, v{B+20}
    s_waitcnt lgkmcnt(0)
    v_readfirstlane_b32 s10, v{B+20}
    s_cmp_ge_u32 s6, 18
    s_cbranch_scc1 L_MSYNC
    s_cmp_ge_u32 s6, 14
    s_cbranch_scc1 L_DPRE
    """)
    a(f"""
    s_mul_i32 s11, s5, 7
    s_lshr_b32 s14, s6, 1
    s_add_u32 s11, s11, s14
    s_and_b32 s15, s6, 1
    s_cmp_eq_u32 s15, 0
    s_cselect_b32 s54, s38, s40
    s_cselect_b32 s55, s39, s41
    v_lshrrev_b32 v10, 2, v8
    v_lshlrev_b32 v4, 5, v10
    v_lshl_add_u32 v4, v9, 3, v4
    s_lshl_b32 s14, s7, 7
    v_add_u32 v4, s14, v4
    v_mul_u32_u24 v4, 3584, v4
    v_and_b32 v5, 3, v1
    v_lshl_add_u32 v4, v5, 4, v4
    s_lshl_b32 s14, s11, 6
    v_add_u32 v4, s14, v4
    v_add_u32 v6, 7168, v4
    v_add_u32 v7, 14336, v4
    v_add_u32 v11, 21504, v4
    """)
    L, F, AC = 112, 64, 32
    a(f"""
    v_and_b32 v13, 31, v1
    v_lshlrev_b32 v13, 3, v13
    s_lshl_b32 s14, s7, 8
    v_add_u32 v13, s14, v13
    v_lshrrev_b32 v19, 5, v1
    v_lshl_add_u32 v22, v19, 10, v13
    v_add_u32 v22, {L_MOE}, v22
    v_and_b32 v19, 1, v1
    v_lshlrev_b32 v19, 10, v19
    v_lshl_add_u32 v19, v9, 4, v19
    v_lshl_add_u32 v19, v10, 6, v19
    s_add_u32 s14, s14, {L_MOE}
    v_add_u32 v19, s14, v19
    v_cmp_eq_u32 s[60:61], v9, v10
    s_lshl_b32 s14, s7, 10
    s_add_u32 s14, s14, {L_MP}
    v_lshl_add_u32 v24, v10, 8, s14
    v_lshl_add_u32 v24, v5, 5, v24
    v_lshlrev_b32 v23, 2, v1
    v_add_u32 v23, {L_MP}, v23
    v_lshrrev_b32 v25, 2, v1
    v_lshlrev_b32 v25, 4, v25
    s_lshl_b32 s14, s11, 8
    s_mul_i32 s59, s15, 14336
    s_add_u32 s14, s14, s59
    s_add_u32 s14, s14, {WS_HG}
    v_add_u32 v25, s14, v25
    """)
    a("s_branch L_MSYNC")
    a.label("L_DPRE")
    a.reset()
    a(f"""
    s_lshl_b32 s11, s5, 2
    s_add_u32 s11, s11, s6
    s_sub_u32 s11, s11, 14
    v_lshrrev_b32 v10, 1, v8
    v_lshlrev_b32 v4, 5, v10
    v_lshl_add_u32 v4, v9, 3, v4
    s_lshl_b32 s14, s7, 8
    v_add_u32 v4, s14, v4
    v_lshlrev_b32 v4, 10, v4
    v_and_b32 v5, 1, v1
    v_lshl_add_u32 v4, v5, 4, v4
    s_lshl_b32 s14, s11, 5
    v_add_u32 v4, s14, v4
    v_add_u32 v5, 0x1000, v4
    s_cmp_eq_u32 s7, 3
    s_cselect_b32 s15, 0, {1024*1024}
    v_add_u32 v6, s15, v4
    v_add_u32 v7, s15, v5
    s_waitcnt lgkmcnt(0)
    """)
    a.label("L_MSYNC")
    a.reset()
    a(f"""
    s_cmp_eq_u32 s7, 0
    s_cbranch_scc0 L_NORG
    """)
    lds_wait_flag(a, "GK1", 16, int(os.environ.get("RG_GOK", "2")), 58, 59)
    for q in range(4):
        a(f"global_load_dwordx4 v[{B+4*q}:{B+4*q+3}], v{B+24}, {P_WS} offset:{1024*q} sc0 sc1")
    a.label("L_NORG")
    a.reset()
    lds_wait_flag(a, "GK", 16, DG, 58, 59)
    a(PFD)

    def gloads():
        for e2, ar in enumerate((4, 6, 7, 11)):
            a(f"global_load_dwordx4 v[{112+8*e2}:{112+8*e2+3}], v{ar}, s[54:55]")
            a(f"global_load_dwordx4 v[{112+8*e2+4}:{112+8*e2+7}], v{ar}, s[54:55] offset:3584")
    a(f"""
    s_barrier
    s_cmp_eq_u32 s7, 0
    s_cbranch_scc0 L_NOKEY
    s_mov_b32 s62, 0
    s_setprio 3
    s_waitcnt vmcnt(2)
    s_branch L_RC
    """)
    a.label("L_RP")
    a.reset()
    for q in range(4):
        a(f"global_load_dwordx4 v[{B+4*q}:{B+4*q+3}], v{B+24}, {P_WS} offset:{1024*q} sc0 sc1")
    a(f"""
    s_mov_b64 exec, -1
    s_waitcnt vmcnt(0)
    """)
    a.label("L_RC")
    a.reset()
    a(f"""
    v_xor_b32 v{B+16}, s10, v{B+3}
    v_xor_b32 v{B+17}, s10, v{B+7}
    v_xor_b32 v{B+18}, s10, v{B+11}
    v_xor_b32 v{B+19}, s10, v{B+15}
    v_or3_b32 v{B+16}, v{B+16}, v{B+17}, v{B+18}
    v_or_b32 v{B+16}, v{B+16}, v{B+19}
    v_cmp_ne_u32 vcc, 0, v{B+16}
    s_cbranch_vccz L_RO
    s_add_u32 s62, s62, 1
    s_cmp_ge_u32 s62, {SPIN_MAX}
    s_cbranch_scc1 L_RO
    s_sleep 3
    s_mov_b64 exec, vcc
    s_branch L_RP
    """)
    a.label("L_RO")
    a.reset()
    stamp(a, 9)
    a(f"""
    v_min_u32 v{B+16}, v{B}, v{B+4}
    v_min_u32 v{B+17}, v{B+8}, v{B+12}
    v_max_u32 v{B}, v{B}, v{B+4}
    v_max_u32 v{B+8}, v{B+8}, v{B+12}
    v_max3_u32 v{B+1}, v{B+1}, v{B+5}, v{B+16}
    v_max3_u32 v{B+9}, v{B+9}, v{B+13}, v{B+17}
    v_min_u32 v{B+16}, v{B}, v{B+8}
    v_max_u32 v{B+2}, v{B}, v{B+8}
    v_max_u32 v{B}, v{B}, v{B+8}
    v_max3_u32 v{B+1}, v{B+1}, v{B+9}, v{B+16}
    """)
    dpp_reduce(a, "v_max_u32", [B + 2])
    a(f"""
    v_readlane_b32 s50, v{B+2}, 63
    v_cmp_eq_u32 vcc, s50, v{B}
    v_cndmask_b32 v{B+2}, v{B}, v{B+1}, vcc
    """)
    dpp_reduce(a, "v_max_u32", [B + 2])
    a(f"""
    v_readlane_b32 s51, v{B+2}, 63
    s_and_b32 s8, s50, 0x7ff
    s_sub_u32 s8, 0x7ff, s8
    s_and_b32 s9, s51, 0x7ff
    s_sub_u32 s9, 0x7ff, s9
    v_mov_b32 v{B}, s8
    v_mov_b32 v{B+1}, s9
    v_mov_b32 v{B+2}, s50
    v_mov_b32 v{B+3}, s51
    v_mov_b32 v{B+4}, {L_IDX}
    ds_write_b64 v{B+4}, v[{B}:{B+1}]
    ds_write_b64 v{B+4}, v[{B+2}:{B+3}] offset:{L_KEYS+32-L_IDX+65536 if False else 0}
    s_setprio 0
    """.replace(f"ds_write_b64 v{B+4}, v[{B+2}:{B+3}] offset:0", f"v_mov_b32 v{B+4}, {L_KEYS+32}\n    ds_write_b64 v{B+4}, v[{B+2}:{B+3}]"))
    lds_signal(a, 24, B + 5, B + 6)
    stamp(a, 4)
    a.label("L_NOKEY")
    a.reset()
    a(f"""
    s_waitcnt lgkmcnt(0)
    s_barrier
    s_cmp_ge_u32 s6, 18
    s_cbranch_scc1 L_NOMOE
    v_mov_b32 v32, {L_KEYS+32}
    ds_read_b64 v[34:35], v32
    s_waitcnt lgkmcnt(0)
    v_readfirstlane_b32 s50, v34
    v_readfirstlane_b32 s51, v35
    s_and_b32 s8, s50, 0x7ff
    s_sub_u32 s8, 0x7ff, s8
    s_and_b32 s9, s51, 0x7ff
    s_sub_u32 s9, 0x7ff, s9
    s_cmp_ge_u32 s6, 14
    s_cbranch_scc1 L_DOWN
    """)
    a(f"""
    s_setprio 3
    s_mov_b32 s52, 0
    s_mov_b32 s53, -1
    v_mov_b32 v12, s8
    v_mov_b32 v14, s9
    v_cndmask_b32 v12, v12, v14, s[52:53]
    v_lshl_add_u32 v14, v12, 10, v13
    global_load_dwordx2 v[16:17], v14, {P_X}
    v_lshlrev_b32 v15, 3, v12
    global_load_dwordx2 v[30:31], v15, {P_WS} sc0 sc1
    """)
    gloads()
    stamp(a, 1)
    a("s_waitcnt vmcnt(8)")
    a("v_mov_b32 v18, v30")
    stamp(a, 5)
    a(f"""
    v_and_b32 v20, 0xffff0000, v18
    v_rcp_f32 v20, v20
    v_lshlrev_b32 v21, 16, v18
    """)
    unpack(a, 26, 27, 16)
    unpack(a, 28, 29, 17)
    for k in range(4):
        a(f"v_sub_f32 v{26+k}, v{26+k}, v21")
    a("v_cvt_pk_bf16_f32 v16, v26, v27\nv_cvt_pk_bf16_f32 v17, v28, v29")
    unpack(a, 26, 27, 16)
    unpack(a, 28, 29, 17)
    for k in range(4):
        a(f"v_mul_f32 v{26+k}, v{26+k}, v20")
    a("v_cvt_pk_bf16_f32 v16, v26, v27\nv_cvt_pk_bf16_f32 v17, v28, v29")
    a(f"""
    ds_write_b64 v22, v[16:17]
    ds_read_b128 v[28:31], v19
    s_waitcnt lgkmcnt(0)
    """)
    a("s_waitcnt vmcnt(0)")
    stamp(a, 2)
    pack(L, F)
    for j in range(8):
        a(f"v_mfma_f32_16x16x32_bf16 v[{AC+4*j}:{AC+4*j+3}], v[28:31], v[{F+4*j}:{F+4*j+3}], 0")
    a("s_mov_b64 exec, s[60:61]")
    for j in range(8):
        a(f"ds_write2_b32 v24, v{AC+4*j}, v{AC+4*j+1} offset0:{j} offset1:{32+j}")
    a("s_mov_b64 exec, -1")
    lds_signal(a, 8, 12, 13)
    a(f"""
    s_cmp_eq_u32 s7, 0
    s_cbranch_scc0 L_MFIN
    """)
    lds_wait_flag(a, "G", 8, 4, 12, 13, sleep=False)
    for i in range(16):
        a(f"ds_read_b32 v{32+i}, v23 offset:{256*i}")
    a(f"""
    v_mov_b32 v58, s10
    v_mov_b32 v59, s10
    s_waitcnt lgkmcnt(0)
    """)
    for st in (1, 2, 4, 8):
        for i in range(0, 16, 2 * st):
            a(f"v_add_f32 v{32+i}, v{32+i}, v{32+i+st}")
    a(f"""
    v_cvt_pk_bf16_f32 v32, v32, v32
    s_cmp_eq_u32 s15, 0
    s_cbranch_scc0 L_NOSILU
    v_lshlrev_b32 v32, 16, v32
    v_mul_f32 v33, {NEGL2E}, v32
    v_exp_f32 v33, v33
    v_add_f32 v33, 1.0, v33
    v_rcp_f32 v33, v33
    v_mul_f32 v32, v32, v33
    v_cvt_pk_bf16_f32 v32, v32, v32
    """)
    a.label("L_NOSILU")
    a.reset()
    a(f"""
    v_and_b32 v32, 0xffff, v32
    s_nop 1
    v_mov_b32_dpp v33, v32 quad_perm:[1,1,1,1] row_mask:0xf bank_mask:0xf
    v_mov_b32_dpp v34, v32 quad_perm:[2,2,2,2] row_mask:0xf bank_mask:0xf
    v_mov_b32_dpp v35, v32 quad_perm:[3,3,3,3] row_mask:0xf bank_mask:0xf
    v_lshl_or_b32 v56, v33, 16, v32
    v_lshl_or_b32 v57, v35, 16, v34
    s_mov_b32 exec_lo, 0x11111111
    s_mov_b32 exec_hi, 0x11111111
    global_store_dwordx4 v25, v[56:59], {P_WS} sc0 sc1
    s_mov_b64 exec, -1
    """)
    stamp(a, 6)
    a.label("L_MFIN")
    a.reset()
    finish(a)
    a.label("L_DOWN")
    a.reset()
    L0, L1, F0, AC = 32, 64, 96, 128
    a("s_waitcnt vmcnt(0)")
    for e in range(8):
        a(f"global_load_dwordx4 v[{L0+4*e}:{L0+4*e+3}], v{4+(e>>2)}, s[42:43] offset:{1024*(e&3)}")
    for e in range(8):
        a(f"global_load_dwordx4 v[{L1+4*e}:{L1+4*e+3}], v{6+(e>>2)}, s[42:43] offset:{1024*(e&3)}")
    stamp(a, 1)
    a("s_waitcnt vmcnt(8)")
    pack(L0, F0)
    a("s_waitcnt vmcnt(0)")
    stamp(a, 2)
    pack(L1, L0)
    F1 = L0
    a(f"""
    s_lshl_b32 s14, s7, 11
    s_add_u32 s14, s14, {WS_HG}
    v_lshl_add_u32 v12, v1, 4, s14
    s_cmp_eq_u32 s7, 3
    s_cselect_b32 s15, 0, 0x2000
    v_add_u32 v13, s15, v12
    s_mov_b32 s62, 0
    """)
    a(f"""
    s_lshl_b32 s14, s7, 11
    s_add_u32 s14, s14, {L_MOE}
    v_lshrrev_b32 v24, 4, v1
    v_lshlrev_b32 v24, 6, v24
    v_and_b32 v25, 7, v1
    v_lshl_add_u32 v24, v25, 3, v24
    v_bfe_u32 v25, v1, 3, 1
    v_lshl_add_u32 v24, v25, 9, v24
    v_add_u32 v24, s14, v24
    v_add_u32 v14, 14336, v12
    v_add_u32 v15, 14336, v13
    v_and_b32 v25, 1, v1
    v_lshlrev_b32 v25, 9, v25
    v_lshl_add_u32 v25, v10, 6, v25
    v_lshl_add_u32 v25, v9, 4, v25
    v_add_u32 v25, s14, v25
    """)
    a(f"""
    v_lshrrev_b32 v26, 1, v10
    v_cmp_eq_u32 s[56:57], v9, v26
    v_and_b32 v26, 1, v10
    v_cmp_eq_u32 s[60:61], 1, v26
    s_lshl_b32 s14, s7, 10
    s_add_u32 s14, s14, {L_MP}
    v_lshl_add_u32 v160, v10, 7, s14
    v_and_b32 v26, 1, v1
    v_lshl_add_u32 v160, v26, 5, v160
    v_bfe_u32 v28, v1, 4, 1
    v_bfe_u32 v27, v1, 1, 3
    s_lshl_b32 s14, s11, 3
    v_add_u32 v26, s14, v27
    v_lshlrev_b32 v161, 4, v26
    v_lshl_add_u32 v161, v28, 12, v161
    v_add_u32 v161, {WS_TG}, v161
    v_cmp_eq_u32 vcc, 1, v28
    v_mov_b32 v30, s50
    v_mov_b32 v31, s51
    v_cndmask_b32 v30, v30, v31, vcc
    v_mov_b32 v163, s8
    v_mov_b32 v31, s9
    v_cndmask_b32 v163, v163, v31, vcc
    v_lshrrev_b32 v30, 16, v30
    v_bfe_i32 v31, v30, 15, 1
    v_not_b32 v31, v31
    v_or_b32 v31, 0x8000, v31
    v_xor_b32 v30, v30, v31
    v_lshlrev_b32 v30, 16, v30
    v_mul_f32 v30, {NEGL2E}, v30
    v_exp_f32 v30, v30
    v_add_f32 v30, 1.0, v30
    v_rcp_f32 v30, v30
    v_cvt_pk_bf16_f32 v30, v30, v30
    v_lshlrev_b32 v162, 16, v30
    v_lshlrev_b32 v163, 10, v163
    v_lshl_add_u32 v163, v26, 2, v163
    v_and_b32 v164, 31, v1
    v_lshlrev_b32 v164, 2, v164
    v_lshrrev_b32 v31, 5, v1
    v_lshl_add_u32 v164, v31, 11, v164
    v_add_u32 v164, {L_MP}, v164
    """)
    if os.environ.get("HWAIT", "0") == "1":
        lds_wait_flag(a, "HC", 48 + 28, 4, 26, 27, sleep=2)
    a("s_mov_b32 s62, 0")
    stamp(a, 3)
    a.label("L_HPOLL")
    a.reset()
    a(f"""
    global_load_dwordx4 v[64:67], v12, {P_WS} sc0 sc1
    global_load_dwordx4 v[68:71], v12, {P_WS} offset:1024 sc0 sc1
    global_load_dwordx4 v[72:75], v13, {P_WS} sc0 sc1
    global_load_dwordx4 v[76:79], v13, {P_WS} offset:1024 sc0 sc1
    global_load_dwordx4 v[80:83], v14, {P_WS} sc0 sc1
    global_load_dwordx4 v[84:87], v14, {P_WS} offset:1024 sc0 sc1
    global_load_dwordx4 v[88:91], v15, {P_WS} sc0 sc1
    global_load_dwordx4 v[92:95], v15, {P_WS} offset:1024 sc0 sc1
    s_mov_b64 exec, -1
    s_waitcnt vmcnt(0)
    v_xor_b32 v16, s10, v67
    v_xor_b32 v17, s10, v71
    v_xor_b32 v18, s10, v75
    v_xor_b32 v19, s10, v79
    v_xor_b32 v20, s10, v83
    v_xor_b32 v21, s10, v87
    v_xor_b32 v22, s10, v91
    v_xor_b32 v23, s10, v95
    v_or3_b32 v16, v16, v17, v18
    v_or3_b32 v19, v19, v20, v21
    v_or3_b32 v16, v16, v22, v23
    v_or_b32 v16, v16, v19
    v_cmp_ne_u32 vcc, 0, v16
    s_cbranch_vccz L_HOK
    s_sleep 3
    s_add_u32 s62, s62, 1
    s_mov_b64 exec, vcc
    s_cmp_lt_u32 s62, {SPIN_MAX}
    s_cbranch_scc1 L_HPOLL
    s_mov_b64 exec, -1
    """)
    a.label("L_HOK")
    a.reset()
    a("s_setprio 3")
    stamp(a, 10)
    T = 128
    for g in range(4):
        G, U = 64 + 4 * g, 80 + 4 * g
        for d in range(2):
            t = T + 4 * (2 * g + d)
            a(f"""
            v_lshlrev_b32 v{t}, 16, v{G+d}
            v_and_b32 v{t+1}, 0xffff0000, v{G+d}
            v_lshlrev_b32 v{t+2}, 16, v{U+d}
            v_and_b32 v{t+3}, 0xffff0000, v{U+d}
            """)
    for k in range(8):
        t = T + 4 * k
        a(f"v_pk_mul_f32 v[{t}:{t+1}], v[{t}:{t+1}], v[{t+2}:{t+3}]")
    for g in range(4):
        G = 64 + 4 * g
        for d in range(2):
            t = T + 4 * (2 * g + d)
            a(f"v_cvt_pk_bf16_f32 v{G+d}, v{t}, v{t+1}")
    a(f"""
    ds_write_b64 v24, v[64:65]
    ds_write_b64 v24, v[68:69] offset:256
    ds_read_b128 v[16:19], v25
    ds_write_b64 v24, v[72:73] offset:1024
    ds_write_b64 v24, v[76:77] offset:1280
    ds_read_b128 v[20:23], v25 offset:1024
    s_waitcnt lgkmcnt(3)
    """)
    for j in range(8):
        a(f"v_mfma_f32_16x16x32_bf16 v[{AC+4*j}:{AC+4*j+3}], v[16:19], v[{F0+4*j}:{F0+4*j+3}], 0")
    a(f"""
    s_waitcnt lgkmcnt(0)
    s_cmp_eq_u32 s7, 3
    s_cbranch_scc1 L_DSKIP
    """)
    for j in range(8):
        a(f"v_mfma_f32_16x16x32_bf16 v[{AC+4*j}:{AC+4*j+3}], v[20:23], v[{F1+4*j}:{F1+4*j+3}], v[{AC+4*j}:{AC+4*j+3}]")
    a.label("L_DSKIP")
    a.reset()
    a("s_nop 7")
    for j in range(8):
        a(f"v_cndmask_b32 v{AC+4*j}, v{AC+4*j}, v{AC+4*j+2}, s[60:61]")
        a(f"v_cndmask_b32 v{AC+4*j+1}, v{AC+4*j+1}, v{AC+4*j+3}, s[60:61]")
    a("s_mov_b64 exec, s[56:57]")
    for j in range(8):
        a(f"ds_write2_b32 v160, v{AC+4*j}, v{AC+4*j+1} offset0:{j} offset1:{16+j}")
    a("s_mov_b64 exec, -1")
    lds_signal(a, 8, 12, 13)
    a(f"""
    s_cmp_eq_u32 s7, 3
    s_cbranch_scc0 L_DFIN
    global_load_dwordx4 v[64:67], v161, {P_WS} sc0 sc1
    """)
    lds_wait_flag(a, "D", 8, 4, 12, 13, sleep=False)
    for i in range(16):
        a(f"ds_read_b32 v{32+i}, v164 offset:{128*i}")
    a("s_waitcnt lgkmcnt(0)")
    for st in (1, 2, 4, 8):
        for i in range(0, 16, 2 * st):
            a(f"v_add_f32 v{32+i}, v{32+i}, v{32+i+st}")
    a(f"""
    v_mov_b32 v33, v32
    v_mov_b32 v62, 0x3a000000
    s_mov_b32 s62, 0
    v_permlane32_swap_b32 v32, v33
    v_add_f32 v52, v32, v33
    v_mov_b32_dpp v53, v52 quad_perm:[1,1,3,3] row_mask:0xf bank_mask:0xf
    v_cvt_pk_bf16_f32 v52, v52, v53
    v_and_b32 v53, 0xffff0000, v52
    v_lshlrev_b32 v52, 16, v52
    v_mul_f32 v52, v52, v162
    v_mul_f32 v53, v53, v162
    v_cvt_pk_bf16_f32 v52, v52, v53
    v_and_b32 v53, 0xffff0000, v52
    v_lshlrev_b32 v52, 16, v52
    """)
    stamp(a, 5)
    a.label("L_TPOLL")
    a.reset()
    a(f"""
    s_waitcnt vmcnt(0)
    v_cmp_ne_u32 vcc, s10, v67
    s_cbranch_vccz L_TOK
    s_sleep 1
    s_add_u32 s62, s62, 1
    s_cmp_ge_u32 s62, {SPIN_MAX}
    s_cbranch_scc1 L_TOK
    global_load_dwordx4 v[64:67], v161, {P_WS} sc0 sc1
    s_branch L_TPOLL
    """)
    a.label("L_TOK")
    a.reset()
    stamp(a, 6)
    a(f"""
    v_lshlrev_b32 v60, 16, v65
    v_and_b32 v61, 0xffff0000, v65
    v_fma_f32 v52, v60, v62, v52
    v_fma_f32 v53, v61, v62, v53
    v_cvt_pk_bf16_f32 v52, v52, v53
    v_and_b32 v53, 0xffff0000, v52
    v_lshlrev_b32 v52, 16, v52
    v_lshlrev_b32 v60, 16, v64
    v_and_b32 v61, 0xffff0000, v64
    v_add_f32 v52, v52, v60
    v_add_f32 v53, v53, v61
    v_cvt_pk_bf16_f32 v52, v52, v53
    s_mov_b64 exec, 0x55555555
    global_store_dword v163, v52, {P_OUT} sc0 sc1
    s_mov_b64 exec, -1
    """)
    a.label("L_DFIN")
    a.reset()
    finish(a)
    a.label("L_NOMOE")
    a.reset()
    a("s_waitcnt lgkmcnt(0)")
    finish(a)
    a.label("L_END")
    a("s_endpgm")


def main(out):
    a = Asm()
    a.raw(f"; @launch grid=(256,1,1) block=(768,1,1) lds={LDS_SIZE}")
    a.raw('.amdgcn_target "amdgcn-amd-amdhsa--gfx950"')
    a.raw(".text")
    gen(a)
    a.raw('.section .rodata,"a"')
    a.raw(f""".p2align 6
.amdhsa_kernel {NAME}_kernel
  .amdhsa_next_free_vgpr 168
  .amdhsa_next_free_sgpr 102
  .amdhsa_accum_offset 168
  .amdhsa_group_segment_fixed_size 0
  .amdhsa_kernarg_size 136
  .amdhsa_user_sgpr_count 2
  .amdhsa_user_sgpr_kernarg_segment_ptr 1
  .amdhsa_system_sgpr_workgroup_id_x 1
  .amdhsa_float_denorm_mode_32 3
.end_amdhsa_kernel
""")
    open(out, "w").write(a.text())
    print("nops inserted:", a.nops_inserted)


if __name__ == "__main__":
    import subprocess
    out = sys.argv[1] if len(sys.argv) > 1 else "k2.s"
    main(out)
    subprocess.check_call(["clang", "-x", "assembler", "-target", "amdgcn-amd-amdhsa", "-mcpu=gfx950", "-c", out, "-o", "pass1.o"])
    syms = subprocess.check_output(["llvm-objdump", "-t", "pass1.o"]).decode().split("\n")
    addr = {l.split()[-1]: int(l.split()[0], 16) for l in syms if ".text" in l and len(l.split()) >= 5}
    CODE_SPAN[0] = addr["L_END"] - addr[NAME + "_kernel"] - 16
    print("code bytes", CODE_SPAN[0] + 16)
    main(out)
```
